```python
import torch

def _softmax(x, axis=-1):
    return torch.softmax(x, dim=axis)
def _gelu(x):
    return torch.nn.functional.gelu(x, approximate="tanh")
def _silu(x):
    return torch.nn.functional.silu(x)
def _sigmoid(x):
    return torch.sigmoid(x)
def _layernorm(x, axis=-1, eps=1e-5):
    m = x.mean(dim=axis, keepdim=True)
    v = x.var(dim=axis, keepdim=True, unbiased=False)
    return (x - m) / torch.sqrt(v + eps)
def _scatter_add(tgt, idx, src, axis=0):
    return tgt.clone().index_add_(axis, idx, src)
def _segment_sum(src, seg, n):
    out = torch.zeros((n,) + src.shape[1:], dtype=src.dtype)
    return out.index_add_(0, seg, src)
def _pad(x, pw):
    flat = tuple(v for pair in reversed(pw) for v in pair)
    return torch.nn.functional.pad(x, flat)

kernel_name = 'standalone__layernorm_linear__sampling'

def setup_inputs():

    _w = (lambda a: (lambda t: t.to(torch.bfloat16) if t.is_floating_point() else t)(torch.as_tensor(a)))
    B, S, D = 1024, 16, 448
    return {
        "x": _w((lambda *s: torch.randn(*s, dtype=torch.bfloat16) * 0.05)(B, S, D)),
        "g": _w((lambda *s: torch.randn(*s, dtype=torch.bfloat16) * 0.05)(D) + 1.0),
        "b": _w((lambda *s: torch.randn(*s, dtype=torch.bfloat16) * 0.4)(D)),
        "w": _w((lambda *s: torch.randn(*s, dtype=torch.bfloat16) * 0.05)(D, D)),
    }

def reference(x, g, b, w):
    return (_layernorm(x, axis=-1) * g + b) @ w
```

```python
KN = "standalone__layernorm_linear__sampling_kernel"
HEADER = """; Kernarg layout for this problem (56 bytes, ptrs only, base s[0:1]):
"""

class Asm:
    def __init__(self):
        self.lines = []
    def __call__(self, s):
        for l in s.split("\n"):
            l = l.strip()
            if l:
                self.lines.append(("" if l.endswith(":") else "    ") + l)
    def c(self, s):
        self.lines.append("    ; " + s)
    def text(self):
        return "\n".join(self.lines) + "\n"

def v(i, n=1):
    return f"v{i}" if n == 1 else f"v[{i}:{i+n-1}]"
def a(i, n=1):
    return f"a{i}" if n == 1 else f"a[{i}:{i+n-1}]"
def s(i, n=1):
    return f"s{i}" if n == 1 else f"s[{i}:{i+n-1}]"

def wrap(body, grid, block, lds, nvgpr, nsgpr, accum, notes=""):
    out = HEADER
    for l in notes.strip().split("\n"):
        if l.strip():
            out += "; " + l.strip() + "\n"
    out += f"; @launch grid=({grid},1,1) block=({block},1,1) lds={lds}\n"
    out += f""".amdgcn_target "amdgcn-amd-amdhsa--gfx950"
.text
.globl {KN}
.p2align 8
.type {KN},@function
{KN}:
"""
    out += body
    out += f""".section .rodata,"a"
.p2align 6
.amdhsa_kernel {KN}
  .amdhsa_next_free_vgpr {nvgpr}
  .amdhsa_next_free_sgpr {nsgpr}
  .amdhsa_accum_offset {accum}
  .amdhsa_group_segment_fixed_size 0
  .amdhsa_kernarg_size 56
  .amdhsa_user_sgpr_count 2
  .amdhsa_user_sgpr_kernarg_segment_ptr 1
  .amdhsa_system_sgpr_workgroup_id_x 1
.end_amdhsa_kernel
"""
    return out

def srd(A, d, base, nbytes):
    A(f"s_mov_b32 s{d}, s{base}")
    A(f"s_and_b32 s{d+1}, s{base+1}, 0xffff")
    A(f"s_mov_b32 s{d+2}, {nbytes}")
    A(f"s_mov_b32 s{d+3}, 0x20000")
```

```python
import sys
from asmgen import *
STAMPS = "--stamps" in sys.argv
NST = 8
A = Asm()
P = 928
XB = 16384 * 896
S_X, S_G, S_B, S_W, S_O, S_WS = 4, 6, 8, 10, 12, 14
R_X, R_W, R_O, R_G, R_B, R_WS = 16, 20, 24, 28, 32, 36
S_WV, S_XO, S_WO, S_OO, S_P0, S_P1, S_T = 40, 41, 42, 43, 44, 45, 46
S_ST = 48
V_XOFF, V_GOFF, V_W0, V_W1, V_LW, V_LR, V_OO = 1, 2, 3, 4, 5, 6, 7
V_T = 8
ACC = 16
AF = 80
BF = 112
WR = 144
DEPTH = 6
XR, GR, BR, YT = 16, 44, 72, 100
def stamp(i):
    if STAMPS:
        A(f"s_memrealtime s[{S_ST+2*i}:{S_ST+2*i+1}]")

A(f"s_cmp_ge_u32 s2, 256")
A(f"s_cbranch_scc1 L_end")
stamp(0)
A(f"s_load_dwordx8 s[4:11], s[0:1], 0")
A(f"s_load_dwordx2 s[12:13], s[0:1], 32")
A(f"s_load_dwordx2 s[14:15], s[0:1], 48")
A(f"v_lshrrev_b32 v{V_T}, 6, v0")
A(f"v_and_b32 v0, 63, v0")
A(f"v_readfirstlane_b32 s{S_WV}, v{V_T}")
A(f"v_lshrrev_b32 v{V_T}, 3, v0")
A(f"v_and_b32 v{V_T+1}, 7, v0")
A(f"v_lshlrev_b32 v{V_GOFF}, 4, v{V_T+1}")
A(f"v_mul_u32_u24 v{V_XOFF}, 896, v{V_T}")
A(f"v_add_u32 v{V_XOFF}, v{V_XOFF}, v{V_GOFF}")
A(f"v_mul_u32_u24 v{V_LW}, {P}, v{V_T}")
A(f"v_add_u32 v{V_LW}, v{V_LW}, v{V_GOFF}")
A(f"v_and_b32 v{V_T+2}, 15, v0")
A(f"v_lshrrev_b32 v{V_T+3}, 4, v0")
A(f"v_mul_u32_u24 v{V_W0}, {8*896}, v{V_T+3}")
A(f"v_lshl_add_u32 v{V_W0}, v{V_T+2}, 3, v{V_W0}")
A(f"v_add_u32 v{V_W1}, {4*896}, v{V_W0}")
A(f"v_mul_u32_u24 v{V_LR}, {P}, v{V_T+2}")
A(f"v_lshl_add_u32 v{V_LR}, v{V_T+3}, 4, v{V_LR}")
A(f"v_mul_u32_u24 v{V_OO}, {4*896}, v{V_T+3}")
A(f"v_lshl_add_u32 v{V_OO}, v{V_T+2}, 3, v{V_OO}")
A(f"s_mul_i32 s{S_T}, s{S_WV}, {8*P}")
A(f"v_add_u32 v{V_LW}, s{S_T}, v{V_LW}")
A(f"s_mul_i32 s{S_XO}, s2, {64*896}")
A(f"s_mul_i32 s{S_T}, s{S_WV}, {8*896}")
A(f"s_lshl_b32 s{S_WO}, s{S_WV}, 7")
A(f"s_add_u32 s{S_OO}, s{S_XO}, s{S_WO}")
A(f"s_add_u32 s{S_XO}, s{S_XO}, s{S_T}")
A(f"s_mov_b32 s{S_P0}, 0x05040100")
A(f"s_mov_b32 s{S_P1}, 0x07060302")
A("s_waitcnt lgkmcnt(0)")
srd(A, R_X, S_X, XB); srd(A, R_W, S_W, 448 * 896); srd(A, R_O, S_O, XB)
srd(A, R_G, S_G, 896); srd(A, R_B, S_B, 896)
if STAMPS:
    srd(A, R_WS, S_WS, 1 << 20)
for i in range(7):
    A(f"buffer_load_dwordx4 {v(XR+4*i,4)}, v{V_XOFF}, s[{R_X}:{R_X+3}], s{S_XO} offen offset:{128*i}")
for i in range(7):
    A(f"buffer_load_dwordx4 {v(GR+4*i,4)}, v{V_GOFF}, s[{R_G}:{R_G+3}], 0 offen offset:{128*i}")
for i in range(7):
    A(f"buffer_load_dwordx4 {v(BR+4*i,4)}, v{V_GOFF}, s[{R_B}:{R_B+3}], 0 offen offset:{128*i}")

def wloads(st):
    base = WR + 16 * (st % DEPTH)
    for j in range(8):
        A(f"buffer_load_dwordx2 {v(base+2*j,2)}, v{V_W0 if j < 4 else V_W1}, s[{R_W}:{R_W+3}], s{S_WO} offen offset:{896*(j&3)}")
    A(f"s_add_u32 s{S_WO}, s{S_WO}, {32*896}")

A(f"s_cmp_eq_u32 s{S_WV}, 7")
A(f"s_cbranch_scc1 L_w7a")
for st in range(5):
    wloads(st)
A("s_waitcnt vmcnt(54)")
A("s_branch L_ln")
A("L_w7a:")
A("s_waitcnt vmcnt(14)")
A("L_ln:")
stamp(1)
SUM, SQ = V_T, V_T + 1
A(f"v_mov_b32 v{SUM}, 0")
A(f"v_mov_b32 v{SQ}, 0")
A(f"v_mov_b32 v{V_T+2}, 0")
A(f"v_mov_b32 v{V_T+3}, 0")
for i in range(28):
    A(f"v_dot2c_f32_bf16 v{SUM + 2*(i&1)}, 0x3f803f80, v{XR+i}")
    A(f"v_dot2c_f32_bf16 v{SQ + 2*(i&1)}, v{XR+i}, v{XR+i}")
A("s_nop 2")
A(f"v_add_f32 v{SUM}, v{SUM}, v{SUM+2}")
A(f"v_add_f32 v{SQ}, v{SQ}, v{SQ+2}")
for dpp in ("quad_perm:[1,0,3,2]", "quad_perm:[2,3,0,1]", "row_half_mirror"):
    A("s_nop 1")
    A(f"v_add_f32_dpp v{SUM}, v{SUM}, v{SUM} {dpp} row_mask:0xf bank_mask:0xf")
    A(f"v_add_f32_dpp v{SQ}, v{SQ}, v{SQ} {dpp} row_mask:0xf bank_mask:0xf")
import struct
def f2u(f): return struct.unpack("<I", struct.pack("<f", f))[0]
MEAN, RSTD, NMR = V_T + 2, V_T + 3, V_T + 4
A(f"v_mul_f32 v{MEAN}, {f2u(1/448):#x}, v{SUM}")
A(f"v_mul_f32 v{SQ}, {f2u(1/448):#x}, v{SQ}")
A(f"v_fma_f32 v{SQ}, -v{MEAN}, v{MEAN}, v{SQ}")
A(f"v_max_f32 v{SQ}, 0, v{SQ}")
A(f"v_add_f32 v{SQ}, {f2u(1e-5):#x}, v{SQ}")
A(f"v_rsq_f32 v{RSTD}, v{SQ}")
A("s_nop 0")
A(f"v_mul_f32 v{NMR}, v{MEAN}, v{RSTD}")
A(f"v_sub_f32 v{NMR}, 0, v{NMR}")
A(f"s_cmp_eq_u32 s{S_WV}, 7")
A(f"s_cbranch_scc1 L_w7b")
A("s_waitcnt vmcnt(40)")
A("s_branch L_ln2")
A("L_w7b:")
A("s_waitcnt vmcnt(0)")
A("L_ln2:")
for i in range(7):
    for j in range(4):
        r = 4 * i + j
        t = YT + 6 * (j & 1)
        A(f"v_lshlrev_b32 v{t}, 16, v{XR+r}")
        A(f"v_and_b32 v{t+1}, 0xffff0000, v{XR+r}")
        A(f"v_lshlrev_b32 v{t+2}, 16, v{GR+r}")
        A(f"v_and_b32 v{t+3}, 0xffff0000, v{GR+r}")
        A(f"v_lshlrev_b32 v{t+4}, 16, v{BR+r}")
        A(f"v_and_b32 v{t+5}, 0xffff0000, v{BR+r}")
        A(f"v_fma_f32 v{t}, v{t}, v{RSTD}, v{NMR}")
        A(f"v_fma_f32 v{t+1}, v{t+1}, v{RSTD}, v{NMR}")
        A(f"v_fma_f32 v{t}, v{t}, v{t+2}, v{t+4}")
        A(f"v_fma_f32 v{t+1}, v{t+1}, v{t+3}, v{t+5}")
        A(f"v_cvt_pk_bf16_f32 v{XR+r}, v{t}, v{t+1}")
    A(f"ds_write_b128 v{V_LW}, {v(XR+4*i,4)} offset:{128*i}")
A("s_waitcnt lgkmcnt(0)")
A("s_barrier")
stamp(2)
A(f"s_cmp_eq_u32 s{S_WV}, 7")
A(f"s_cbranch_scc1 L_fin")
wloads(5)
def areads(st):
    base = AF + 16 * (st & 1)
    for mt in range(4):
        A(f"ds_read_b128 {v(base+4*mt,4)}, v{V_LR} offset:{mt*16*P + st*64}")
def perms(st):
    src = WR + 16 * (st % DEPTH); dst = BF + 16 * (st & 1)
    out = []
    for t in range(4):
        for p in range(4):
            lo = src + 2 * (2 * p) + (t >> 1); hi = src + 2 * (2 * p + 1) + (t >> 1)
            out.append(f"v_perm_b32 v{dst+4*t+p}, v{hi}, v{lo}, s{S_P1 if t & 1 else S_P0}")
    return out
issued = 6
areads(0)
A(f"s_waitcnt vmcnt({8*(issued-1)})")
for l in perms(0): A(l)
stamp(3)
for st in range(14):
    if issued < 14:
        wloads(issued); issued += 1
    pm = []
    if st + 1 < 14:
        areads(st + 1)
        A(f"s_waitcnt vmcnt({8*(issued-1-(st+1))}) lgkmcnt(4)")
        pm = perms(st + 1)
    else:
        A("s_waitcnt lgkmcnt(0)")
    k = 0
    for mt in range(4):
        for t in range(4):
            d = ACC + 16 * mt + 4 * t
            cin = "0" if st == 0 else v(d, 4)
            A(f"v_mfma_f32_16x16x32_bf16 {v(d,4)}, {v(AF+16*(st&1)+4*mt,4)}, {v(BF+16*(st&1)+4*t,4)}, {cin}")
            if k < len(pm):
                A(pm[k]); k += 1
stamp(4)
A("s_nop 7")
for mt in range(4):
    for r in range(4):
        t = AF + 2 * (4 * mt + r)
        d = ACC + 16 * mt + r
        A(f"v_cvt_pk_bf16_f32 v{t}, v{d}, v{d+4}")
        A(f"v_cvt_pk_bf16_f32 v{t+1}, v{d+8}, v{d+12}")
        A(f"buffer_store_dwordx2 {v(t,2)}, v{V_OO}, s[{R_O}:{R_O+3}], s{S_OO} offen offset:{896*r}")
    A(f"s_add_u32 s{S_OO}, s{S_OO}, {16*896}")
stamp(5)
A("L_fin:")
if STAMPS:
    A("s_waitcnt vmcnt(0)")
    stamp(6)
    A(f"s_cmp_lg_u32 s{S_WV}, 0")
    A("s_cbranch_scc1 L_end")
    A("s_waitcnt lgkmcnt(0)")
    A(f"s_lshl_b32 s{S_T}, s2, 6")
    A(f"v_mov_b32 v{V_T+8}, 0")
    for i in range(7):
        A(f"v_mov_b32 v{V_T}, s{S_ST+2*i}")
        A(f"v_mov_b32 v{V_T+1}, s{S_ST+2*i+1}")
        A(f"buffer_store_dwordx2 {v(V_T,2)}, v{V_T+8}, s[{R_WS}:{R_WS+3}], s{S_T} offen offset:{8*i}")
        A("s_waitcnt vmcnt(0)")
A("L_end:")
A("s_endpgm")
out = wrap(A.text(), 256, 512, 64 * P, 240, 72, 240, notes="V1: 64x448 tile per workgroup")
open(sys.argv[1], "w").write(out)
```

```python
import sys
from asmgen import *
STAMPS = "--stamps" in sys.argv
PROBE = int(sys.argv[sys.argv.index("--probe")+1]) if "--probe" in sys.argv else None
NST = 8
A = Asm()
P = 928
XB = 16384 * 896
S_X, S_G, S_B, S_W, S_O, S_WS = 4, 6, 8, 10, 12, 14
R_X, R_W, R_O, R_G, R_B, R_WS = 16, 20, 24, 28, 32, 36
S_WV, S_XO, S_WO, S_OO, S_P0, S_P1, S_T = 40, 41, 42, 43, 44, 45, 46
S_ST = 48
V_XOFF, V_GOFF, V_W0, V_W1, V_LW, V_LR, V_OO = 1, 2, 3, 4, 5, 6, 7
V_T = 8
ACC = 16
AF = 80
BF = 112
WR = 144
DEPTH = 6
XR, GR, BR, YT = 16, 44, 72, 100
def stamp(i):
    if STAMPS:
        A(f"s_memrealtime s[{S_ST+2*i}:{S_ST+2*i+1}]")

A(f"s_cmp_ge_u32 s2, 256")
A(f"s_cbranch_scc1 L_end")
stamp(0)
A(f"s_load_dwordx8 s[4:11], s[0:1], 0")
A(f"s_load_dwordx2 s[12:13], s[0:1], 32")
A(f"s_load_dwordx2 s[14:15], s[0:1], 48")
A(f"v_lshrrev_b32 v{V_T}, 6, v0")
A(f"v_and_b32 v0, 63, v0")
A(f"v_readfirstlane_b32 s{S_WV}, v{V_T}")
A(f"v_lshrrev_b32 v{V_T}, 3, v0")
A(f"v_and_b32 v{V_T+1}, 7, v0")
A(f"v_lshlrev_b32 v{V_GOFF}, 4, v{V_T+1}")
A(f"v_mul_u32_u24 v{V_XOFF}, 896, v{V_T}")
A(f"v_add_u32 v{V_XOFF}, v{V_XOFF}, v{V_GOFF}")
A(f"v_mul_u32_u24 v{V_LW}, {P}, v{V_T}")
A(f"v_add_u32 v{V_LW}, v{V_LW}, v{V_GOFF}")
A(f"v_and_b32 v{V_T+2}, 15, v0")
A(f"v_lshrrev_b32 v{V_T+3}, 4, v0")
A(f"v_mul_u32_u24 v{V_W0}, {8*896}, v{V_T+3}")
A(f"v_lshl_add_u32 v{V_W0}, v{V_T+2}, 3, v{V_W0}")
A(f"v_add_u32 v{V_W1}, {4*896}, v{V_W0}")
A(f"v_mul_u32_u24 v{V_LR}, {P}, v{V_T+2}")
A(f"v_lshl_add_u32 v{V_LR}, v{V_T+3}, 4, v{V_LR}")
A(f"v_mul_u32_u24 v{V_OO}, {4*896}, v{V_T+3}")
A(f"v_lshl_add_u32 v{V_OO}, v{V_T+2}, 3, v{V_OO}")
A(f"s_mul_i32 s{S_T}, s{S_WV}, {8*P}")
A(f"v_add_u32 v{V_LW}, s{S_T}, v{V_LW}")
A(f"s_mul_i32 s{S_XO}, s2, {64*896}")
A(f"s_mul_i32 s{S_T}, s{S_WV}, {8*896}")
A(f"s_lshl_b32 s{S_WO}, s{S_WV}, 7")
A(f"s_add_u32 s{S_OO}, s{S_XO}, s{S_WO}")
A(f"s_add_u32 s{S_XO}, s{S_XO}, s{S_T}")
A(f"s_mov_b32 s{S_P0}, 0x05040100")
A(f"s_mov_b32 s{S_P1}, 0x07060302")
A("s_waitcnt lgkmcnt(0)")
srd(A, R_X, S_X, XB); srd(A, R_W, S_W, 448 * 896); srd(A, R_O, S_O, XB)
srd(A, R_G, S_G, 896); srd(A, R_B, S_B, 896)
if STAMPS:
    srd(A, R_WS, S_WS, 1 << 20)
for i in range(7):
    A(f"buffer_load_dwordx4 {v(XR+4*i,4)}, v{V_XOFF}, s[{R_X}:{R_X+3}], s{S_XO} offen offset:{128*i}")
for i in range(7):
    A(f"buffer_load_dwordx4 {v(GR+4*i,4)}, v{V_GOFF}, s[{R_G}:{R_G+3}], 0 offen offset:{128*i}")
for i in range(7):
    A(f"buffer_load_dwordx4 {v(BR+4*i,4)}, v{V_GOFF}, s[{R_B}:{R_B+3}], 0 offen offset:{128*i}")

def wloads(st):
    base = WR + 16 * (st % DEPTH)
    for j in range(8):
        A(f"buffer_load_dwordx2 {v(base+2*j,2)}, v{V_W0 if j < 4 else V_W1}, s[{R_W}:{R_W+3}], s{S_WO} offen offset:{896*(j&3)}")
    A(f"s_add_u32 s{S_WO}, s{S_WO}, {32*896}")

A(f"s_cmp_eq_u32 s{S_WV}, 7")
A(f"s_cbranch_scc1 L_w7a")
for st in range(5):
    wloads(st)
A("s_waitcnt vmcnt(54)")
A("s_branch L_ln")
A("L_w7a:")
A("s_waitcnt vmcnt(14)")
A("L_ln:")
stamp(1)
SUM, SQ = V_T, V_T + 1
A(f"v_mov_b32 v{SUM}, 0")
A(f"v_mov_b32 v{SQ}, 0")
A(f"v_mov_b32 v{V_T+2}, 0")
A(f"v_mov_b32 v{V_T+3}, 0")
for i in range(28):
    A(f"v_dot2c_f32_bf16 v{SUM + 2*(i&1)}, 0x3f803f80, v{XR+i}")
    A(f"v_dot2c_f32_bf16 v{SQ + 2*(i&1)}, v{XR+i}, v{XR+i}")
A("s_nop 2")
A(f"v_add_f32 v{SUM}, v{SUM}, v{SUM+2}")
A(f"v_add_f32 v{SQ}, v{SQ}, v{SQ+2}")
for dpp in ("quad_perm:[1,0,3,2]", "quad_perm:[2,3,0,1]", "row_half_mirror"):
    A("s_nop 1")
    A(f"v_add_f32_dpp v{SUM}, v{SUM}, v{SUM} {dpp} row_mask:0xf bank_mask:0xf")
    A(f"v_add_f32_dpp v{SQ}, v{SQ}, v{SQ} {dpp} row_mask:0xf bank_mask:0xf")
import struct
def f2u(f): return struct.unpack("<I", struct.pack("<f", f))[0]
MEAN, RSTD, NMR = V_T + 2, V_T + 3, V_T + 4
A(f"v_mul_f32 v{MEAN}, {f2u(1/448):#x}, v{SUM}")
A(f"v_mul_f32 v{SQ}, {f2u(1/448):#x}, v{SQ}")
A(f"v_fma_f32 v{SQ}, -v{MEAN}, v{MEAN}, v{SQ}")
A(f"v_max_f32 v{SQ}, 0, v{SQ}")
A(f"v_add_f32 v{SQ}, {f2u(1e-5):#x}, v{SQ}")
A(f"v_rsq_f32 v{RSTD}, v{SQ}")
A("s_nop 0")
A(f"v_mul_f32 v{NMR}, v{MEAN}, v{RSTD}")
A(f"v_sub_f32 v{NMR}, 0, v{NMR}")
A(f"s_cmp_eq_u32 s{S_WV}, 7")
A(f"s_cbranch_scc1 L_w7b")
A("s_waitcnt vmcnt(40)")
A("s_branch L_ln2")
A("L_w7b:")
A("s_waitcnt vmcnt(0)")
A("L_ln2:")
for i in range(7):
    for j in range(4):
        r = 4 * i + j
        t = YT + 6 * (j & 1)
        A(f"v_lshlrev_b32 v{t}, 16, v{XR+r}")
        A(f"v_and_b32 v{t+1}, 0xffff0000, v{XR+r}")
        A(f"v_lshlrev_b32 v{t+2}, 16, v{GR+r}")
        A(f"v_and_b32 v{t+3}, 0xffff0000, v{GR+r}")
        A(f"v_lshlrev_b32 v{t+4}, 16, v{BR+r}")
        A(f"v_and_b32 v{t+5}, 0xffff0000, v{BR+r}")
        A(f"v_fma_f32 v{t}, v{t}, v{RSTD}, v{NMR}")
        A(f"v_fma_f32 v{t+1}, v{t+1}, v{RSTD}, v{NMR}")
        A(f"v_fma_f32 v{t}, v{t}, v{t+2}, v{t+4}")
        A(f"v_fma_f32 v{t+1}, v{t+1}, v{t+3}, v{t+5}")
        A(f"v_cvt_pk_bf16_f32 v{XR+r}, v{t}, v{t+1}")
    A(f"ds_write_b128 v{V_LW}, {v(XR+4*i,4)} offset:{128*i}")
A("s_waitcnt lgkmcnt(0)")
A("s_barrier")
stamp(2)
A(f"s_cmp_eq_u32 s{S_WV}, 7")
A(f"s_cbranch_scc1 L_fin")
wloads(5)
def areads(st):
    base = AF + 16 * (st & 1)
    for mt in range(4):
        A(f"ds_read_b128 {v(base+4*mt,4)}, v{V_LR} offset:{mt*16*P + st*64}")
def perms(st):
    src = WR + 16 * (st % DEPTH); dst = BF + 16 * (st & 1)
    out = []
    for t in range(4):
        for p in range(4):
            lo = src + 2 * (2 * p) + (t >> 1); hi = src + 2 * (2 * p + 1) + (t >> 1)
            out.append(f"v_perm_b32 v{dst+4*t+p}, v{hi}, v{lo}, s{S_P1 if t & 1 else S_P0}")
    return out
issued = 6
areads(0)
A(f"s_waitcnt vmcnt({8*(issued-1)})")
for l in perms(0): A(l)
stamp(3)
for st in range(14):
    if issued < 14:
        wloads(issued); issued += 1
    pm = []
    if st + 1 < 14:
        areads(st + 1)
        A(f"s_waitcnt vmcnt({8*(issued-1-(st+1))}) lgkmcnt(4)")
        pm = perms(st + 1)
    else:
        A("s_waitcnt lgkmcnt(0)")
    k = 0
    for mt in range(4):
        for t in range(4):
            d = ACC + 16 * mt + 4 * t
            cin = "0" if st == 0 else v(d, 4)
            A(f"v_mfma_f32_16x16x32_bf16 {v(d,4)}, {v(AF+16*(st&1)+4*mt,4)}, {v(BF+16*(st&1)+4*t,4)}, {cin}")
            if k < len(pm):
                A(pm[k]); k += 1
stamp(4)
A("s_nop 7")
for mt in range(4):
    for r in range(4):
        t = AF + 2 * (4 * mt + r)
        d = ACC + 16 * mt + r
        A(f"v_cvt_pk_bf16_f32 v{t}, v{d}, v{d+4}")
        A(f"v_cvt_pk_bf16_f32 v{t+1}, v{d+8}, v{d+12}")
        A(f"buffer_store_dwordx2 {v(t,2)}, v{V_OO}, s[{R_O}:{R_O+3}], s{S_OO} offen offset:{896*r}")
    A(f"s_add_u32 s{S_OO}, s{S_OO}, {16*896}")
stamp(5)
A("L_fin:")
if STAMPS:
    A("s_waitcnt vmcnt(0)")
    stamp(6)
    A(f"s_cmp_lg_u32 s{S_WV}, 0")
    A("s_cbranch_scc1 L_end")
    A("s_waitcnt lgkmcnt(0)")
    if PROBE is not None:
        A(f"s_sub_u32 s{S_T}, s{S_ST+2*PROBE}, s{S_ST}")
        A(f"s_lshl_b32 s{S_T}, s{S_T}, 1")
        A(f"s_add_u32 s{S_T}, s{S_T}, s{S_ST+12}")
        A("L_spin:")
        A(f"s_memrealtime s[{S_ST+14}:{S_ST+15}]")
        A("s_waitcnt lgkmcnt(0)")
        A(f"s_sub_u32 s{S_T+1}, s{S_ST+14}, s{S_T}")
        A(f"s_cmp_lt_i32 s{S_T+1}, 0")
        A("s_cbranch_scc1 L_spin")
    A(f"s_lshl_b32 s{S_T}, s2, 6")
    A(f"v_mov_b32 v{V_T+8}, 0")
    for i in range(7):
        A(f"v_mov_b32 v{V_T}, s{S_ST+2*i}")
        A(f"v_mov_b32 v{V_T+1}, s{S_ST+2*i+1}")
        A(f"buffer_store_dwordx2 {v(V_T,2)}, v{V_T+8}, s[{R_WS}:{R_WS+3}], s{S_T} offen offset:{8*i}")
        A("s_waitcnt vmcnt(0)")
A("L_end:")
A("s_endpgm")
out = wrap(A.text(), 256, 512, 64 * P, 240, 72, 240, notes="V1: 64x448 tile per workgroup")
open(sys.argv[1], "w").write(out)
```

```python
import sys
from asmgen import *
STAMPS = "--stamps" in sys.argv
PROBE = sys.argv[sys.argv.index("--probe")+1] if "--probe" in sys.argv else None
NST = 8
A = Asm()
P = 928
XB = 16384 * 896
S_X, S_G, S_B, S_W, S_O, S_WS = 4, 6, 8, 10, 12, 14
R_X, R_W, R_O, R_G, R_B, R_WS = 16, 20, 24, 28, 32, 36
S_WV, S_XO, S_WO, S_OO, S_P0, S_P1, S_T = 40, 41, 42, 43, 44, 45, 46
S_ST = 48
V_XOFF, V_GOFF, V_W0, V_W1, V_LW, V_LR, V_OO = 1, 2, 3, 4, 5, 6, 7
V_T = 8
ACC = 16
AF = 80
BF = 112
WR = 144
DEPTH = 6
XR, GR, BR, YT = 16, 44, 72, 100
def stamp(i):
    if STAMPS:
        A(f"s_memrealtime s[{S_ST+2*i}:{S_ST+2*i+1}]")

A(f"s_cmp_ge_u32 s2, 256")
A(f"s_cbranch_scc1 L_end")
stamp(0)
A(f"s_load_dwordx8 s[4:11], s[0:1], 0")
A(f"s_load_dwordx2 s[12:13], s[0:1], 32")
A(f"s_load_dwordx2 s[14:15], s[0:1], 48")
A(f"v_lshrrev_b32 v{V_T}, 6, v0")
A(f"v_and_b32 v0, 63, v0")
A(f"v_readfirstlane_b32 s{S_WV}, v{V_T}")
A(f"v_lshrrev_b32 v{V_T}, 3, v0")
A(f"v_and_b32 v{V_T+1}, 7, v0")
A(f"v_lshlrev_b32 v{V_GOFF}, 4, v{V_T+1}")
A(f"v_mul_u32_u24 v{V_XOFF}, 896, v{V_T}")
A(f"v_add_u32 v{V_XOFF}, v{V_XOFF}, v{V_GOFF}")
A(f"v_mul_u32_u24 v{V_LW}, {P}, v{V_T}")
A(f"v_add_u32 v{V_LW}, v{V_LW}, v{V_GOFF}")
A(f"v_and_b32 v{V_T+2}, 15, v0")
A(f"v_lshrrev_b32 v{V_T+3}, 4, v0")
A(f"v_mul_u32_u24 v{V_W0}, {8*896}, v{V_T+3}")
A(f"v_lshl_add_u32 v{V_W0}, v{V_T+2}, 3, v{V_W0}")
A(f"v_add_u32 v{V_W1}, {4*896}, v{V_W0}")
A(f"v_mul_u32_u24 v{V_LR}, {P}, v{V_T+2}")
A(f"v_lshl_add_u32 v{V_LR}, v{V_T+3}, 4, v{V_LR}")
A(f"v_mul_u32_u24 v{V_OO}, {4*896}, v{V_T+3}")
A(f"v_lshl_add_u32 v{V_OO}, v{V_T+2}, 3, v{V_OO}")
A(f"s_mul_i32 s{S_T}, s{S_WV}, {8*P}")
A(f"v_add_u32 v{V_LW}, s{S_T}, v{V_LW}")
A(f"s_mul_i32 s{S_XO}, s2, {64*896}")
A(f"s_mul_i32 s{S_T}, s{S_WV}, {8*896}")
A(f"s_lshl_b32 s{S_WO}, s{S_WV}, 7")
A(f"s_add_u32 s{S_OO}, s{S_XO}, s{S_WO}")
A(f"s_add_u32 s{S_XO}, s{S_XO}, s{S_T}")
A(f"s_mov_b32 s{S_P0}, 0x05040100")
A(f"s_mov_b32 s{S_P1}, 0x07060302")
A("s_waitcnt lgkmcnt(0)")
srd(A, R_X, S_X, XB); srd(A, R_W, S_W, 448 * 896); srd(A, R_O, S_O, XB)
srd(A, R_G, S_G, 896); srd(A, R_B, S_B, 896)
if STAMPS:
    srd(A, R_WS, S_WS, 1 << 20)
for i in range(7):
    A(f"buffer_load_dwordx4 {v(XR+4*i,4)}, v{V_XOFF}, s[{R_X}:{R_X+3}], s{S_XO} offen offset:{128*i}")
for i in range(7):
    A(f"buffer_load_dwordx4 {v(GR+4*i,4)}, v{V_GOFF}, s[{R_G}:{R_G+3}], 0 offen offset:{128*i}")
for i in range(7):
    A(f"buffer_load_dwordx4 {v(BR+4*i,4)}, v{V_GOFF}, s[{R_B}:{R_B+3}], 0 offen offset:{128*i}")

def wloads(st):
    base = WR + 16 * (st % DEPTH)
    for j in range(8):
        A(f"buffer_load_dwordx2 {v(base+2*j,2)}, v{V_W0 if j < 4 else V_W1}, s[{R_W}:{R_W+3}], s{S_WO} offen offset:{896*(j&3)}")
    A(f"s_add_u32 s{S_WO}, s{S_WO}, {32*896}")

A(f"s_cmp_eq_u32 s{S_WV}, 7")
A(f"s_cbranch_scc1 L_w7a")
for st in range(5):
    wloads(st)
A("s_waitcnt vmcnt(54)")
A("s_branch L_ln")
A("L_w7a:")
A("s_waitcnt vmcnt(14)")
A("L_ln:")
stamp(1)
SUM, SQ = V_T, V_T + 1
A(f"v_mov_b32 v{SUM}, 0")
A(f"v_mov_b32 v{SQ}, 0")
A(f"v_mov_b32 v{V_T+2}, 0")
A(f"v_mov_b32 v{V_T+3}, 0")
for i in range(28):
    A(f"v_dot2c_f32_bf16 v{SUM + 2*(i&1)}, 0x3f803f80, v{XR+i}")
    A(f"v_dot2c_f32_bf16 v{SQ + 2*(i&1)}, v{XR+i}, v{XR+i}")
A("s_nop 2")
A(f"v_add_f32 v{SUM}, v{SUM}, v{SUM+2}")
A(f"v_add_f32 v{SQ}, v{SQ}, v{SQ+2}")
for dpp in ("quad_perm:[1,0,3,2]", "quad_perm:[2,3,0,1]", "row_half_mirror"):
    A("s_nop 1")
    A(f"v_add_f32_dpp v{SUM}, v{SUM}, v{SUM} {dpp} row_mask:0xf bank_mask:0xf")
    A(f"v_add_f32_dpp v{SQ}, v{SQ}, v{SQ} {dpp} row_mask:0xf bank_mask:0xf")
import struct
def f2u(f): return struct.unpack("<I", struct.pack("<f", f))[0]
MEAN, RSTD, NMR = V_T + 2, V_T + 3, V_T + 4
A(f"v_mul_f32 v{MEAN}, {f2u(1/448):#x}, v{SUM}")
A(f"v_mul_f32 v{SQ}, {f2u(1/448):#x}, v{SQ}")
A(f"v_fma_f32 v{SQ}, -v{MEAN}, v{MEAN}, v{SQ}")
A(f"v_max_f32 v{SQ}, 0, v{SQ}")
A(f"v_add_f32 v{SQ}, {f2u(1e-5):#x}, v{SQ}")
A(f"v_rsq_f32 v{RSTD}, v{SQ}")
A("s_nop 0")
A(f"v_mul_f32 v{NMR}, v{MEAN}, v{RSTD}")
A(f"v_sub_f32 v{NMR}, 0, v{NMR}")
A(f"s_cmp_eq_u32 s{S_WV}, 7")
A(f"s_cbranch_scc1 L_w7b")
A("s_waitcnt vmcnt(40)")
A("s_branch L_ln2")
A("L_w7b:")
A("s_waitcnt vmcnt(0)")
A("L_ln2:")
for i in range(7):
    for j in range(4):
        r = 4 * i + j
        t = YT + 6 * (j & 1)
        A(f"v_lshlrev_b32 v{t}, 16, v{XR+r}")
        A(f"v_and_b32 v{t+1}, 0xffff0000, v{XR+r}")
        A(f"v_lshlrev_b32 v{t+2}, 16, v{GR+r}")
        A(f"v_and_b32 v{t+3}, 0xffff0000, v{GR+r}")
        A(f"v_lshlrev_b32 v{t+4}, 16, v{BR+r}")
        A(f"v_and_b32 v{t+5}, 0xffff0000, v{BR+r}")
        A(f"v_fma_f32 v{t}, v{t}, v{RSTD}, v{NMR}")
        A(f"v_fma_f32 v{t+1}, v{t+1}, v{RSTD}, v{NMR}")
        A(f"v_fma_f32 v{t}, v{t}, v{t+2}, v{t+4}")
        A(f"v_fma_f32 v{t+1}, v{t+1}, v{t+3}, v{t+5}")
        A(f"v_cvt_pk_bf16_f32 v{XR+r}, v{t}, v{t+1}")
    A(f"ds_write_b128 v{V_LW}, {v(XR+4*i,4)} offset:{128*i}")
A("s_waitcnt lgkmcnt(0)")
A("s_barrier")
stamp(2)
A(f"s_cmp_eq_u32 s{S_WV}, 7")
A(f"s_cbranch_scc1 L_fin")
wloads(5)
def areads(st):
    base = AF + 16 * (st & 1)
    for mt in range(4):
        A(f"ds_read_b128 {v(base+4*mt,4)}, v{V_LR} offset:{mt*16*P + st*64}")
def perms(st):
    src = WR + 16 * (st % DEPTH); dst = BF + 16 * (st & 1)
    out = []
    for t in range(4):
        for p in range(4):
            lo = src + 2 * (2 * p) + (t >> 1); hi = src + 2 * (2 * p + 1) + (t >> 1)
            out.append(f"v_perm_b32 v{dst+4*t+p}, v{hi}, v{lo}, s{S_P1 if t & 1 else S_P0}")
    return out
issued = 6
areads(0)
A(f"s_waitcnt vmcnt({8*(issued-1)})")
for l in perms(0): A(l)
stamp(3)
for st in range(14):
    if issued < 14:
        wloads(issued); issued += 1
    pm = []
    if st + 1 < 14:
        areads(st + 1)
        A(f"s_waitcnt vmcnt({8*(issued-1-(st+1))}) lgkmcnt(4)")
        pm = perms(st + 1)
    else:
        A("s_waitcnt lgkmcnt(0)")
    k = 0
    for mt in range(4):
        for t in range(4):
            d = ACC + 16 * mt + 4 * t
            cin = "0" if st == 0 else v(d, 4)
            A(f"v_mfma_f32_16x16x32_bf16 {v(d,4)}, {v(AF+16*(st&1)+4*mt,4)}, {v(BF+16*(st&1)+4*t,4)}, {cin}")
            if k < len(pm):
                A(pm[k]); k += 1
stamp(4)
A("s_nop 7")
for mt in range(4):
    for r in range(4):
        t = AF + 2 * (4 * mt + r)
        d = ACC + 16 * mt + r
        A(f"v_cvt_pk_bf16_f32 v{t}, v{d}, v{d+4}")
        A(f"v_cvt_pk_bf16_f32 v{t+1}, v{d+8}, v{d+12}")
        A(f"buffer_store_dwordx2 {v(t,2)}, v{V_OO}, s[{R_O}:{R_O+3}], s{S_OO} offen offset:{896*r}")
    A(f"s_add_u32 s{S_OO}, s{S_OO}, {16*896}")
stamp(5)
A("L_fin:")
if STAMPS:
    A("s_waitcnt vmcnt(0)")
    stamp(6)
    A(f"s_cmp_lg_u32 s{S_WV}, 0")
    A("s_cbranch_scc1 L_end")
    A("s_waitcnt lgkmcnt(0)")
    if PROBE is not None:
        if PROBE.startswith("f"):
            A(f"s_mov_b32 s{S_T}, {int(PROBE[1:])}")
        else:
            pi, pj = int(PROBE[0]), int(PROBE[1])
            A(f"s_sub_u32 s{S_T}, s{S_ST+2*pi}, s{S_ST+2*pj}")
            A(f"s_lshl_b32 s{S_T}, s{S_T}, 1")
        A(f"s_add_u32 s{S_T}, s{S_T}, s{S_ST+12}")
        A("L_spin:")
        A(f"s_memrealtime s[{S_ST+14}:{S_ST+15}]")
        A("s_waitcnt lgkmcnt(0)")
        A(f"s_sub_u32 s{S_T+1}, s{S_ST+14}, s{S_T}")
        A(f"s_cmp_lt_i32 s{S_T+1}, 0")
        A("s_cbranch_scc1 L_spin")
    A(f"s_lshl_b32 s{S_T}, s2, 6")
    A(f"v_mov_b32 v{V_T+8}, 0")
    for i in range(7):
        A(f"v_mov_b32 v{V_T}, s{S_ST+2*i}")
        A(f"v_mov_b32 v{V_T+1}, s{S_ST+2*i+1}")
        A(f"buffer_store_dwordx2 {v(V_T,2)}, v{V_T+8}, s[{R_WS}:{R_WS+3}], s{S_T} offen offset:{8*i}")
        A("s_waitcnt vmcnt(0)")
A("L_end:")
A("s_endpgm")
out = wrap(A.text(), 256, 512, 64 * P, 240, 72, 240, notes="V1: 64x448 tile per workgroup")
open(sys.argv[1], "w").write(out)
```

```python
import sys
from asmgen import *
STAMPS = "--stamps" in sys.argv
PROBE = sys.argv[sys.argv.index("--probe")+1] if "--probe" in sys.argv else None
NST = 8
A = Asm()
P = 928
XB = 16384 * 896
S_X, S_G, S_B, S_W, S_O, S_WS = 4, 6, 8, 10, 12, 14
R_X, R_W, R_O, R_G, R_B, R_WS = 16, 20, 24, 28, 32, 36
S_WV, S_XO, S_WO, S_OO, S_P0, S_P1, S_T = 40, 41, 42, 43, 44, 45, 46
S_ST = 48
V_XOFF, V_GOFF, V_W0, V_W1, V_LW, V_LR, V_OO = 1, 2, 3, 4, 5, 6, 7
V_T = 8
ACC = 16
AF = 80
BF = 112
WR = 144
DEPTH = 6
XR, GR, BR, YT = 16, 44, 72, 100
def stamp(i):
    if STAMPS:
        if PROBE and PROBE.startswith("c") and i != 6:
            A(f"s_memtime s[{S_ST+2*i}:{S_ST+2*i+1}]")
        else:
            A(f"s_memrealtime s[{S_ST+2*i}:{S_ST+2*i+1}]")

A(f"s_cmp_ge_u32 s2, 256")
A(f"s_cbranch_scc1 L_end")
stamp(0)
A(f"s_load_dwordx8 s[4:11], s[0:1], 0")
A(f"s_load_dwordx2 s[12:13], s[0:1], 32")
A(f"s_load_dwordx2 s[14:15], s[0:1], 48")
A(f"v_lshrrev_b32 v{V_T}, 6, v0")
A(f"v_and_b32 v0, 63, v0")
A(f"v_readfirstlane_b32 s{S_WV}, v{V_T}")
A(f"v_lshrrev_b32 v{V_T}, 3, v0")
A(f"v_and_b32 v{V_T+1}, 7, v0")
A(f"v_lshlrev_b32 v{V_GOFF}, 4, v{V_T+1}")
A(f"v_mul_u32_u24 v{V_XOFF}, 896, v{V_T}")
A(f"v_add_u32 v{V_XOFF}, v{V_XOFF}, v{V_GOFF}")
A(f"v_mul_u32_u24 v{V_LW}, {P}, v{V_T}")
A(f"v_add_u32 v{V_LW}, v{V_LW}, v{V_GOFF}")
A(f"v_and_b32 v{V_T+2}, 15, v0")
A(f"v_lshrrev_b32 v{V_T+3}, 4, v0")
A(f"v_mul_u32_u24 v{V_W0}, {8*896}, v{V_T+3}")
A(f"v_lshl_add_u32 v{V_W0}, v{V_T+2}, 3, v{V_W0}")
A(f"v_add_u32 v{V_W1}, {4*896}, v{V_W0}")
A(f"v_mul_u32_u24 v{V_LR}, {P}, v{V_T+2}")
A(f"v_lshl_add_u32 v{V_LR}, v{V_T+3}, 4, v{V_LR}")
A(f"v_mul_u32_u24 v{V_OO}, {4*896}, v{V_T+3}")
A(f"v_lshl_add_u32 v{V_OO}, v{V_T+2}, 3, v{V_OO}")
A(f"s_mul_i32 s{S_T}, s{S_WV}, {8*P}")
A(f"v_add_u32 v{V_LW}, s{S_T}, v{V_LW}")
A(f"s_mul_i32 s{S_XO}, s2, {64*896}")
A(f"s_mul_i32 s{S_T}, s{S_WV}, {8*896}")
A(f"s_lshl_b32 s{S_WO}, s{S_WV}, 7")
A(f"s_add_u32 s{S_OO}, s{S_XO}, s{S_WO}")
A(f"s_add_u32 s{S_XO}, s{S_XO}, s{S_T}")
A(f"s_mov_b32 s{S_P0}, 0x05040100")
A(f"s_mov_b32 s{S_P1}, 0x07060302")
A("s_waitcnt lgkmcnt(0)")
srd(A, R_X, S_X, XB); srd(A, R_W, S_W, 448 * 896); srd(A, R_O, S_O, XB)
srd(A, R_G, S_G, 896); srd(A, R_B, S_B, 896)
if STAMPS:
    srd(A, R_WS, S_WS, 1 << 20)
for i in range(7):
    A(f"buffer_load_dwordx4 {v(XR+4*i,4)}, v{V_XOFF}, s[{R_X}:{R_X+3}], s{S_XO} offen offset:{128*i}")
for i in range(7):
    A(f"buffer_load_dwordx4 {v(GR+4*i,4)}, v{V_GOFF}, s[{R_G}:{R_G+3}], 0 offen offset:{128*i}")
for i in range(7):
    A(f"buffer_load_dwordx4 {v(BR+4*i,4)}, v{V_GOFF}, s[{R_B}:{R_B+3}], 0 offen offset:{128*i}")

def wloads(st):
    base = WR + 16 * (st % DEPTH)
    for j in range(8):
        A(f"buffer_load_dwordx2 {v(base+2*j,2)}, v{V_W0 if j < 4 else V_W1}, s[{R_W}:{R_W+3}], s{S_WO} offen offset:{896*(j&3)}")
    A(f"s_add_u32 s{S_WO}, s{S_WO}, {32*896}")

A(f"s_cmp_eq_u32 s{S_WV}, 7")
A(f"s_cbranch_scc1 L_w7a")
for st in range(5):
    wloads(st)
A("s_waitcnt vmcnt(54)")
A("s_branch L_ln")
A("L_w7a:")
A("s_waitcnt vmcnt(14)")
A("L_ln:")
stamp(1)
SUM, SQ = V_T, V_T + 1
A(f"v_mov_b32 v{SUM}, 0")
A(f"v_mov_b32 v{SQ}, 0")
A(f"v_mov_b32 v{V_T+2}, 0")
A(f"v_mov_b32 v{V_T+3}, 0")
for i in range(28):
    A(f"v_dot2c_f32_bf16 v{SUM + 2*(i&1)}, 0x3f803f80, v{XR+i}")
    A(f"v_dot2c_f32_bf16 v{SQ + 2*(i&1)}, v{XR+i}, v{XR+i}")
A("s_nop 2")
A(f"v_add_f32 v{SUM}, v{SUM}, v{SUM+2}")
A(f"v_add_f32 v{SQ}, v{SQ}, v{SQ+2}")
for dpp in ("quad_perm:[1,0,3,2]", "quad_perm:[2,3,0,1]", "row_half_mirror"):
    A("s_nop 1")
    A(f"v_add_f32_dpp v{SUM}, v{SUM}, v{SUM} {dpp} row_mask:0xf bank_mask:0xf")
    A(f"v_add_f32_dpp v{SQ}, v{SQ}, v{SQ} {dpp} row_mask:0xf bank_mask:0xf")
import struct
def f2u(f): return struct.unpack("<I", struct.pack("<f", f))[0]
MEAN, RSTD, NMR = V_T + 2, V_T + 3, V_T + 4
A(f"v_mul_f32 v{MEAN}, {f2u(1/448):#x}, v{SUM}")
A(f"v_mul_f32 v{SQ}, {f2u(1/448):#x}, v{SQ}")
A(f"v_fma_f32 v{SQ}, -v{MEAN}, v{MEAN}, v{SQ}")
A(f"v_max_f32 v{SQ}, 0, v{SQ}")
A(f"v_add_f32 v{SQ}, {f2u(1e-5):#x}, v{SQ}")
A(f"v_rsq_f32 v{RSTD}, v{SQ}")
A("s_nop 0")
A(f"v_mul_f32 v{NMR}, v{MEAN}, v{RSTD}")
A(f"v_sub_f32 v{NMR}, 0, v{NMR}")
A(f"s_cmp_eq_u32 s{S_WV}, 7")
A(f"s_cbranch_scc1 L_w7b")
A("s_waitcnt vmcnt(40)")
A("s_branch L_ln2")
A("L_w7b:")
A("s_waitcnt vmcnt(0)")
A("L_ln2:")
for i in range(7):
    for j in range(4):
        r = 4 * i + j
        t = YT + 6 * (j & 1)
        A(f"v_lshlrev_b32 v{t}, 16, v{XR+r}")
        A(f"v_and_b32 v{t+1}, 0xffff0000, v{XR+r}")
        A(f"v_lshlrev_b32 v{t+2}, 16, v{GR+r}")
        A(f"v_and_b32 v{t+3}, 0xffff0000, v{GR+r}")
        A(f"v_lshlrev_b32 v{t+4}, 16, v{BR+r}")
        A(f"v_and_b32 v{t+5}, 0xffff0000, v{BR+r}")
        A(f"v_fma_f32 v{t}, v{t}, v{RSTD}, v{NMR}")
        A(f"v_fma_f32 v{t+1}, v{t+1}, v{RSTD}, v{NMR}")
        A(f"v_fma_f32 v{t}, v{t}, v{t+2}, v{t+4}")
        A(f"v_fma_f32 v{t+1}, v{t+1}, v{t+3}, v{t+5}")
        A(f"v_cvt_pk_bf16_f32 v{XR+r}, v{t}, v{t+1}")
    A(f"ds_write_b128 v{V_LW}, {v(XR+4*i,4)} offset:{128*i}")
A("s_waitcnt lgkmcnt(0)")
A("s_barrier")
stamp(2)
A(f"s_cmp_eq_u32 s{S_WV}, 7")
A(f"s_cbranch_scc1 L_fin")
wloads(5)
def areads(st):
    base = AF + 16 * (st & 1)
    for mt in range(4):
        A(f"ds_read_b128 {v(base+4*mt,4)}, v{V_LR} offset:{mt*16*P + st*64}")
def perms(st):
    src = WR + 16 * (st % DEPTH); dst = BF + 16 * (st & 1)
    out = []
    for t in range(4):
        for p in range(4):
            lo = src + 2 * (2 * p) + (t >> 1); hi = src + 2 * (2 * p + 1) + (t >> 1)
            out.append(f"v_perm_b32 v{dst+4*t+p}, v{hi}, v{lo}, s{S_P1 if t & 1 else S_P0}")
    return out
issued = 6
areads(0)
A(f"s_waitcnt vmcnt({8*(issued-1)})")
for l in perms(0): A(l)
stamp(3)
for st in range(14):
    if issued < 14:
        wloads(issued); issued += 1
    pm = []
    if st + 1 < 14:
        areads(st + 1)
        A(f"s_waitcnt vmcnt({8*(issued-1-(st+1))}) lgkmcnt(4)")
        pm = perms(st + 1)
    else:
        A("s_waitcnt lgkmcnt(0)")
    k = 0
    for mt in range(4):
        for t in range(4):
            d = ACC + 16 * mt + 4 * t
            cin = "0" if st == 0 else v(d, 4)
            A(f"v_mfma_f32_16x16x32_bf16 {v(d,4)}, {v(AF+16*(st&1)+4*mt,4)}, {v(BF+16*(st&1)+4*t,4)}, {cin}")
            if k < len(pm):
                A(pm[k]); k += 1
stamp(4)
A("s_nop 7")
for mt in range(4):
    for r in range(4):
        t = AF + 2 * (4 * mt + r)
        d = ACC + 16 * mt + r
        A(f"v_cvt_pk_bf16_f32 v{t}, v{d}, v{d+4}")
        A(f"v_cvt_pk_bf16_f32 v{t+1}, v{d+8}, v{d+12}")
        A(f"buffer_store_dwordx2 {v(t,2)}, v{V_OO}, s[{R_O}:{R_O+3}], s{S_OO} offen offset:{896*r}")
    A(f"s_add_u32 s{S_OO}, s{S_OO}, {16*896}")
stamp(5)
A("L_fin:")
if STAMPS:
    A("s_waitcnt vmcnt(0)")
    stamp(6)
    A(f"s_cmp_lg_u32 s{S_WV}, 0")
    A("s_cbranch_scc1 L_end")
    A("s_waitcnt lgkmcnt(0)")
    if PROBE is not None:
        if PROBE.startswith("f"):
            A(f"s_mov_b32 s{S_T}, {int(PROBE[1:])}")
        elif PROBE.startswith("c"):
            pi, pj = int(PROBE[1]), int(PROBE[2])
            A(f"s_sub_u32 s{S_T}, s{S_ST+2*pi}, s{S_ST+2*pj}")
            A(f"s_lshr_b32 s{S_T}, s{S_T}, 3")
        else:
            pi, pj = int(PROBE[0]), int(PROBE[1])
            A(f"s_sub_u32 s{S_T}, s{S_ST+2*pi}, s{S_ST+2*pj}")
            A(f"s_lshl_b32 s{S_T}, s{S_T}, 1")
        A(f"s_add_u32 s{S_T}, s{S_T}, s{S_ST+12}")
        A("L_spin:")
        A(f"s_memrealtime s[{S_ST+14}:{S_ST+15}]")
        A("s_waitcnt lgkmcnt(0)")
        A(f"s_sub_u32 s{S_T+1}, s{S_ST+14}, s{S_T}")
        A(f"s_cmp_lt_i32 s{S_T+1}, 0")
        A("s_cbranch_scc1 L_spin")
    A(f"s_lshl_b32 s{S_T}, s2, 6")
    A(f"v_mov_b32 v{V_T+8}, 0")
    for i in range(7):
        A(f"v_mov_b32 v{V_T}, s{S_ST+2*i}")
        A(f"v_mov_b32 v{V_T+1}, s{S_ST+2*i+1}")
        A(f"buffer_store_dwordx2 {v(V_T,2)}, v{V_T+8}, s[{R_WS}:{R_WS+3}], s{S_T} offen offset:{8*i}")
        A("s_waitcnt vmcnt(0)")
A("L_end:")
A("s_endpgm")
out = wrap(A.text(), 256, 512, 64 * P, 240, 72, 240, notes="V1: 64x448 tile per workgroup")
open(sys.argv[1], "w").write(out)
```

```python
import sys, struct
from asmgen import *
def flag(n): return n in sys.argv
def opt(n, d, t=str): return t(sys.argv[sys.argv.index(n)+1]) if n in sys.argv else d
STAMPS = flag("--stamps")
PROBE = opt("--probe", None)
NOPF = flag("--nopf")
SIMPLE = flag("--simple")
def f2u(f): return struct.unpack("<I", struct.pack("<f", f))[0]
A = Asm()
P = 928; PO = 240
XB = 16384 * 896
YB = 64 * P
SLOT = 7168
RINGB = 3 * SLOT
LDS_TOTAL = YB + 4 * RINGB
S_X, S_G, S_B, S_W, S_O, S_WS = 4, 6, 8, 10, 12, 14
R_X, R_W, R_O, R_G, R_B, R_WS = 16, 20, 24, 28, 32, 36
S_WV, S_XO, S_WO, S_OO, S_ONE, S_T, S_RB, S_T2 = 40, 41, 42, 43, 44, 45, 46, 47
S_MSK, S_RX = 64, 65
S_ST = 48
NSTAMP = 8
def stamp(i):
    if STAMPS: A(f"s_memrealtime s[{S_ST+2*i}:{S_ST+2*i+1}]")

A("s_cmp_ge_u32 s2, 256")
A("s_cbranch_scc1 L_end")
stamp(0)
A("s_load_dwordx8 s[4:11], s[0:1], 0")
A("s_load_dwordx2 s[12:13], s[0:1], 32")
if STAMPS: A("s_load_dwordx2 s[14:15], s[0:1], 48")
A("v_lshrrev_b32 v1, 6, v0")
A("v_and_b32 v0, 63, v0")
A(f"v_readfirstlane_b32 s{S_WV}, v1")
A(f"s_mul_i32 s{S_XO}, s2, {64*896}")
A(f"s_cmp_ge_u32 s{S_WV}, 4")
A("s_cbranch_scc1 L_mfma")

V_XOFF, V_GOFF, V_LW, V_SW, V_SR, V_PF, V_DUM = 1, 2, 3, 4, 5, 6, 7
T = 8
X1, X2, G, Bv, GRAW = 24, 52, 80, 136, 192
A(f"v_lshrrev_b32 v{T}, 3, v0")
A(f"v_and_b32 v{T+1}, 7, v0")
A(f"v_lshlrev_b32 v{T+1}, 4, v{T+1}")
A(f"v_mul_u32_u24 v{V_XOFF}, 896, v{T}")
A(f"v_add_u32 v{V_XOFF}, v{V_XOFF}, v{T+1}")
A(f"v_lshlrev_b32 v{V_GOFF}, 4, v0")
A(f"s_mul_i32 s{S_T}, s{S_WV}, {8*896}")
A(f"s_add_u32 s{S_XO}, s{S_XO}, s{S_T}")
A(f"s_add_u32 s{S_T2}, s{S_XO}, {32*896}")
A(f"s_lshr_b32 s{S_T}, s2, 3")
A(f"s_lshl_b32 s{S_T}, s{S_T}, 2")
A(f"s_add_u32 s{S_T}, s{S_T}, s{S_WV}")
A(f"s_lshl_b32 s{S_WO}, s{S_T}, 12")
A(f"v_lshlrev_b32 v{V_PF}, 6, v0")
A("s_waitcnt lgkmcnt(0)")
srd(A, R_G, S_G, 896); srd(A, R_B, S_B, 896); srd(A, R_X, S_X, XB)
A(f"buffer_load_dwordx4 {v(GRAW,4)}, v{V_GOFF}, s[{R_G}:{R_G+3}], 0 offen")
A(f"buffer_load_dwordx4 {v(GRAW+4,4)}, v{V_GOFF}, s[{R_B}:{R_B+3}], 0 offen")
for i in range(7):
    A(f"buffer_load_dwordx4 {v(X1+4*i,4)}, v{V_XOFF}, s[{R_X}:{R_X+3}], s{S_XO} offen offset:{128*i}")
npf = 0
if not NOPF:
    srd(A, R_W, S_W, 448 * 896)
    A(f"buffer_load_dword v{V_DUM}, v{V_PF}, s[{R_W}:{R_W+3}], s{S_WO} offen")
    npf = 1
for i in range(7):
    A(f"buffer_load_dwordx4 {v(X2+4*i,4)}, v{V_XOFF}, s[{R_X}:{R_X+3}], s{S_T2} offen offset:{128*i}")
if STAMPS: srd(A, R_WS, S_WS, 1 << 22)
A(f"v_mul_u32_u24 v{V_LW}, {P}, v{T}")
A(f"v_add_u32 v{V_LW}, v{V_LW}, v{T+1}")
A(f"s_mul_i32 s{S_T}, s{S_WV}, {8*P}")
A(f"v_add_u32 v{V_LW}, s{S_T}, v{V_LW}")
A(f"s_mov_b32 s{S_MSK}, 0xffff0000")
A("s_setprio 2")
A(f"v_lshlrev_b32 v{V_SW}, 5, v0")
A(f"v_add_u32 v{V_SW}, s{S_T}, v{V_SW}")
A(f"v_lshlrev_b32 v{V_SR}, 1, v{T+1}")
A(f"v_add_u32 v{V_SR}, s{S_T}, v{V_SR}")
A(f"s_mov_b32 s{S_ONE}, 0x3f803f80")
A(f"s_waitcnt vmcnt({14+npf})")
U = 200
for j in range(8):
    A(f"v_lshlrev_b32 v{U+2*j}, 16, v{GRAW+j}")
    A(f"v_and_b32 v{U+2*j+1}, s{S_MSK}, v{GRAW+j}")
A(f"ds_write_b128 v{V_SW}, {v(U,4)}")
A(f"ds_write_b128 v{V_SW}, {v(U+4,4)} offset:16")
A(f"ds_write_b128 v{V_SW}, {v(U+8,4)} offset:2048")
A(f"ds_write_b128 v{V_SW}, {v(U+12,4)} offset:2064")
A("s_waitcnt lgkmcnt(0)")
for i in range(7):
    A(f"ds_read_b128 {v(G+8*i,4)}, v{V_SR} offset:{256*i}")
    A(f"ds_read_b128 {v(G+8*i+4,4)}, v{V_SR} offset:{256*i+16}")
for i in range(7):
    A(f"ds_read_b128 {v(Bv+8*i,4)}, v{V_SR} offset:{2048+256*i}")
    A(f"ds_read_b128 {v(Bv+8*i+4,4)}, v{V_SR} offset:{2048+256*i+16}")
stamp(1)

def layernorm(X, later, yoff, st):
    SUM, SQ = T, T + 1
    for r in range(4): A(f"v_mov_b32 v{T+r}, 0")
    for i in range(7):
        A(f"s_waitcnt vmcnt({later + 6 - i})")
        for j in range(4):
            r = X + 4 * i + j
            A(f"v_dot2c_f32_bf16 v{SUM + 2*(j&1)}, s{S_ONE}, v{r}")
            A(f"v_dot2c_f32_bf16 v{SQ + 2*(j&1)}, v{r}, v{r}")
    stamp(st)
    A("s_nop 2")
    A(f"v_add_f32 v{SUM}, v{SUM}, v{SUM+2}")
    A(f"v_add_f32 v{SQ}, v{SQ}, v{SQ+2}")
    for dpp in ("quad_perm:[1,0,3,2]", "quad_perm:[2,3,0,1]", "row_half_mirror"):
        A("s_nop 1")
        A(f"v_add_f32_dpp v{SUM}, v{SUM}, v{SUM} {dpp} row_mask:0xf bank_mask:0xf")
        A(f"v_add_f32_dpp v{SQ}, v{SQ}, v{SQ} {dpp} row_mask:0xf bank_mask:0xf")
    MEAN, RS = T + 2, T + 4
    A(f"v_mul_f32 v{MEAN}, {f2u(1/448):#x}, v{SUM}")
    A(f"v_mul_f32 v{SQ}, {f2u(1/448):#x}, v{SQ}")
    A(f"v_fma_f32 v{SQ}, -v{MEAN}, v{MEAN}, v{SQ}")
    A(f"v_max_f32 v{SQ}, 0, v{SQ}")
    A(f"v_add_f32 v{SQ}, {f2u(1e-5):#x}, v{SQ}")
    A(f"v_rsq_f32 v{RS}, v{SQ}")
    A("s_waitcnt lgkmcnt(0)")
    A(f"v_mul_f32 v{RS+1}, -v{MEAN}, v{RS}")
    for i in range(7):
        t = T + 6 if (i & 1) == 0 else U
        for j in range(4):
            A(f"v_lshlrev_b32 v{t+2*j}, 16, v{X+4*i+j}")
            A(f"v_and_b32 v{t+2*j+1}, s{S_MSK}, v{X+4*i+j}")
        for j in range(4):
            A(f"v_pk_fma_f32 {v(t+2*j,2)}, {v(t+2*j,2)}, {v(RS,2)}, {v(RS,2)} op_sel:[0,0,1] op_sel_hi:[1,0,1]")
        for j in range(4):
            A(f"v_pk_fma_f32 {v(t+2*j,2)}, {v(t+2*j,2)}, {v(G+8*i+2*j,2)}, {v(Bv+8*i+2*j,2)}")
        for j in range(4):
            A(f"v_cvt_pk_bf16_f32 v{X+4*i+j}, v{t+2*j}, v{t+2*j+1}")
        A(f"ds_write_b128 v{V_LW}, {v(X+4*i,4)} offset:{yoff + 128*i}")
    A("s_waitcnt lgkmcnt(0)")
layernorm(X1, 7 + npf, 0, 2)
stamp(3)
A("s_barrier")
layernorm(X2, 0, 32 * P, 4)
stamp(5)
A("s_barrier")
A("s_branch L_fin")

A("L_mfma:")
VW = 1
V_TR, V_AR, V_OW, V_OR, V_OG = 8, 9, 10, 11, 12
V_TRX = 16
T = 13
AF = 16
ACC = 32
RB0 = 144
A(f"s_sub_u32 s{S_WV}, s{S_WV}, 4")
for i in range(7):
    A(f"v_add_u32 v{T}, {64*i}, v0")
    A(f"v_mul_u32_u24 v{T+1}, 4682, v{T}")
    A(f"v_lshrrev_b32 v{T+1}, 16, v{T+1}")
    A(f"v_mul_u32_u24 v{T+2}, 14, v{T+1}")
    A(f"v_sub_u32 v{T+2}, v{T}, v{T+2}")
    A(f"v_and_b32 v{T}, 12, v{T+1}")
    A(f"v_lshlrev_b32 v{T}, 1, v{T}")
    A(f"v_and_or_b32 v{T}, v{T+1}, 3, v{T}")
    A(f"v_lshrrev_b32 v{T+1}, 4, v{T+1}")
    A(f"v_lshl_add_u32 v{T}, v{T+1}, 2, v{T}")
    A(f"v_mul_u32_u24 v{VW+i}, 896, v{T}")
    A(f"v_lshl_add_u32 v{VW+i}, v{T+2}, 4, v{VW+i}")
    if i & 3: A(f"v_subrev_u32 v{VW+i}, {1024*(i&3)}, v{VW+i}")
A("s_waitcnt lgkmcnt(0)")
srd(A, R_W, S_W, 448 * 896)
A(f"s_mul_i32 s{S_WO}, s{S_WV}, 224")
A(f"s_mul_i32 s{S_RB}, s{S_WV}, {RINGB}")
A(f"s_add_u32 s{S_RB}, s{S_RB}, {YB}")
A(f"s_mul_i32 s{S_RX}, s{S_WV}, {SLOT}")
A(f"s_add_u32 s{S_RX}, s{S_RX}, {32*P}")

vmq = []
lgq = []
def vm_wait(tag):
    idx = max(i for i, t in enumerate(vmq) if t == tag)
    n = len(vmq) - 1 - idx
    del vmq[:idx + 1]
    return f"s_waitcnt vmcnt({min(n,63)})"
def lg_wait(tag):
    if tag not in lgq: return None
    idx = max(i for i, t in enumerate(lgq) if t == tag)
    n = len(lgq) - 1 - idx
    del lgq[:idx + 1]
    return f"s_waitcnt lgkmcnt({min(n,15)})"
def slot(k): return SLOT * (k if k < 3 else (k - 1) % 3)
def dma(k):
    out = []
    for i in range(7):
        if (i & 3) == 0:
            if k == 3: out.append(f"s_add_u32 m0, s{S_RX}, {1024*i}")
            else: out.append(f"s_add_u32 m0, s{S_RB}, {slot(k) + 1024*i}")
            out.append("s_nop 0")
        out.append(("vm", f"W{k}", f"buffer_load_dwordx4 v{VW+i}, s[{R_W}:{R_W+3}], s{S_WO} offen offset:{1024*(i&3)} lds"))
    out.append(f"s_add_u32 s{S_WO}, s{S_WO}, {32*896}")
    return out
def trread(k, dst):
    out = [("vmwait", f"W{k}")]
    for t in range(7):
        for hf in range(2):
            if k == 3: out.append(("lg", f"B{k}@{dst}", f"ds_read_b64_tr_b16 {v(dst+4*t+2*hf,2)}, v{V_TRX} offset:{32*t + 3584*hf}"))
            else: out.append(("lg", f"B{k}@{dst}", f"ds_read_b64_tr_b16 {v(dst+4*t+2*hf,2)}, v{V_TR} offset:{slot(k) + 32*t + 3584*hf}"))
    return out
landed = set()
def emit(item):
    if isinstance(item, str): A(item); return
    if item[0] == "vm": vmq.append(item[1]); A(item[2])
    elif item[0] == "lg": lgq.append(item[1]); A(item[2])
    elif item[0] == "vmwait":
        if item[1] in vmq: A(vm_wait(item[1]))
    elif item[0] == "lgwait":
        w = lg_wait(item[1])
        if w: A(w)
for k in range(4):
    for it in dma(k): emit(it)
srd(A, R_O, S_O, XB)
if STAMPS: srd(A, R_WS, S_WS, 1 << 22)
A(f"v_and_b32 v{T}, 15, v0")
A(f"v_lshrrev_b32 v{T+1}, 4, v0")
A(f"v_lshrrev_b32 v{T+2}, 2, v0")
A(f"v_mul_u32_u24 v{V_TR}, 224, v{T+2}")
A(f"v_and_b32 v{T+2}, 3, v0")
A(f"v_lshl_add_u32 v{V_TR}, v{T+2}, 3, v{V_TR}")
A(f"v_add_u32 v{V_TRX}, s{S_RX}, v{V_TR}")
A(f"v_add_u32 v{V_TR}, s{S_RB}, v{V_TR}")
A(f"v_mul_u32_u24 v{V_AR}, {P}, v{T}")
A(f"v_lshl_add_u32 v{V_AR}, v{T+1}, 4, v{V_AR}")
A(f"v_mul_u32_u24 v{V_OW}, {PO}, v{T}")
A(f"v_lshl_add_u32 v{V_OW}, v{T+1}, 3, v{V_OW}")
A(f"v_add_u32 v{V_OW}, s{S_RB}, v{V_OW}")
A(f"v_mul_u32_u24 v{V_OR}, {PO}, v{T+1}")
A(f"v_lshl_add_u32 v{V_OR}, v{T}, 4, v{V_OR}")
A(f"v_add_u32 v{V_OR}, s{S_RB}, v{V_OR}")
A(f"v_mul_u32_u24 v{V_OG}, 896, v{T+1}")
A(f"v_lshl_add_u32 v{V_OG}, v{T}, 4, v{V_OG}")
A(f"v_add_u32 v{T+2}, 2, v{T}")
A(f"v_lshrrev_b32 v{T+2}, 4, v{T+2}")
A(f"v_lshl_add_u32 v{V_OG}, v{T+2}, 31, v{V_OG}")
A(f"s_mul_i32 s{S_T}, s{S_WV}, 224")
A(f"s_add_u32 s{S_OO}, s{S_XO}, s{S_T}")
R = [RB0 + 28 * i for i in range(4)]
for s_ in range(4):
    for it in trread(s_, R[s_]): emit(it)
    emit(("lgwait", f"B{s_}@{R[s_]}"))
    if s_ < 3:
        for it in dma(s_ + 4): emit(it)
stamp(1)

def acc(mt, t): return ACC + 28 * mt + 4 * t
T0, T1 = acc(2, 0), acc(3, 0)
units = []
fills = {}
BAR = "BAR"
def nslots(): return 7 * len([u for u in units if u != BAR])
def U_(mt, k, b): units.append([mt, k, b])
def put(g, items): fills.setdefault(g, []).extend(items)
dma_next = [0]; sched = {}
LAG = opt("--lag", 4, int); DSP = opt("--dsp", 4, int)
def refill(k, dst, knext, g0=None):
    g = nslots() if g0 is None else g0
    f = trread(k, dst)
    if k in sched: sched[k].append(g)
    put(g, f[:2])
    for i, it in enumerate(f[2:]): put(g + 1 + i, [it])
    if knext is not None and knext < 14:
        g = max(g + 14 + LAG, dma_next[0])
        put(g, [("lgwait", f"B{k}@{dst}")])
        cur = []
        for it in dma(knext):
            cur.append(it)
            if not isinstance(it, str):
                put(g, cur); cur = []; g += DSP
        put(g - DSP, cur)
        dma_next[0] = g
        sched[knext] = [g - DSP]
if not SIMPLE:
    units.append(BAR)
    U_(0, 0, R[0]); U_(1, 0, R[0])
    refill(4, T0, None); U_(0, 1, R[1]); U_(1, 1, R[1])
    refill(5, T1, None); U_(0, 2, R[2]); U_(1, 2, R[2]); U_(0, 3, R[3]); U_(1, 3, R[3])
    U_(0, 4, T0); U_(1, 4, T0)
    g = nslots()
    f = trread(6, T0)
    for i in range(0, len(f), 2): put(g + i // 2, f[i:i+2])
    U_(0, 5, T1); U_(1, 5, T1); U_(0, 6, T0); U_(1, 6, T0)
    units.append(BAR)
    U_(2, 0, R[0]); U_(3, 0, R[0])
    refill(4, R[0], 7); U_(2, 1, R[1]); U_(3, 1, R[1])
    refill(5, R[1], 8); U_(2, 2, R[2]); U_(3, 2, R[2])
    refill(6, R[2], 9); U_(2, 3, R[3]); U_(3, 3, R[3])
    regfree = {7: nslots()}
    U_(2, 4, R[0]); U_(3, 4, R[0]); regfree[8] = nslots()
    U_(2, 5, R[1]); U_(3, 5, R[1]); regfree[9] = nslots()
    U_(2, 6, R[2]); U_(3, 6, R[2]); regfree[10] = nslots()
    src = {7: R[3], 8: R[0], 9: R[1], 10: R[2], 11: R[3], 12: R[0], 13: R[1]}
    need = {}
    for k in range(7, 12):
        need[k] = nslots()
        for mt in range(4): U_(mt, k, src[k])
        regfree[k + 4] = nslots()
    need[12] = nslots(); need[13] = nslots() + 7
    LAT = opt("--lat", 32, int)
    for k in range(7, 14):
        g = min(max(regfree[k], sched[k][0] + LAT), need[k] - 18)
        assert g >= regfree[k] and g > sched[k][0]
        refill(k, src[k], k + 3, g)
else:
    units.append(BAR); units.append(BAR)
    src = {k: R[k % 4] for k in range(14)}
    for k in range(12):
        kk = k + 3
        if k >= 1 and kk < 14: refill(kk, src[kk], kk + 3)
        for mt in range(4): U_(mt, k, src[k])
def epi_a(mt):
    out = []
    for t in range(7):
        d = acc(mt, t)
        out.append(f"v_cvt_pk_bf16_f32 v{d}, v{d}, v{d+1}")
        out.append(f"v_cvt_pk_bf16_f32 v{d+1}, v{d+2}, v{d+3}")
        out.append(("lg", f"OW{mt}", f"ds_write_b64 v{V_OW}, {v(d,2)} offset:{mt*16*PO + 32*t}"))
    return out
def epi_b(mt):
    dst = R[2 + (mt & 1)] if not SIMPLE else R[2 + (mt & 1)]
    out = [("lgwait", f"OW{mt}")]
    for i in range(4):
        out.append(("lg", f"OR{mt}", f"ds_read_b128 {v(dst+4*i,4)}, v{V_OR} offset:{(mt*16+4*i)*PO}"))
    return out
def epi_c(mt):
    dst = R[2 + (mt & 1)]
    out = [("lgwait", f"OR{mt}")]
    for i in range(4):
        out.append(("vm", f"O{mt}", f"buffer_store_dwordx4 {v(dst+4*i,4)}, v{V_OG}, s[{R_O}:{R_O+3}], s{S_OO} offen"))
        out.append(f"s_add_u32 s{S_OO}, s{S_OO}, {4*896}")
    return out
print("k: last DMA slot, first read slot:", sched, file=sys.stderr)
assert src[12] == R[0] and src[13] == R[1]
def spread(g, items, per):
    for i in range(0, len(items), per): put(g + i // per, items[i:i+per])
for mt in range(4):
    g = nslots()
    if mt >= 2: spread(g, epi_c(mt - 2), 3)
    if mt >= 1:
        spread(g + 1, epi_a(mt - 1), 3)
        spread(g + 11, epi_b(mt - 1), 2)
    U_(mt, 12, src[12]); U_(mt, 13, src[13])

real = [u for u in units if u != BAR]
def aread(idx):
    mt, k = real[idx][0], real[idx][1]
    return ("lg", f"A{idx}", f"ds_read_b128 {v(AF+4*(idx&3),4)}, v{V_AR} offset:{mt*16*P + 64*k}")
first = set()
started = set()
idx = 0
nb = 0
pos = 0
PFD = 2
while pos < len(units):
    if units[pos] == BAR:
        A("s_barrier"); nb += 1
        stamp(1 + nb)
        pos += 1
        continue
    end = pos
    while end < len(units) and units[end] != BAR: end += 1
    n = end - pos
    for d in range(min(PFD, n)): emit(aread(idx + d))
    for j in range(n):
        mt, k, b = units[pos + j]
        emit(("lgwait", f"B{k}@{b}"))
        emit(("lgwait", f"A{idx+j}"))
        for t in range(7):
            d = acc(mt, t)
            cin = v(d, 4) if mt in started else "0"
            A(f"v_mfma_f32_16x16x32_bf16 {v(d,4)}, {v(b+4*t,4)}, {v(AF+4*((idx+j)&3),4)}, {cin}")
            if t == 0 and j + PFD < n: emit(aread(idx + j + PFD))
            for it in fills.pop(7 * (idx + j) + t, []): emit(it)
        started.add(mt)
    idx += n
    pos = end
assert not fills, fills
stamp(4)
for it in epi_c(2): emit(it)
A("s_nop 3")
for it in epi_a(3) + epi_b(3) + epi_c(3): emit(it)
stamp(5)
A(f"s_add_u32 s{S_WV}, s{S_WV}, 4")
A("L_fin:")
if STAMPS:
    A("s_waitcnt vmcnt(0)")
    stamp(6)
    A("s_waitcnt lgkmcnt(0)")
    if PROBE is not None:
        A(f"s_cmp_lg_u32 s{S_WV}, {PROBE[0]}")
        A("s_cbranch_scc1 L_nospin")
        if PROBE[1] == "f":
            A(f"s_mov_b32 s{S_T}, {int(PROBE[2:])}")
            A(f"s_add_u32 s{S_T}, s{S_T}, s{S_ST}")
        else:
            pi, pj = int(PROBE[1]), int(PROBE[2])
            A(f"s_sub_u32 s{S_T}, s{S_ST+2*pi}, s{S_ST+2*pj}")
            A(f"s_lshl_b32 s{S_T}, s{S_T}, 1")
            A(f"s_add_u32 s{S_T}, s{S_T}, 1500")
            A(f"s_add_u32 s{S_T}, s{S_T}, s{S_ST}")
        A("L_spin:")
        A(f"s_memrealtime s[{S_ST+14}:{S_ST+15}]")
        A("s_waitcnt lgkmcnt(0)")
        A(f"s_sub_u32 s{S_T2}, s{S_ST+14}, s{S_T}")
        A(f"s_cmp_lt_i32 s{S_T2}, 0")
        A("s_cbranch_scc1 L_spin")
        A("L_nospin:")
    A(f"s_lshl_b32 s{S_T}, s2, 10")
    A(f"s_lshl_b32 s{S_T2}, s{S_WV}, 6")
    A(f"s_add_u32 s{S_T}, s{S_T}, s{S_T2}")
    A("v_mov_b32 v30, 0")
    A("v_cmp_eq_u32 vcc, 0, v0")
    A("s_and_saveexec_b64 s[4:5], vcc")
    for i in range(8):
        A(f"v_mov_b32 v20, s{S_ST+2*i}")
        A(f"v_mov_b32 v21, s{S_ST+2*i+1}")
        A(f"buffer_store_dwordx2 v[20:21], v30, s[{R_WS}:{R_WS+3}], s{S_T} offen offset:{8*i}")
        A("s_waitcnt vmcnt(0)")
A("L_end:")
A("s_endpgm")
out = wrap(A.text(), 256, 512, LDS_TOTAL, 256, 72, 256, notes="V2: 64x448 tile per workgroup, producer/consumer waves")
open(sys.argv[1], "w").write(out)
```

```python
import sys, struct
from asmgen import *
def flag(n): return n in sys.argv
def opt(n, d, t=str): return t(sys.argv[sys.argv.index(n)+1]) if n in sys.argv else d
STAMPS = flag("--stamps"); PROBE = opt("--probe", None)
NOPF = flag("--nopf"); TLB = flag("--tlb")
CYC = flag("--cyc"); FINE = flag("--fine")
LAG = opt("--lag", 4, int); DSP = opt("--dsp", 3, int); LAT = opt("--lat", 32, int)
TAIL = opt("--tail", 3, int)
STFL = opt("--st", "", str)
XFL = opt("--xfl", "", str)
def f2u(f): return struct.unpack("<I", struct.pack("<f", f))[0]
A = Asm()
P = 928; PO = 240
XB = 16384 * 896
YB = 64 * P
SLOT = 7168
RINGB = 3 * SLOT
LDS_TOTAL = YB + 4 * RINGB
S_X, S_G, S_B, S_W, S_O, S_WS = 4, 6, 8, 10, 12, 14
R_X, R_W, R_O, R_G, R_B, R_WS = 16, 20, 24, 28, 32, 36
S_WV, S_XO, S_WO, S_OO, S_ONE, S_T, S_RB, S_T2, S_MSK = 40, 41, 42, 43, 44, 45, 46, 47, 48
S_ST = 66; NSTAMP = 16
def stamp(i, fine=False):
    if STAMPS and (fine == FINE or i == 0):
        A(f"{'s_memtime' if CYC else 's_memrealtime'} s[{S_ST+2*i}:{S_ST+2*i+1}]")

A("s_cmp_ge_u32 s2, 256")
A("s_cbranch_scc1 L_end")
stamp(0)
A("s_load_dwordx8 s[4:11], s[0:1], 0")
A("s_load_dwordx2 s[12:13], s[0:1], 32")
if STAMPS: A("s_load_dwordx2 s[14:15], s[0:1], 48")
A("v_lshrrev_b32 v1, 6, v0")
A("v_and_b32 v0, 63, v0")
A(f"v_readfirstlane_b32 s{S_WV}, v1")
A(f"s_mul_i32 s{S_XO}, s2, {64*896}")
A(f"s_cmp_ge_u32 s{S_WV}, 4")
A("s_cbranch_scc1 L_mfma")

V_XOFF, V_GOFF, V_LW, V_SW, V_SR, V_PF, V_DUM, V_DUM2 = 1, 2, 3, 4, 5, 6, 7, 14
T = 8
X1, X2, G, Bv, F = 16, 44, 72, 128, 184
GRAW = 240
A("s_setprio 2")
A(f"v_lshrrev_b32 v{T}, 3, v0")
A(f"v_and_b32 v{T+1}, 7, v0")
A(f"v_lshlrev_b32 v{T+1}, 4, v{T+1}")
A(f"v_mul_u32_u24 v{V_XOFF}, 896, v{T}")
A(f"v_add_u32 v{V_XOFF}, v{V_XOFF}, v{T+1}")
A(f"v_lshlrev_b32 v{V_GOFF}, 4, v0")
A(f"s_mul_i32 s{S_T}, s{S_WV}, {8*896}")
A(f"s_add_u32 s{S_XO}, s{S_XO}, s{S_T}")
A(f"s_add_u32 s{S_T2}, s{S_XO}, {32*896}")
A(f"s_lshr_b32 s{S_T}, s2, 3")
A(f"s_lshl_b32 s{S_T}, s{S_T}, 2")
A(f"s_add_u32 s{S_T}, s{S_T}, s{S_WV}")
A(f"s_lshl_b32 s{S_WO}, s{S_T}, 12")
A(f"s_mov_b32 s{R_G+2}, 896"); A(f"s_mov_b32 s{R_G+3}, 0x20000")
A(f"s_mov_b32 s{R_B+2}, 896"); A(f"s_mov_b32 s{R_B+3}, 0x20000")
A(f"s_mov_b32 s{R_X+2}, {XB}"); A(f"s_mov_b32 s{R_X+3}, 0x20000")
A(f"s_mov_b32 s{R_W+2}, {448*896}"); A(f"s_mov_b32 s{R_W+3}, 0x20000")
A("s_waitcnt lgkmcnt(0)")
def srd2(d, b):
    A(f"s_mov_b32 s{d}, s{b}"); A(f"s_and_b32 s{d+1}, s{b+1}, 0xffff")
if not NOPF:
    srd2(R_W, S_W)
    for i in range(4):
        A(f"buffer_load_dwordx4 {v(F+4*i,4)}, v{V_GOFF}, s[{R_W}:{R_W+3}], s{S_WO} offen offset:{1024*i}")
srd2(R_G, S_G); srd2(R_B, S_B)
A(f"buffer_load_dwordx4 {v(GRAW,4)}, v{V_GOFF}, s[{R_G}:{R_G+3}], 0 offen")
A(f"buffer_load_dwordx4 {v(GRAW+4,4)}, v{V_GOFF}, s[{R_B}:{R_B+3}], 0 offen")
srd2(R_X, S_X)
for i in range(7):
    A(f"buffer_load_dwordx4 {v(X1+4*i,4)}, v{V_XOFF}, s[{R_X}:{R_X+3}], s{S_XO} offen offset:{128*i} {XFL}")
npf = 0
for i in range(7):
    A(f"buffer_load_dwordx4 {v(X2+4*i,4)}, v{V_XOFF}, s[{R_X}:{R_X+3}], s{S_T2} offen offset:{128*i} {XFL}")
ntl = 0
if TLB:
    srd(A, R_O, S_O, XB)
    A(f"buffer_load_dword v{V_DUM2}, off, s[{R_O}:{R_O+3}], s{S_XO}"); ntl = 1
if STAMPS: srd(A, R_WS, S_WS, 1 << 22)
A(f"v_mul_u32_u24 v{V_LW}, {P}, v{T}")
A(f"v_add_u32 v{V_LW}, v{V_LW}, v{T+1}")
A(f"s_mul_i32 s{S_T}, s{S_WV}, {8*P}")
A(f"v_add_u32 v{V_LW}, s{S_T}, v{V_LW}")
A(f"s_add_u32 s{S_T}, s{S_T}, {32*P}")
A(f"v_lshlrev_b32 v{V_SW}, 5, v0")
A(f"v_add_u32 v{V_SW}, s{S_T}, v{V_SW}")
A(f"v_lshlrev_b32 v{V_SR}, 1, v{T+1}")
A(f"v_add_u32 v{V_SR}, s{S_T}, v{V_SR}")
A(f"s_mov_b32 s{S_ONE}, 0x3f803f80")
A(f"s_mov_b32 s{S_MSK}, 0xffff0000")

PLAIN = not flag("--noplain")
def stats(X, later, plain):
    SUM, SQ = T, T + 1
    for r in range(4): A(f"v_mov_b32 v{T+r}, 0")
    for i in range(7):
        A(f"s_waitcnt vmcnt({later + 6 - i})")
        if not plain:
            for j in range(4):
                r = X + 4 * i + j
                A(f"v_dot2c_f32_bf16 v{SUM + 2*(j&1)}, s{S_ONE}, v{r}")
                A(f"v_dot2c_f32_bf16 v{SQ + 2*(j&1)}, v{r}, v{r}")
        if i < 6 or plain:
            for j in range(4):
                A(f"v_lshlrev_b32 v{F+8*i+2*j}, 16, v{X+4*i+j}")
                A(f"v_and_b32 v{F+8*i+2*j+1}, s{S_MSK}, v{X+4*i+j}")
        if plain:
            for j in range(8):
                A(f"v_add_f32 v{SUM + 2*(j&1)}, v{F+8*i+j}, v{SUM + 2*(j&1)}")
                A(f"v_fmac_f32 v{SQ + 2*(j&1)}, v{F+8*i+j}, v{F+8*i+j}")
    up = []
    for j in range(4):
        up.append(f"v_lshlrev_b32 v{F+48+2*j}, 16, v{X+24+j}")
        up.append(f"v_and_b32 v{F+48+2*j+1}, s{S_MSK}, v{X+24+j}")
    if plain: up = ["s_nop 0"] * 7 + [""]
    else:
        A(up[0]); A(up[1]); A(up[2])
    A(f"v_add_f32 v{SUM}, v{SUM}, v{SUM+2}")
    A(f"v_add_f32 v{SQ}, v{SQ}, v{SQ+2}")
    for n, dpp in enumerate(("quad_perm:[1,0,3,2]", "quad_perm:[2,3,0,1]", "row_half_mirror")):
        A(up[3 + n])
        A(f"v_add_f32_dpp v{SUM}, v{SUM}, v{SUM} {dpp} row_mask:0xf bank_mask:0xf")
        A(f"v_add_f32_dpp v{SQ}, v{SQ}, v{SQ} {dpp} row_mask:0xf bank_mask:0xf")
    MEAN, RS = T + 2, T + 4
    A(f"v_mul_f32 v{MEAN}, {f2u(1/448):#x}, v{SUM}")
    A(f"v_mul_f32 v{SQ}, {f2u(1/448):#x}, v{SQ}")
    A(f"v_fma_f32 v{SQ}, -v{MEAN}, v{MEAN}, v{SQ}")
    A(f"v_max_f32 v{SQ}, 0, v{SQ}")
    A(f"v_add_f32 v{SQ}, {f2u(1e-5):#x}, v{SQ}")
    A(f"v_rsq_f32 v{RS}, v{SQ}")
    A(up[6]); A(up[7])
    A(f"v_mul_f32 v{RS+1}, -v{MEAN}, v{RS}")
def normalise(X, yoff, plain):
    RS = T + 4
    def s1(i): return [f"v_pk_fma_f32 {v(F+8*i+2*j,2)}, {v(F+8*i+2*j,2)}, {v(RS,2)}, {v(RS,2)} op_sel:[0,0,1] op_sel_hi:[1,0,1]" for j in range(4)]
    def s2(i): return [f"v_pk_fma_f32 {v(F+8*i+2*j,2)}, {v(F+8*i+2*j,2)}, {v(G+8*i+2*j,2)}, {v(Bv+8*i+2*j,2)}" for j in range(4)]
    if plain:
        def s1(i): return [f"v_fma_f32 v{F+8*i+j}, v{F+8*i+j}, v{RS}, v{RS+1}" for j in range(8)]
        def s2(i): return [f"v_fma_f32 v{F+8*i+j}, v{F+8*i+j}, v{G+8*i+j}, v{Bv+8*i+j}" for j in range(8)]
    def s3(i): return [f"v_cvt_pk_bf16_f32 v{X+4*i+j}, v{F+8*i+2*j}, v{F+8*i+2*j+1}" for j in range(4)] + \
                      [f"ds_write_b128 v{V_LW}, {v(X+4*i,4)} offset:{yoff + 128*i}"]
    for step in range(9):
        if step < 7:
            for l in s1(step): A(l)
        if 0 <= step - 1 < 7:
            for l in s2(step - 1): A(l)
        if 0 <= step - 2 < 7:
            for l in s3(step - 2): A(l)
    A("s_waitcnt lgkmcnt(0)")
A(f"s_waitcnt vmcnt({7 + npf + 7 + ntl})")
U = X2
U = Bv + 40
for j in range(8):
    A(f"v_lshlrev_b32 v{U+2*j}, 16, v{GRAW+j}")
    A(f"v_and_b32 v{U+2*j+1}, s{S_MSK}, v{GRAW+j}")
A(f"ds_write_b128 v{V_SW}, {v(U,4)}")
A(f"ds_write_b128 v{V_SW}, {v(U+4,4)} offset:16")
A(f"ds_write_b128 v{V_SW}, {v(U+8,4)} offset:2048")
A(f"ds_write_b128 v{V_SW}, {v(U+12,4)} offset:2064")
A("s_waitcnt lgkmcnt(0)")
for i in range(7):
    A(f"ds_read_b128 {v(G+8*i,4)}, v{V_SR} offset:{256*i}")
    A(f"ds_read_b128 {v(G+8*i+4,4)}, v{V_SR} offset:{256*i+16}")
    A(f"ds_read_b128 {v(Bv+8*i,4)}, v{V_SR} offset:{2048+256*i}")
    A(f"ds_read_b128 {v(Bv+8*i+4,4)}, v{V_SR} offset:{2048+256*i+16}")
stamp(1)
stats(X1, npf + 7 + ntl, False)
A("s_waitcnt lgkmcnt(0)")
stamp(2)
normalise(X1, 0, False)
stamp(3)
A("s_barrier")
stats(X2, ntl, PLAIN)
stamp(4)
normalise(X2, 32 * P, PLAIN)
stamp(5)
A("s_barrier")
A("s_branch L_fin")

A("L_mfma:")
VW = 1
V_TR, V_AR, V_OW, V_OR, V_OG = 8, 9, 10, 11, 12
T = 13
AF = 16
ACC = 32
RB0 = 144
A(f"s_sub_u32 s{S_WV}, s{S_WV}, 4")
A(f"s_mov_b32 s{R_W+2}, {448*896}"); A(f"s_mov_b32 s{R_W+3}, 0x20000")
A(f"s_mul_i32 s{S_WO}, s{S_WV}, 224")
A(f"s_add_u32 s{S_OO}, s{S_XO}, s{S_WO}")
A(f"s_mul_i32 s{S_RB}, s{S_WV}, {RINGB}")
A(f"s_add_u32 s{S_RB}, s{S_RB}, {YB}")
for i in range(7):
    if i: A(f"v_add_u32 v{T}, {64*i}, v0")
    p = T if i else 0
    A(f"v_mul_u32_u24 v{T+1}, 4682, v{p}")
    A(f"v_lshrrev_b32 v{T+1}, 16, v{T+1}")
    A(f"v_mul_u32_u24 v{T+2}, 14, v{T+1}")
    A(f"v_sub_u32 v{T+2}, v{p}, v{T+2}")
    A(f"v_and_b32 v{T}, 12, v{T+1}")
    A(f"v_lshlrev_b32 v{T}, 1, v{T}")
    A(f"v_and_or_b32 v{T}, v{T+1}, 3, v{T}")
    A(f"v_lshrrev_b32 v{T+1}, 4, v{T+1}")
    A(f"v_lshl_add_u32 v{T}, v{T+1}, 2, v{T}")
    A(f"v_mul_u32_u24 v{VW+i}, 896, v{T}")
    A(f"v_lshl_add_u32 v{VW+i}, v{T+2}, 4, v{VW+i}")
    if i & 3: A(f"v_subrev_u32 v{VW+i}, {1024*(i&3)}, v{VW+i}")
A("s_waitcnt lgkmcnt(0)")
srd2(R_W, S_W)

vmq = []; lgq = []
def qwait(q, tag, name, cap):
    if tag not in q: return None
    idx = max(i for i, t in enumerate(q) if t == tag)
    n = len(q) - 1 - idx
    del q[:idx + 1]
    return f"s_waitcnt {name}({min(n,cap)})"
def slot(k): return SLOT * (k % 3)
def dma(k):
    out = []
    for i in range(7):
        if (i & 3) == 0:
            out.append(f"s_add_u32 m0, s{S_RB}, {slot(k) + 1024*i}")
            out.append("s_nop 0")
        out.append(("vm", f"W{k}", f"buffer_load_dwordx4 v{VW+i}, s[{R_W}:{R_W+3}], s{S_WO} offen offset:{1024*(i&3)} lds"))
    out.append(f"s_add_u32 s{S_WO}, s{S_WO}, {32*896}")
    return out
def trread(k, dst):
    out = [("vmwait", f"W{k}")]
    for t in range(7):
        for hf in range(2):
            out.append(("lg", f"B{k}@{dst}", f"ds_read_b64_tr_b16 {v(dst+4*t+2*hf,2)}, v{V_TR} offset:{slot(k) + 32*t + 3584*hf}"))
    return out
def emit(item):
    if isinstance(item, str): A(item); return
    if item[0] == "vm": vmq.append(item[1]); A(item[2])
    elif item[0] == "lg": lgq.append(item[1]); A(item[2])
    else:
        w = qwait(vmq, item[1], "vmcnt", 63) if item[0] == "vmwait" else qwait(lgq, item[1], "lgkmcnt", 15)
        if w: A(w)
for k in range(3):
    for it in dma(k): emit(it)
srd(A, R_O, S_O, XB)
if STAMPS: srd(A, R_WS, S_WS, 1 << 22)
A(f"v_and_b32 v{T}, 15, v0")
A(f"v_lshrrev_b32 v{T+1}, 4, v0")
A(f"v_lshrrev_b32 v{T+2}, 2, v0")
A(f"v_mul_u32_u24 v{V_TR}, 224, v{T+2}")
A(f"v_and_b32 v{T+2}, 3, v0")
A(f"v_lshl_add_u32 v{V_TR}, v{T+2}, 3, v{V_TR}")
A(f"v_add_u32 v{V_TR}, s{S_RB}, v{V_TR}")
A(f"v_mul_u32_u24 v{V_AR}, {P}, v{T}")
A(f"v_lshl_add_u32 v{V_AR}, v{T+1}, 4, v{V_AR}")
A(f"v_mul_u32_u24 v{V_OW}, {PO}, v{T}")
A(f"v_lshl_add_u32 v{V_OW}, v{T+1}, 3, v{V_OW}")
A(f"v_add_u32 v{V_OW}, s{S_RB}, v{V_OW}")
A(f"v_mul_u32_u24 v{V_OR}, {PO}, v{T+1}")
A(f"v_lshl_add_u32 v{V_OR}, v{T}, 4, v{V_OR}")
A(f"v_add_u32 v{V_OR}, s{S_RB}, v{V_OR}")
A(f"v_mul_u32_u24 v{V_OG}, 896, v{T+1}")
A(f"v_lshl_add_u32 v{V_OG}, v{T}, 4, v{V_OG}")
A(f"v_add_u32 v{T+2}, 2, v{T}")
A(f"v_lshrrev_b32 v{T+2}, 4, v{T+2}")
A(f"v_lshl_add_u32 v{V_OG}, v{T+2}, 31, v{V_OG}")
R = [RB0 + 28 * i for i in range(4)]
EARLY = opt("--early", 0, int)
stamp(1)
for k in range(EARLY):
    for it in trread(k, R[k]): emit(it)
    emit(("lgwait", f"B{k}@{R[k]}"))
    for it in dma(k + 3): emit(it)
for it in trread(EARLY, R[EARLY]): emit(it)

def acc(mt, t): return ACC + 28 * mt + 4 * t
T0, T1 = acc(2, 0), acc(3, 0)
units = []; fills = {}; BAR = "BAR"
def nslots(): return 7 * len([u for u in units if u != BAR])
def U_(mt, k, b): units.append([mt, k, b])
def put(g, items): fills.setdefault(g, []).extend(items)
def spread(g, items, per):
    for i in range(0, len(items), per): put(g + i // per, items[i:i+per])
dma_next = [0]; sched = {}
def putdma(g, k, dst, knext, dsp=None):
    dsp = dsp or DSP
    g = max(g, dma_next[0])
    put(g, [("lgwait", f"B{k}@{dst}")])
    cur = []
    for it in dma(knext):
        cur.append(it)
        if not isinstance(it, str):
            put(g, cur); cur = []; g += dsp
    put(g - dsp, cur)
    dma_next[0] = g
    sched[knext] = [g - dsp]
def refill(k, dst, knext, g0=None, per=1, dsp=None):
    g = nslots() if g0 is None else g0
    f = trread(k, dst)
    if k in sched: sched[k].append(g)
    put(g, f[:1]); spread(g, f[1:], per)
    if knext is not None and knext < 14:
        putdma(g + 14 // per + LAG, k, dst, knext, dsp)
units.append(BAR)
D1 = opt("--d1", 2, int)
if EARLY == 0:
    refill(1, R[1], None, per=2); putdma(0, 0, R[0], 3, D1)
    U_(0, 0, R[0]); refill(2, R[2], None, per=2); U_(1, 0, R[0])
    putdma(nslots(), 1, R[1], 4, D1); putdma(nslots(), 2, R[2], 5, D1)
    U_(0, 1, R[1]); U_(1, 1, R[1])
    U_(0, 2, R[2]); refill(3, R[3], 6, per=2, dsp=D1); U_(1, 2, R[2])
else:
    putdma(0, 1, R[1], 4, D1)
    U_(0, 0, R[0]); refill(2, R[2], 5, per=2, dsp=D1); U_(1, 0, R[0])
    U_(0, 1, R[1]); U_(1, 1, R[1])
    U_(0, 2, R[2]); refill(3, R[3], 6, per=2, dsp=D1); U_(1, 2, R[2])
U_(0, 3, R[3]); refill(4, T0, None, per=2); U_(1, 3, R[3])
U_(0, 4, T0); refill(5, T1, None, per=2); U_(1, 4, T0)
U_(0, 5, T1); refill(6, T0, None, per=2); U_(1, 5, T1)
U_(0, 6, T0); U_(1, 6, T0)
units.append(BAR)
U_(2, 0, R[0]); U_(3, 0, R[0])
refill(4, R[0], 7); U_(2, 1, R[1]); U_(3, 1, R[1])
refill(5, R[1], 8); U_(2, 2, R[2]); U_(3, 2, R[2])
refill(6, R[2], 9); U_(2, 3, R[3]); U_(3, 3, R[3])
regfree = {7: nslots()}
U_(2, 4, R[0]); U_(3, 4, R[0]); regfree[8] = nslots()
U_(2, 5, R[1]); U_(3, 5, R[1]); regfree[9] = nslots()
U_(2, 6, R[2]); U_(3, 6, R[2]); regfree[10] = nslots()
src = {7: R[3], 8: R[0], 9: R[1], 10: R[2], 11: R[3], 12: R[0], 13: R[1]}
need = {}
for k in range(7, 14 - TAIL):
    need[k] = nslots()
    for mt in range(4): U_(mt, k, src[k])
    regfree[k + 4] = nslots()
for i, k in enumerate(range(14 - TAIL, 14)): need[k] = nslots() + 7 * i
for k in range(7, 14):
    g = min(max(regfree[k], sched[k][0] + LAT), need[k] - 18)
    assert g >= regfree[k] and g > sched[k][0], (k, g, regfree[k], sched[k])
    refill(k, src[k], k + 3, g)
print("k: last DMA slot, first read slot:", sched, "need", need, file=sys.stderr)
def epi_a(mt):
    out = []
    for t in range(7):
        d = acc(mt, t)
        out.append(f"v_cvt_pk_bf16_f32 v{d}, v{d}, v{d+1}")
        out.append(f"v_cvt_pk_bf16_f32 v{d+1}, v{d+2}, v{d+3}")
        out.append(("lg", f"OW{mt}", f"ds_write_b64 v{V_OW}, {v(d,2)} offset:{mt*16*PO + 32*t}"))
    return out
def epi_b(mt):
    out = [("lgwait", f"OW{mt}")]
    for i in range(4):
        out.append(("lg", f"OR{mt}", f"ds_read_b128 {v(acc(mt,i),4)}, v{V_OR} offset:{(mt*16+4*i)*PO}"))
    return out
def epi_c(mt):
    out = [("lgwait", f"OR{mt}")]
    for i in range(4):
        out.append(("vm", f"O{mt}", f"buffer_store_dwordx4 {v(acc(mt,i),4)}, v{V_OG}, s[{R_O}:{R_O+3}], s{S_OO} offen {STFL}"))
        out.append(f"s_add_u32 s{S_OO}, s{S_OO}, {4*896}")
    return out
lastread = max(x[1] for x in sched.values() if len(x) > 1) + 14
for mt in range(4):
    g = nslots()
    if mt >= 1:
        assert g + 1 > lastread and g >= need[13] + 7
        n = 7 * TAIL
        spread(g + 1, epi_a(mt - 1), 2)
        spread(g + 14 if n >= 21 else g + 12, epi_b(mt - 1), 5)
    if mt >= 2 and TAIL < 3: spread(g, epi_c(mt - 2), 2)
    if mt >= 1 and TAIL >= 3: spread(g + 18, epi_c(mt - 1), 3)
    for k in range(14 - TAIL, 14): U_(mt, k, src[k])

real = [u for u in units if u != BAR]
def aread(idx):
    mt, k = real[idx][0], real[idx][1]
    return ("lg", f"A{idx}", f"ds_read_b128 {v(AF+4*(idx&3),4)}, v{V_AR} offset:{mt*16*P + 64*k}")
started = set(); idx = 0; nb = 0; pos = 0; PFD = 2
while pos < len(units):
    if units[pos] == BAR:
        stamp(2 + 2 * nb)
        A("s_barrier"); nb += 1
        stamp(1 + 2 * nb)
        pos += 1
        continue
    end = pos
    while end < len(units) and units[end] != BAR: end += 1
    n = end - pos
    for d in range(min(PFD, n)): emit(aread(idx + d))
    for j in range(n):
        mt, k, b = units[pos + j]
        if (idx + j) % 4 == 0: stamp(1 + (idx + j) // 4, True)
        emit(("lgwait", f"B{k}@{b}"))
        emit(("lgwait", f"A{idx+j}"))
        for t in range(7):
            d = acc(mt, t)
            cin = v(d, 4) if mt in started else "0"
            A(f"v_mfma_f32_16x16x32_bf16 {v(d,4)}, {v(b+4*t,4)}, {v(AF+4*((idx+j)&3),4)}, {cin}")
            if t == 0 and j + PFD < n: emit(aread(idx + j + PFD))
            for it in fills.pop(7 * (idx + j) + t, []): emit(it)
        started.add(mt)
    idx += n
    pos = end
assert not fills, fills
stamp(15, True)
stamp(6)
if TAIL < 3:
    for it in epi_c(2): emit(it)
else:
    A("s_nop 1")
for it in epi_a(3) + epi_b(3) + epi_c(3): emit(it)
stamp(7)
A(f"s_add_u32 s{S_WV}, s{S_WV}, 4")
A("L_fin:")
if STAMPS:
    A("s_waitcnt vmcnt(0)")
    stamp(8)
    A("s_waitcnt lgkmcnt(0)")
    if PROBE is not None:
        A(f"s_cmp_lg_u32 s{S_WV}, {PROBE[0]}")
        A("s_cbranch_scc1 L_nospin")
        if PROBE[1] == "f":
            A(f"s_mov_b32 s{S_T}, {int(PROBE[2:])}")
        else:
            pi, pj = int(PROBE[1]), int(PROBE[2])
            A(f"s_sub_u32 s{S_T}, s{S_ST+2*pi}, s{S_ST+2*pj}")
            A(f"s_lshl_b32 s{S_T}, s{S_T}, 1")
            A(f"s_add_u32 s{S_T}, s{S_T}, 1500")
        A(f"s_add_u32 s{S_T}, s{S_T}, s{S_ST}")
        A("L_spin:")
        A(f"s_memrealtime s[{S_ST+30}:{S_ST+31}]")
        A("s_waitcnt lgkmcnt(0)")
        A(f"s_sub_u32 s{S_T2}, s{S_ST+30}, s{S_T}")
        A(f"s_cmp_lt_i32 s{S_T2}, 0")
        A("s_cbranch_scc1 L_spin")
        A("L_nospin:")
    A(f"s_lshl_b32 s{S_T}, s2, 11")
    A(f"s_lshl_b32 s{S_T2}, s{S_WV}, 7")
    A(f"s_add_u32 s{S_T}, s{S_T}, s{S_T2}")
    A("v_mov_b32 v30, 0")
    A("v_cmp_eq_u32 vcc, 0, v0")
    A("s_and_saveexec_b64 s[4:5], vcc")
    for i in range(NSTAMP):
        A(f"v_mov_b32 v20, s{S_ST+2*i}")
        A(f"v_mov_b32 v21, s{S_ST+2*i+1}")
        A(f"buffer_store_dwordx2 v[20:21], v30, s[{R_WS}:{R_WS+3}], s{S_T} offen offset:{8*i}")
        A("s_waitcnt vmcnt(0)")
A("L_end:")
A("s_endpgm")
out = wrap(A.text(), 256, 512, LDS_TOTAL, 256, 100 if STAMPS else 56, 256, notes="V3: 64x448 tile per workgroup, producer/consumer waves")
open(sys.argv[1], "w").write(out)
```

```python
import sys, struct
from asmgen import *
def flag(n): return n in sys.argv
def opt(n, d, t=str): return t(sys.argv[sys.argv.index(n)+1]) if n in sys.argv else d
STAMPS = flag("--stamps"); PROBE = opt("--probe", None)
PF = opt("--pf", "f", str)
TLB = flag("--tlb")
CYC = flag("--cyc"); FINE = flag("--fine")
CPF = opt("--cpf", 512, int)
TAIL = opt("--tail", 1, int)
PRE0 = opt("--pre0", 1, int)
STFL = opt("--st", "", str); XFL = opt("--xfl", "", str)
G0 = opt("--g0", 8, int); SP = opt("--sp", 28, int); EPS = opt("--eps", 2, int)
def f2u(f): return struct.unpack("<I", struct.pack("<f", f))[0]
A = Asm()
P = 928; PO = 240
XB = 16384 * 896
YB = 64 * P
SLOT = 7168
RINGB = 3 * SLOT
LDS_TOTAL = YB + 4 * RINGB
S_X, S_G, S_B, S_W, S_O, S_WS = 4, 6, 8, 10, 12, 14
R_X, R_W, R_O, R_G, R_B, R_WS = 16, 20, 24, 28, 32, 36
S_WV, S_XO, S_WO, S_OO, S_ONE, S_T, S_RB, S_T2, S_MSK, S_PF = 40, 41, 42, 43, 44, 45, 46, 47, 48, 49
S_ST = 66; NSTAMP = 16
def stamp(i, fine=False):
    if STAMPS and (fine == FINE or i == 0):
        A(f"{'s_memtime' if CYC else 's_memrealtime'} s[{S_ST+2*i}:{S_ST+2*i+1}]")
def srd2(d, b):
    A(f"s_mov_b32 s{d}, s{b}"); A(f"s_and_b32 s{d+1}, s{b+1}, 0xffff")
class Q:
    def __init__(s): s.vm = []; s.lg = []
q = Q()
def qwait(l, tag, name, cap):
    if tag not in l: return None
    idx = max(i for i, t in enumerate(l) if t == tag)
    n = len(l) - 1 - idx
    del l[:idx + 1]
    return f"s_waitcnt {name}({min(n,cap)})"
def emit(item):
    if isinstance(item, str): A(item); return
    if item[0] == "vm": q.vm.append(item[1]); A(item[2])
    elif item[0] == "lg": q.lg.append(item[1]); A(item[2])
    else:
        w = qwait(q.vm, item[1], "vmcnt", 63) if item[0] == "vmwait" else qwait(q.lg, item[1], "lgkmcnt", 15)
        if w: A(w)
def slot(k): return SLOT * (k % 3)

VW = 1
V_XOFF, V_GOFF, V_LW, V_SW, V_SR = 8, 9, 10, 11, 12
T = 14
X, G, Bv, F, GRAW = 20, 48, 104, 160, 216
A("s_cmp_ge_u32 s2, 256")
A("s_cbranch_scc1 L_end")
stamp(0)
A("s_load_dwordx8 s[4:11], s[0:1], 0")
A("s_load_dwordx2 s[12:13], s[0:1], 32")
if STAMPS: A("s_load_dwordx2 s[14:15], s[0:1], 48")
if CPF:
    A("s_getpc_b64 s[54:55]")
    A("L_pc:")
    A("s_lshr_b32 s3, s2, 3")
    A(f"s_mul_i32 s3, s3, {CPF}")
    A("v_lshl_add_u32 v2, v0, 2, s3")
    A(f"v_cmp_gt_u32 vcc, {CPF//4}, v0")
    A("s_and_saveexec_b64 s[56:57], vcc")
    A("v_cmp_gt_u32 vcc, L_end-L_pc, v2")
    A("s_and_b64 exec, exec, vcc")
    A("s_cbranch_execz L_nocpf")
    A("global_load_dword v255, v2, s[54:55]")
    A("L_nocpf:")
    A("s_mov_b64 exec, s[56:57]")
A("v_lshrrev_b32 v1, 6, v0")
A("v_and_b32 v0, 63, v0")
A(f"v_readfirstlane_b32 s{S_WV}, v1")
A(f"v_lshrrev_b32 v{T}, 3, v0")
A(f"v_and_b32 v{T+1}, 7, v0")
A(f"v_lshlrev_b32 v{T+1}, 4, v{T+1}")
A(f"v_mul_u32_u24 v{V_XOFF}, 896, v{T}")
A(f"v_add_u32 v{V_XOFF}, v{V_XOFF}, v{T+1}")
A(f"v_lshlrev_b32 v{V_GOFF}, 4, v0")
A(f"s_mul_i32 s{S_OO}, s2, {64*896}")
A(f"s_mul_i32 s{S_T}, s{S_WV}, {8*896}")
A(f"s_add_u32 s{S_XO}, s{S_OO}, s{S_T}")
for r, n in ((R_G, 896), (R_B, 896), (R_X, XB), (R_W, 448 * 896)):
    A(f"s_mov_b32 s{r+2}, {n}"); A(f"s_mov_b32 s{r+3}, 0x20000")
A("s_waitcnt lgkmcnt(0)")
GBW = opt("--gbw", 0, int)
A(f"s_cmp_lg_u32 s{S_WV}, {GBW}")
A("s_cbranch_scc1 L_nogb")
srd2(R_G, S_G); srd2(R_B, S_B)
A(f"buffer_load_dwordx4 {v(GRAW,4)}, v{V_GOFF}, s[{R_G}:{R_G+3}], 0 offen")
A(f"buffer_load_dwordx4 {v(GRAW+4,4)}, v{V_GOFF}, s[{R_B}:{R_B+3}], 0 offen")
A("L_nogb:")
srd2(R_X, S_X)
for i in range(7):
    emit(("vm", f"x_{i}", f"buffer_load_dwordx4 {v(X+4*i,4)}, v{V_XOFF}, s[{R_X}:{R_X+3}], s{S_XO} offen offset:{128*i} {XFL}"))
stamp(1)
if flag("--prio"):
    A(f"s_cmp_lt_u32 s{S_WV}, 4")
    A("s_cbranch_scc1 L_nop")
    A("s_setprio 2")
    A("L_nop:")
srd2(R_W, S_W)
srd(A, R_O, S_O, XB)
if STAMPS: srd(A, R_WS, S_WS, 1 << 22)
A(f"s_and_b32 s{S_T}, s{S_WV}, 3")
A(f"s_mul_i32 s{S_WO}, s{S_T}, 224")
A(f"s_add_u32 s{S_OO}, s{S_OO}, s{S_WO}")
A(f"s_mul_i32 s{S_RB}, s{S_T}, {RINGB}")
A(f"s_add_u32 s{S_RB}, s{S_RB}, {YB}")
A(f"s_lshr_b32 s{S_PF}, s2, 3")
A(f"s_lshl_b32 s{S_PF}, s{S_PF}, 2")
A(f"s_add_u32 s{S_PF}, s{S_PF}, s{S_T}")
A(f"s_mul_i32 s{S_PF}, s{S_PF}, 3136")
A(f"v_mul_u32_u24 v{V_LW}, {P}, v{T}")
A(f"v_add_u32 v{V_LW}, v{V_LW}, v{T+1}")
A(f"s_mul_i32 s{S_T}, s{S_WV}, {8*P}")
A(f"v_add_u32 v{V_LW}, s{S_T}, v{V_LW}")
SCR = YB + 3 * RINGB + 2 * SLOT
A(f"v_lshlrev_b32 v{V_SR}, 1, v{T+1}")
A(f"v_add_u32 v{V_SR}, {SCR}, v{V_SR}")
A(f"s_mov_b32 s{S_ONE}, 0x3f803f80")
A(f"s_mov_b32 s{S_MSK}, 0xffff0000")
A(f"s_movk_i32 s{S_T}, 1568")
A(f"s_movk_i32 s{S_T2}, -896")
A(f"v_mul_u32_u24 v{T+2}, 4682, v0")
for i in range(7):
    if i: A(f"v_add_u32 v{T}, {64*i*4682}, v{T+2}")
    A(f"v_lshrrev_b32 v{T}, 16, v{T if i else T+2}")
    A(f"v_mad_u32_u24 v{VW+i}, v{T}, s{S_T}, v{V_GOFF}")
    A(f"v_and_b32 v{T+1}, 3, v{T}")
    A(f"v_mad_i32_i24 v{VW+i}, v{T+1}, s{S_T2}, v{VW+i}")
    c = 1024 * i - 1024 * (i & 3) - (25088 if i > 3 else 0)
    if i == 3:
        A(f"v_lshrrev_b32 v{T}, 4, v{T}")
        A(f"v_mul_u32_u24 v{T}, 25088, v{T}")
        A(f"v_sub_u32 v{VW+i}, v{VW+i}, v{T}")
    if c: A(f"v_add_u32 v{VW+i}, {c & 0xffffffff:#x}, v{VW+i}")
def dma(k):
    for i in range(7):
        if (i & 3) == 0:
            A(f"s_add_u32 m0, s{S_RB}, {slot(k) + 1024*i}")
            A("s_nop 0")
        emit(("vm", f"W{k}", f"buffer_load_dwordx4 v{VW+i}, s[{R_W}:{R_W+3}], s{S_WO} offen offset:{1024*(i&3)} lds"))
    A(f"s_add_u32 s{S_WO}, s{S_WO}, {32*896}")
A(f"s_cmp_lg_u32 s{S_WV}, {GBW}")
A("s_cbranch_scc1 L_nogb2")
A(f"v_lshlrev_b32 v{V_SW}, 5, v0")
A(f"v_add_u32 v{V_SW}, {SCR}, v{V_SW}")
A("s_waitcnt vmcnt(7)")
U = Bv + 40
for j in range(8):
    A(f"v_lshlrev_b32 v{U+2*j}, 16, v{GRAW+j}")
    A(f"v_and_b32 v{U+2*j+1}, s{S_MSK}, v{GRAW+j}")
A(f"ds_write_b128 v{V_SW}, {v(U,4)}")
A(f"ds_write_b128 v{V_SW}, {v(U+4,4)} offset:16")
A(f"ds_write_b128 v{V_SW}, {v(U+8,4)} offset:2048")
A(f"ds_write_b128 v{V_SW}, {v(U+12,4)} offset:2064")
A("s_waitcnt lgkmcnt(0)")
A("L_nogb2:")
SUM, SQ = T, T + 1
for r in range(4): A(f"v_mov_b32 v{T+r}, 0")
A("s_barrier")
stamp(2)
for i in range(7):
    A(f"ds_read_b128 {v(G+8*i,4)}, v{V_SR} offset:{256*i}")
    A(f"ds_read_b128 {v(G+8*i+4,4)}, v{V_SR} offset:{256*i+16}")
    A(f"ds_read_b128 {v(Bv+8*i,4)}, v{V_SR} offset:{2048+256*i}")
    A(f"ds_read_b128 {v(Bv+8*i+4,4)}, v{V_SR} offset:{2048+256*i+16}")
    emit(("vmwait", f"x_{i}"))
    for j in range(4):
        r = X + 4 * i + j
        A(f"v_dot2c_f32_bf16 v{SUM + 2*(j&1)}, s{S_ONE}, v{r}")
        A(f"v_dot2c_f32_bf16 v{SQ + 2*(j&1)}, v{r}, v{r}")
    if i < 6:
        for j in range(4):
            A(f"v_lshlrev_b32 v{F+8*i+2*j}, 16, v{X+4*i+j}")
            A(f"v_and_b32 v{F+8*i+2*j+1}, s{S_MSK}, v{X+4*i+j}")
up = []
for j in range(4):
    up.append(f"v_lshlrev_b32 v{F+48+2*j}, 16, v{X+24+j}")
    up.append(f"v_and_b32 v{F+48+2*j+1}, s{S_MSK}, v{X+24+j}")
A(up[0]); A(up[1]); A(up[2])
A(f"v_add_f32 v{SUM}, v{SUM}, v{SUM+2}")
A(f"v_add_f32 v{SQ}, v{SQ}, v{SQ+2}")
for n, dpp in enumerate(("quad_perm:[1,0,3,2]", "quad_perm:[2,3,0,1]", "row_half_mirror")):
    A(up[3 + n])
    A(f"v_add_f32_dpp v{SUM}, v{SUM}, v{SUM} {dpp} row_mask:0xf bank_mask:0xf")
    A(f"v_add_f32_dpp v{SQ}, v{SQ}, v{SQ} {dpp} row_mask:0xf bank_mask:0xf")
MEAN, RS = T + 2, T + 4
A(f"v_mul_f32 v{MEAN}, {f2u(1/448):#x}, v{SUM}")
A(f"v_mul_f32 v{SQ}, {f2u(1/448):#x}, v{SQ}")
A(f"v_fma_f32 v{SQ}, -v{MEAN}, v{MEAN}, v{SQ}")
A(f"v_max_f32 v{SQ}, 0, v{SQ}")
A(f"v_add_f32 v{SQ}, {f2u(1e-5):#x}, v{SQ}")
A(f"v_rsq_f32 v{RS}, v{SQ}")
A(up[6]); A(up[7])
A(f"v_mul_f32 v{RS+1}, -v{MEAN}, v{RS}")
stamp(3)
A("s_waitcnt lgkmcnt(0)")
def s1(i): return [f"v_pk_fma_f32 {v(F+8*i+2*j,2)}, {v(F+8*i+2*j,2)}, {v(RS,2)}, {v(RS,2)} op_sel:[0,0,1] op_sel_hi:[1,0,1]" for j in range(4)]
def s2(i): return [f"v_pk_fma_f32 {v(F+8*i+2*j,2)}, {v(F+8*i+2*j,2)}, {v(G+8*i+2*j,2)}, {v(Bv+8*i+2*j,2)}" for j in range(4)]
def s3(i): return [f"v_cvt_pk_bf16_f32 v{X+4*i+j}, v{F+8*i+2*j}, v{F+8*i+2*j+1}" for j in range(4)] + \
                  [f"ds_write_b128 v{V_LW}, {v(X+4*i,4)} offset:{128*i}"]
for step in range(9):
    if step < 7:
        for l in s1(step): A(l)
    if 0 <= step - 1 < 7:
        for l in s2(step - 1): A(l)
    if 0 <= step - 2 < 7:
        for l in s3(step - 2): A(l)
A(f"s_cmp_lt_u32 s{S_WV}, 4")
A("s_cbranch_scc1 L_mfma")
A(f"s_add_u32 s{S_WO}, s{S_WO}, {PRE0*32*896}")
A("s_waitcnt lgkmcnt(0)")
stamp(4)
helper_pos = len(A.lines)
A("s_branch L_fin")

hq = q; q = Q()
A("L_mfma:")
stamp(4)
if PF == "f":
    for i in range(3): emit(("vm", "pf", f"buffer_load_dwordx4 {v(F+4*i,4)}, v{V_GOFF}, s[{R_W}:{R_W+3}], s{S_PF} offen offset:{1024*i}"))
    emit(("vm", "pf", f"buffer_load_dword v{F+12}, off, s[{R_W}:{R_W+3}], s{S_PF} offset:3072"))
if TLB: emit(("vm", "tlb", f"buffer_load_dword v{F+13}, off, s[{R_O}:{R_O+3}], s{S_OO}"))
for k in range(PRE0): dma(k)
V_TR, V_AR, V_OW, V_OR, V_OG = 8, 9, 10, 11, 12
T = 13
AF = 16; ACC = 32; RB0 = 144
A("s_waitcnt lgkmcnt(0)")
A(f"v_and_b32 v{T}, 15, v0")
A(f"v_lshrrev_b32 v{T+1}, 4, v0")
A(f"v_lshrrev_b32 v{T+2}, 2, v0")
A(f"v_mul_u32_u24 v{V_TR}, 224, v{T+2}")
A(f"v_and_b32 v{T+2}, 3, v0")
A(f"v_lshl_add_u32 v{V_TR}, v{T+2}, 3, v{V_TR}")
A(f"v_add_u32 v{V_TR}, s{S_RB}, v{V_TR}")
A(f"v_mul_u32_u24 v{V_AR}, {P}, v{T}")
A(f"v_lshl_add_u32 v{V_AR}, v{T+1}, 4, v{V_AR}")
A(f"v_mul_u32_u24 v{V_OW}, {PO}, v{T}")
A(f"v_lshl_add_u32 v{V_OW}, v{T+1}, 3, v{V_OW}")
A(f"v_add_u32 v{V_OW}, s{S_RB}, v{V_OW}")
A(f"v_mul_u32_u24 v{V_OR}, {PO}, v{T+1}")
A(f"v_lshl_add_u32 v{V_OR}, v{T}, 4, v{V_OR}")
A(f"v_add_u32 v{V_OR}, s{S_RB}, v{V_OR}")
A(f"v_mul_u32_u24 v{V_OG}, 896, v{T+1}")
A(f"v_lshl_add_u32 v{V_OG}, v{T}, 4, v{V_OG}")
A(f"v_add_u32 v{T+2}, 2, v{T}")
A(f"v_lshrrev_b32 v{T+2}, 4, v{T+2}")
A(f"v_lshl_add_u32 v{V_OG}, v{T+2}, 31, v{V_OG}")
R = [RB0 + 28 * i for i in range(4)]
def trread(k, dst):
    return [("lg", f"B{k}", f"ds_read_b64_tr_b16 {v(dst+4*t+2*hf,2)}, v{V_TR} offset:{slot(k) + 32*t + 3584*hf}") for t in range(7) for hf in range(2)]
src = {k: R[k % 4] for k in range(14)}
stamp(5)
for k in range(PRE0):
    emit(("vmwait", f"W{k}"))
    for it in trread(k, src[k]): emit(it)
if PRE0: emit(("lgwait", f"B{PRE0-1}"))
stamp(6)
bars = []
def acc(mt, t): return ACC + 28 * mt + 4 * t
units = []; fills = {}
def nslots(): return 7 * len(units)
def U_(mt, k): units.append([mt, k, src[k]])
def put(g, items): fills.setdefault(g, []).extend(items)
def spread(g, items, per):
    for i in range(0, len(items), per): put(g + i // per, items[i:i+per])
bars.append((list(range(PRE0)), []))
need = {}
for k in range(14 - TAIL):
    need[k] = nslots()
    for mt in range(4): U_(mt, k)
for i, k in enumerate(range(14 - TAIL, 14)): need[k] = nslots() + 7 * i
prev = []
lastg = -1
for j in range(PRE0, 14):
    g = min(G0 + SP * (j - PRE0), need[j] - 18)
    assert g + 14 + 4 <= need[j], (j, g)
    assert j < 4 or g >= 28 * (j - 3), (j, g)
    assert g > lastg; lastg = g
    items = [("lgwait", f"B{p}") for p in prev]
    items.append("s_barrier"); bars.append((prev, [j]))
    put(g, items)
    spread(g, trread(j, src[j]), 1)
    prev = [j]
lastread = g + 14
def epi_a(mt):
    out = []
    for t in range(7):
        d = acc(mt, t)
        out.append(f"v_cvt_pk_bf16_f32 v{d}, v{d}, v{d+1}")
        out.append(f"v_cvt_pk_bf16_f32 v{d+1}, v{d+2}, v{d+3}")
        out.append(("lg", f"OW{mt}", f"ds_write_b64 v{V_OW}, {v(d,2)} offset:{mt*16*PO + 32*t}"))
    return out
def epi_b(mt):
    return [("lgwait", f"OW{mt}")] + [("lg", f"OR{mt}", f"ds_read_b128 {v(acc(mt,i),4)}, v{V_OR} offset:{(mt*16+4*i)*PO}") for i in range(4)]
def epi_c(mt):
    out = [("lgwait", f"OR{mt}")]
    for i in range(4):
        out.append(("vm", f"O{mt}", f"buffer_store_dwordx4 {v(acc(mt,i),4)}, v{V_OG}, s[{R_O}:{R_O+3}], s{S_OO} offen {STFL}"))
        out.append(f"s_add_u32 s{S_OO}, s{S_OO}, {4*896}")
    return out
endslot = {}
for mt in range(4):
    for k in range(14 - TAIL, 14): U_(mt, k)
    endslot[mt] = nslots()
assert endslot[0] + 1 > lastread
epq = []
def eq(g, items):
    for it in items: epq.append((g, it))
eq(endslot[0] + 1, epi_a(0))
for mt in range(4):
    eq(0, [("gap", 3)])
    if mt > 0: eq(0, epi_c(mt - 1))
    eq(0, epi_b(mt))
    if mt < 3: eq(endslot[mt + 1] + 1, epi_a(mt + 1))
eq(0, epi_c(3))
g = 0; i = 0
while i < len(epq):
    g = max(g, epq[i][0])
    if g >= nslots(): break
    n = 0
    while i < len(epq) and n < EPS and epq[i][0] <= g:
        it = epq[i][1]; i += 1
        if not isinstance(it, str) and it[0] == "gap": g += it[1] - 1; break
        put(g, [it]); n += 1
    g += 1
left = [it for (_, it) in epq[i:] if isinstance(it, str) or it[0] != "gap"]
def aread(idx):
    mt, k = units[idx][0], units[idx][1]
    return ("lg", f"A{idx}", f"ds_read_b128 {v(AF+4*(idx&3),4)}, v{V_AR} offset:{mt*16*P + 64*k}")
A("s_barrier")
stamp(7)
started = set(); PFD = 2
for d in range(PFD): emit(aread(d))
for j, (mt, k, b) in enumerate(units):
    if j % 4 == 0: stamp(1 + j // 4, True)
    emit(("lgwait", f"B{k}"))
    emit(("lgwait", f"A{j}"))
    for t in range(7):
        d = acc(mt, t)
        cin = v(d, 4) if mt in started else "0"
        A(f"v_mfma_f32_16x16x32_bf16 {v(d,4)}, {v(b+4*t,4)}, {v(AF+4*(j&3),4)}, {cin}")
        if t == 0 and j + PFD < len(units): emit(aread(j + PFD))
        for it in fills.pop(7 * j + t, []): emit(it)
    started.add(mt)
assert not fills, fills
stamp(15, True)
stamp(8)
A("s_nop 1")
for it in left: emit(it)
stamp(9)
mf_lines = A.lines[helper_pos:]
A.lines = A.lines[:helper_pos]
q = hq
issued = PRE0
freeslots = set(range(PRE0, 3))
for (fr, land) in bars:
    for j in land:
        assert j < issued, ("k-step not issued before it is needed", j)
        emit(("vmwait", f"W{j}"))
    A("s_barrier")
    for j in fr: freeslots.add(j % 3)
    while issued < 14 and (issued % 3) in freeslots:
        freeslots.discard(issued % 3); dma(issued); issued += 1
assert issued == 14
A.lines += mf_lines
A("L_fin:")
if STAMPS:
    A("s_waitcnt vmcnt(0)")
    stamp(10)
    A("s_waitcnt lgkmcnt(0)")
    if PROBE is not None:
        A(f"s_cmp_lg_u32 s{S_WV}, {PROBE[0]}")
        A("s_cbranch_scc1 L_nospin")
        if PROBE[1] == "f":
            A(f"s_mov_b32 s{S_T}, {int(PROBE[2:])}")
        else:
            pi, pj = int(PROBE[1], 16), int(PROBE[2], 16)
            A(f"s_sub_u32 s{S_T}, s{S_ST+2*pi}, s{S_ST+2*pj}")
            A(f"s_lshl_b32 s{S_T}, s{S_T}, 1")
            A(f"s_add_u32 s{S_T}, s{S_T}, 1500")
        A(f"s_add_u32 s{S_T}, s{S_T}, s{S_ST}")
        A("L_spin:")
        A(f"s_memrealtime s[{S_ST+30}:{S_ST+31}]")
        A("s_waitcnt lgkmcnt(0)")
        A(f"s_sub_u32 s{S_T2}, s{S_ST+30}, s{S_T}")
        A(f"s_cmp_lt_i32 s{S_T2}, 0")
        A("s_cbranch_scc1 L_spin")
        A("L_nospin:")
    A(f"s_lshl_b32 s{S_T}, s2, 11")
    A(f"s_lshl_b32 s{S_T2}, s{S_WV}, 7")
    A(f"s_add_u32 s{S_T}, s{S_T}, s{S_T2}")
    A("v_mov_b32 v30, 0")
    A("v_cmp_eq_u32 vcc, 0, v0")
    A("s_and_saveexec_b64 s[4:5], vcc")
    for i in range(NSTAMP):
        A(f"v_mov_b32 v20, s{S_ST+2*i}")
        A(f"v_mov_b32 v21, s{S_ST+2*i+1}")
        A(f"buffer_store_dwordx2 v[20:21], v30, s[{R_WS}:{R_WS+3}], s{S_T} offen offset:{8*i}")
        A("s_waitcnt vmcnt(0)")
A("L_end:")
A("s_endpgm")
out = wrap(A.text(), 256, 512, LDS_TOTAL, 256, 100 if STAMPS else 60, 256, notes="V6: 64x448 tile per workgroup")
open(sys.argv[1], "w").write(out)
```

```python
import sys, struct
from asmgen import *
def flag(n): return n in sys.argv
def opt(n, d, t=str): return t(sys.argv[sys.argv.index(n)+1]) if n in sys.argv else d
STAMPS = flag("--stamps"); PROBE = opt("--probe", None)
PF = not flag("--nopf"); TLB = flag("--tlb")
CYC = flag("--cyc"); FINE = flag("--fine")
CPF = opt("--cpf", 512, int)
STFL = opt("--st", "sc1", str); XFL = opt("--xfl", "", str)
if STFL == "plain": STFL = ""
PFP = opt("--pfp", 6, int)
PD = opt("--pd", 6, int)
def f2u(f): return struct.unpack("<I", struct.pack("<f", f))[0]
A = Asm()
P = 928; PS = 144
XB = 16384 * 896
SLOT = 28672
YB = 3 * SLOT
OST = YB + 64 * P
SCR = OST
LDS_TOTAL = OST + 2 * 64 * PS
assert LDS_TOTAL <= 163840
NSLOT = 5
S_X, S_G, S_B, S_W, S_O, S_WS = 4, 6, 8, 10, 12, 14
R_X, R_W, R_O, R_G, R_B, R_WS = 16, 20, 24, 28, 32, 36
S_WV, S_XO, S_WO, S_OO, S_ONE, S_T, S_RB, S_T2, S_MSK, S_PF = 40, 41, 42, 43, 44, 45, 46, 47, 48, 49
S_ST = 66; NSTAMP = 16
def stamp(i, fine=False):
    if STAMPS and (fine == FINE or i == 0):
        A(f"{'s_memtime' if CYC else 's_memrealtime'} s[{S_ST+2*i}:{S_ST+2*i+1}]")
def srd2(d, b):
    A(f"s_mov_b32 s{d}, s{b}"); A(f"s_and_b32 s{d+1}, s{b+1}, 0xffff")
class Q:
    def __init__(s): s.vm = []; s.lg = []
q = Q()
def qwait(l, tag, name, cap):
    if tag not in l: return None
    idx = max(i for i, t in enumerate(l) if t == tag)
    n = len(l) - 1 - idx
    del l[:idx + 1]
    return f"s_waitcnt {name}({min(n,cap)})"
def emit(item):
    if isinstance(item, str): A(item); return
    if item[0] == "vm": q.vm.append(item[1]); A(item[2])
    elif item[0] == "lg": q.lg.append(item[1]); A(item[2])
    else:
        w = qwait(q.vm, item[1], "vmcnt", 63) if item[0] == "vmwait" else qwait(q.lg, item[1], "lgkmcnt", 15)
        if w: A(w)

V_XOFF, V_L16, V_LW, V_SR, V_T0, V_T1, V_AR, V_OW, V_OR, V_DW = 1, 2, 3, 4, 5, 6, 7, 8, 9, 5
T = 14
X, G, Bv, F, GRAW = 20, 48, 104, 160, 216
A("s_cmp_ge_u32 s2, 256")
A("s_cbranch_scc1 L_end")
stamp(0)
A("s_load_dwordx8 s[4:11], s[0:1], 0")
A("s_load_dwordx2 s[12:13], s[0:1], 32")
if STAMPS: A("s_load_dwordx2 s[14:15], s[0:1], 48")
if CPF:
    A("s_getpc_b64 s[54:55]")
    A("L_pc:")
    A("s_lshr_b32 s3, s2, 3")
    A(f"s_mul_i32 s3, s3, {CPF}")
    A("v_lshl_add_u32 v2, v0, 2, s3")
    A(f"v_cmp_gt_u32 vcc, {CPF//4}, v0")
    A("s_and_saveexec_b64 s[56:57], vcc")
    A("v_cmp_gt_u32 vcc, L_end-L_pc, v2")
    A("s_and_b64 exec, exec, vcc")
    A("s_cbranch_execz L_nocpf")
    A("global_load_dword v255, v2, s[54:55]")
    A("L_nocpf:")
    A("s_mov_b64 exec, s[56:57]")
A("v_lshrrev_b32 v1, 6, v0")
A("v_and_b32 v0, 63, v0")
A(f"v_readfirstlane_b32 s{S_WV}, v1")
A(f"v_lshrrev_b32 v{T}, 3, v0")
A(f"v_and_b32 v{T+1}, 7, v0")
A(f"v_lshlrev_b32 v{T+1}, 4, v{T+1}")
A(f"v_mul_u32_u24 v{V_XOFF}, 896, v{T}")
A(f"v_add_u32 v{V_XOFF}, v{V_XOFF}, v{T+1}")
A(f"v_lshlrev_b32 v{V_L16}, 4, v0")
A(f"s_mul_i32 s{S_OO}, s2, {64*896}")
A(f"s_mul_i32 s{S_T}, s{S_WV}, {8*896}")
A(f"s_add_u32 s{S_XO}, s{S_OO}, s{S_T}")
for r, n in ((R_G, 896), (R_B, 896), (R_X, XB), (R_W, 448 * 896)):
    A(f"s_mov_b32 s{r+2}, {n}"); A(f"s_mov_b32 s{r+3}, 0x20000")
A(f"s_cmp_lg_u32 s{S_WV}, 0")
A("s_waitcnt lgkmcnt(0)")
A("s_cbranch_scc1 L_nogb")
srd2(R_G, S_G); srd2(R_B, S_B)
A(f"buffer_load_dwordx4 {v(GRAW,4)}, v{V_L16}, s[{R_G}:{R_G+3}], 0 offen")
A(f"buffer_load_dwordx4 {v(GRAW+4,4)}, v{V_L16}, s[{R_B}:{R_B+3}], 0 offen")
A("L_nogb:")
srd2(R_X, S_X)
for i in range(7):
    emit(("vm", f"x_{i}", f"buffer_load_dwordx4 {v(X+4*i,4)}, v{V_XOFF}, s[{R_X}:{R_X+3}], s{S_XO} offen offset:{128*i} {XFL}"))
stamp(1)
srd2(R_W, S_W)
srd(A, R_O, S_O, XB)
if STAMPS: srd(A, R_WS, S_WS, 1 << 22)
A(f"s_and_b32 s{S_T2}, s{S_WV}, 3")
A(f"s_lshr_b32 s{S_T}, s2, 3")
A(f"s_lshl_b32 s{S_T}, s{S_T}, 2")
A(f"s_add_u32 s{S_T}, s{S_T}, s{S_T2}")
A(f"s_and_b32 s{S_PF}, s{S_T}, 31")
A(f"s_mul_i32 s{S_PF}, s{S_PF}, {14*896}")
A(f"s_lshr_b32 s{S_T}, s{S_T}, 5")
A(f"s_and_b32 s{S_RB}, s{S_WV}, 4")
A(f"s_add_u32 s{S_T}, s{S_T}, s{S_RB}")
A(f"s_lshl_b32 s{S_T}, s{S_T}, 7")
A(f"s_add_u32 s{S_PF}, s{S_PF}, s{S_T}")
A(f"v_mul_u32_u24 v{V_LW}, {P}, v{T}")
A(f"v_add_u32 v{V_LW}, v{V_LW}, v{T+1}")
A(f"s_mul_i32 s{S_T}, s{S_WV}, {8*P}")
A(f"s_add_u32 s{S_T}, s{S_T}, {YB}")
A(f"v_add_u32 v{V_LW}, s{S_T}, v{V_LW}")
A(f"v_lshlrev_b32 v{V_SR}, 1, v{T+1}")
A(f"v_add_u32 v{V_SR}, {SCR}, v{V_SR}")
A(f"v_mul_u32_u24 v{V_OR}, {PS}, v{T}")
A(f"v_add_u32 v{V_OR}, v{V_OR}, v{T+1}")
A(f"s_mul_i32 s{S_T}, s{S_T2}, {16*PS}")
A(f"s_add_u32 s{S_T}, s{S_T}, {OST}")
A(f"v_add_u32 v{V_OR}, s{S_T}, v{V_OR}")
A(f"s_mul_i32 s{S_T}, s{S_T2}, {16*896}")
A(f"s_add_u32 s{S_OO}, s{S_OO}, s{S_T}")
A(f"v_and_b32 v{T}, 15, v0")
A(f"v_lshrrev_b32 v{T+1}, 4, v0")
A(f"s_lshr_b32 s{S_T}, s{S_T2}, 1")
A(f"s_and_b32 s{S_RB}, s{S_T2}, 1")
A(f"v_mul_u32_u24 v{V_AR}, {P}, v{T}")
A(f"v_lshl_add_u32 v{V_AR}, v{T+1}, 4, v{V_AR}")
A(f"s_mul_i32 s{S_WO}, s{S_T}, {32*P}")
A(f"s_add_u32 s{S_WO}, s{S_WO}, {YB}")
A(f"v_add_u32 v{V_AR}, s{S_WO}, v{V_AR}")
A(f"v_mul_u32_u24 v{V_OW}, {PS}, v{T}")
A(f"v_lshl_add_u32 v{V_OW}, v{T+1}, 3, v{V_OW}")
A(f"s_mul_i32 s{S_WO}, s{S_T}, {32*PS}")
A(f"s_lshl_b32 s{S_T}, s{S_RB}, 6")
A(f"s_add_u32 s{S_WO}, s{S_WO}, s{S_T}")
A(f"s_add_u32 s{S_WO}, s{S_WO}, {OST}")
A(f"v_add_u32 v{V_OW}, s{S_WO}, v{V_OW}")
A(f"v_lshrrev_b32 v{T+2}, 2, v0")
A(f"v_lshrrev_b32 v{T+3}, 3, v0")
A(f"v_and_b32 v{T+3}, 3, v{T+3}")
A(f"s_lshl_b32 s{S_T}, s{S_RB}, 1")
A(f"v_xor_b32 v{T+3}, s{S_T}, v{T+3}")
A(f"v_and_b32 v{T}, 3, v0")
A(f"v_lshlrev_b32 v{T}, 3, v{T}")
A(f"v_lshl_add_u32 v{T}, v{T+2}, 7, v{T}")
A(f"v_lshl_add_u32 v{V_T0}, v{T+3}, 5, v{T}")
A(f"v_xor_b32 v{V_T1}, 32, v{V_T0}")
A(f"s_mov_b32 s{S_ONE}, 0x3f803f80")
A(f"s_mov_b32 s{S_MSK}, 0xffff0000")
A(f"s_cmp_lg_u32 s{S_WV}, 0")
A("s_cbranch_scc1 L_nogb2")
A(f"v_lshlrev_b32 v{T}, 5, v0")
A(f"v_add_u32 v{T}, {SCR}, v{T}")
A(f"s_waitcnt vmcnt(7)")
U = Bv + 40
for j in range(8):
    A(f"v_lshlrev_b32 v{U+2*j}, 16, v{GRAW+j}")
    A(f"v_and_b32 v{U+2*j+1}, s{S_MSK}, v{GRAW+j}")
A(f"ds_write_b128 v{T}, {v(U,4)}")
A(f"ds_write_b128 v{T}, {v(U+4,4)} offset:16")
A(f"ds_write_b128 v{T}, {v(U+8,4)} offset:2048")
A(f"ds_write_b128 v{T}, {v(U+12,4)} offset:2064")
A("s_waitcnt lgkmcnt(0)")
A("L_nogb2:")
SUM, SQ = T, T + 1
for r in range(4): A(f"v_mov_b32 v{T+r}, 0")
A("s_barrier")
stamp(2)
for i in range(7):
    A(f"ds_read_b128 {v(G+8*i,4)}, v{V_SR} offset:{256*i}")
    A(f"ds_read_b128 {v(G+8*i+4,4)}, v{V_SR} offset:{256*i+16}")
    A(f"ds_read_b128 {v(Bv+8*i,4)}, v{V_SR} offset:{2048+256*i}")
    A(f"ds_read_b128 {v(Bv+8*i+4,4)}, v{V_SR} offset:{2048+256*i+16}")
    emit(("vmwait", f"x_{i}"))
    if PF and i == PFP:
        emit(("vm", "pf", f"buffer_load_dwordx4 {v(240,4)}, v{V_XOFF}, s[{R_W}:{R_W+3}], s{S_PF} offen"))
        A(f"s_add_u32 s{S_PF}, s{S_PF}, {8*896}")
        A("s_mov_b32 exec_hi, 0xffff")
        emit(("vm", "pf", f"buffer_load_dwordx4 {v(244,4)}, v{V_XOFF}, s[{R_W}:{R_W+3}], s{S_PF} offen"))
        A("s_mov_b32 exec_hi, -1")
        if TLB: emit(("vm", "pf", f"buffer_load_dword v248, off, s[{R_O}:{R_O+3}], s{S_OO}"))
    for j in range(4):
        r = X + 4 * i + j
        A(f"v_dot2c_f32_bf16 v{SUM + 2*(j&1)}, s{S_ONE}, v{r}")
        A(f"v_dot2c_f32_bf16 v{SQ + 2*(j&1)}, v{r}, v{r}")
    if i < 6:
        for j in range(4):
            A(f"v_lshlrev_b32 v{F+8*i+2*j}, 16, v{X+4*i+j}")
            A(f"v_and_b32 v{F+8*i+2*j+1}, s{S_MSK}, v{X+4*i+j}")
up = []
for j in range(4):
    up.append(f"v_lshlrev_b32 v{F+48+2*j}, 16, v{X+24+j}")
    up.append(f"v_and_b32 v{F+48+2*j+1}, s{S_MSK}, v{X+24+j}")
A(up[0]); A(up[1]); A(up[2])
A(f"v_add_f32 v{SUM}, v{SUM}, v{SUM+2}")
A(f"v_add_f32 v{SQ}, v{SQ}, v{SQ+2}")
for n, dpp in enumerate(("quad_perm:[1,0,3,2]", "quad_perm:[2,3,0,1]", "row_half_mirror")):
    A(up[3 + n])
    A(f"v_add_f32_dpp v{SUM}, v{SUM}, v{SUM} {dpp} row_mask:0xf bank_mask:0xf")
    A(f"v_add_f32_dpp v{SQ}, v{SQ}, v{SQ} {dpp} row_mask:0xf bank_mask:0xf")
MEAN, RS = T + 2, T + 4
A(f"v_mul_f32 v{MEAN}, {f2u(1/448):#x}, v{SUM}")
A(f"v_mul_f32 v{SQ}, {f2u(1/448):#x}, v{SQ}")
A(f"v_fma_f32 v{SQ}, -v{MEAN}, v{MEAN}, v{SQ}")
A(f"v_max_f32 v{SQ}, 0, v{SQ}")
A(f"v_add_f32 v{SQ}, {f2u(1e-5):#x}, v{SQ}")
A(f"v_rsq_f32 v{RS}, v{SQ}")
A(up[6]); A(up[7])
A(f"v_mul_f32 v{RS+1}, -v{MEAN}, v{RS}")
stamp(3)
A("s_waitcnt lgkmcnt(0)")
def s1(i): return [f"v_pk_fma_f32 {v(F+8*i+2*j,2)}, {v(F+8*i+2*j,2)}, {v(RS,2)}, {v(RS,2)} op_sel:[0,0,1] op_sel_hi:[1,0,1]" for j in range(4)]
def s2(i): return [f"v_pk_fma_f32 {v(F+8*i+2*j,2)}, {v(F+8*i+2*j,2)}, {v(G+8*i+2*j,2)}, {v(Bv+8*i+2*j,2)}" for j in range(4)]
def s3(i): return [f"v_cvt_pk_bf16_f32 v{X+4*i+j}, v{F+8*i+2*j}, v{F+8*i+2*j+1}" for j in range(4)] + \
                  [f"ds_write_b128 v{V_LW}, {v(X+4*i,4)} offset:{128*i}"]
for step in range(9):
    if step < 7:
        for l in s1(step): A(l)
    if 0 <= step - 1 < 7:
        for l in s2(step - 1): A(l)
    if 0 <= step - 2 < 7:
        for l in s3(step - 2): A(l)
A(f"s_cmp_ge_u32 s{S_WV}, 4")
A("s_cbranch_scc1 L_mfma")
A(f"v_lshrrev_b32 v{T}, 3, v0")
A(f"v_and_b32 v{T+1}, 3, v{T}")
A(f"v_lshrrev_b32 v{T+2}, 2, v{T}")
A(f"v_lshl_add_u32 v{T+1}, v{T+2}, 3, v{T+1}")
A(f"v_mul_u32_u24 v{V_DW}, 896, v{T+1}")
A(f"v_and_b32 v{T}, 6, v{T}")
A(f"v_and_b32 v{T+1}, 7, v0")
A(f"v_xor_b32 v{T}, v{T}, v{T+1}")
A(f"v_lshl_add_u32 v{V_DW}, v{T}, 4, v{V_DW}")
A(f"s_and_b32 s{S_T}, s{S_WV}, 1")
A(f"s_lshl_b32 s{S_T}, s{S_T}, 2")
A(f"s_lshr_b32 s{S_T2}, s{S_WV}, 1")
A(f"s_add_u32 s{S_T}, s{S_T}, s{S_T2}")
A(f"s_mul_i32 s{S_WO}, s{S_T}, {4*896}")
A(f"s_lshl_b32 s{S_RB}, s{S_WV}, 10")
def dma(s_):
    out = []
    for i in range(7):
        out.append(f"s_add_u32 m0, s{S_RB}, {SLOT*(s_%NSLOT) + 4096*i}")
        out.append(f"s_add_u32 s{S_T}, s{S_WO}, {(224*(s_&1) + 32*i)*896 + 128*(s_>>1)}")
        out.append(("vm", f"W{s_}", f"buffer_load_dwordx4 v{V_DW}, s[{R_W}:{R_W+3}], s{S_T} offen lds"))
    return out
A("s_waitcnt lgkmcnt(0)")
stamp(4)
helper_pos = len(A.lines)
A("s_branch L_fin")

hq = q; q = Q()
A("L_mfma:")
YF = 16
BF = 128
NB = 12
ACC = BF + 4 * NB
ORB = ACC + 32
assert ORB + 8 <= 240
A("s_waitcnt lgkmcnt(0)")
stamp(4)
A("s_barrier")
stamp(5)
def yreg(m, k): return YF + 56 * m + 4 * k
for k in range(14):
    for m in range(2):
        emit(("lg", f"Y{k}", f"ds_read_b128 {v(yreg(m,k),4)}, v{V_AR} offset:{m*16*P + 64*k}"))
frags = [(s_, kk, t) for s_ in range(14) for kk in range(7) for t in range(2)]
bars = []
cur_base = [0]
def bread(n):
    s_, kk, t = frags[n]
    out = []
    if kk == 0 and t == 0:
        out.append("s_barrier"); bars.append(s_)
    base = SLOT * (s_ % NSLOT)
    hi = base // (2 * SLOT) * (2 * SLOT)
    if hi != cur_base[0]:
        d = (hi - cur_base[0]) & 0xffffffff
        out.append(f"v_add_u32 v{V_T0}, {d:#x}, v{V_T0}"); out.append(f"v_add_u32 v{V_T1}, {d:#x}, v{V_T1}")
        cur_base[0] = hi
    for hf in range(2):
        out.append(("lg", f"B{n}", f"ds_read_b64_tr_b16 {v(BF+4*(n%NB)+2*hf,2)}, v{V_T1 if t else V_T0} offset:{base - hi + 4096*kk + 2048*hf}"))
    return out
def epi_a(b):
    out = []
    for m in range(2):
        for t in range(2):
            d = ACC + 16 * (b & 1) + 8 * m + 4 * t
            out.append(f"v_cvt_pk_bf16_f32 v{d}, v{d}, v{d+1}")
            out.append(f"v_cvt_pk_bf16_f32 v{d+1}, v{d+2}, v{d+3}")
            out.append(("lg", f"OW{b}", f"ds_write_b64 v{V_OW}, {v(d,2)} offset:{(b&1)*64*PS + m*16*PS + 32*t}"))
    return out
def epi_b(b): return [("lg", f"OR{b}", f"ds_read_b128 {v(ORB+4*i,4)}, v{V_OR} offset:{(b&1)*64*PS + 8*i*PS}") for i in range(2)]
def epi_c(b):
    return [("lgwait", f"OR{b}"),
            ("vm", "O", f"buffer_store_dwordx4 {v(ORB,4)}, v{V_XOFF}, s[{R_O}:{R_O+3}], s{S_OO} offen offset:{128*b} {STFL}"),
            ("vm", "O", f"buffer_store_dwordx4 {v(ORB+4,4)}, v{V_XOFF}, s[{R_O}:{R_O+3}], s{S_T2} offen offset:{128*b} {STFL}")]
A(f"s_add_u32 s{S_T2}, s{S_OO}, {8*896}")
for n in range(PD):
    for it in bread(n): emit(it)
    if n == 0: stamp(6)
fills = {}
def put(g, items): fills.setdefault(g, []).extend(items)
for b in range(6):
    g0 = 56 * (b + 1)
    ea = epi_a(b)
    for i in range(4): put(g0 + 3 + 2 * i, ea[3 * i:3 * i + 3])
    gb = g0 + 28 - 2 * PD
    assert g0 + 11 < gb
    fills.setdefault(gb, []).insert(0, ("lgwait", f"OW{b}"))
    put(gb + 1, epi_b(b))
    ec = epi_c(b)
    put(gb + 8, ec[:2]); put(gb + 13, ec[2:])
g = 0
for n, (s_, kk, t) in enumerate(frags):
    if kk == 0 and t == 0: stamp(1 + s_, True)
    k = 7 * (s_ & 1) + kk
    b = s_ >> 1
    emit(("lgwait", f"Y{k}"))
    emit(("lgwait", f"B{n}"))
    for m in range(2):
        d = ACC + 16 * (b & 1) + 8 * m + 4 * t
        A(f"v_mfma_f32_16x16x32_bf16 {v(d,4)}, {v(BF+4*(n%NB),4)}, {v(yreg(m,k),4)}, {'0' if k == 0 else v(d,4)}")
        pre = fills.pop(g, [])
        if m == 0 and n + PD < len(frags):
            for it in [x for x in pre if not isinstance(x, str) and x[0] == "lgwait" and x[1].startswith("OW")]: emit(it)
            pre = [x for x in pre if not (not isinstance(x, str) and x[0] == "lgwait" and x[1].startswith("OW"))]
            for it in bread(n + PD): emit(it)
        for it in pre: emit(it)
        g += 1
assert not fills, fills
stamp(15, True)
stamp(7)
A("s_nop 7")
for it in epi_a(6): emit(it)
emit(("lgwait", "OW6"))
A("s_barrier")
for it in epi_b(6) + epi_c(6): emit(it)
stamp(8)
mf_lines = A.lines[helper_pos:]
A.lines = A.lines[:helper_pos]
q = hq
A("s_barrier")
assert bars == list(range(14))
issued = []
def issue(lst):
    for it in lst: emit(it)
d0, d1, d2 = dma(0), dma(1), dma(2)
issue(d0); issue(d1[:9])
emit(("vmwait", "W0"))
stamp(5)
A("s_barrier")
issue(d1[9:]); issue(d2[:9])
emit(("vmwait", "W1"))
A("s_barrier")
issue(d2[9:])
nxt = 3
for s_ in range(2, 14):
    emit(("vmwait", f"W{s_}"))
    A("s_barrier")
    lim = s_ - 2 + NSLOT
    while nxt <= min(lim, 13) and nxt <= s_ + opt("--ahead", 2, int):
        issue(dma(nxt)); nxt += 1
assert nxt == 14
A.lines += mf_lines
A("L_fin:")
if STAMPS:
    A("s_waitcnt vmcnt(0)")
    stamp(9)
    A("s_waitcnt lgkmcnt(0)")
    if PROBE is not None:
        A(f"s_cmp_lg_u32 s{S_WV}, {PROBE[0]}")
        A("s_cbranch_scc1 L_nospin")
        if PROBE[1] == "f":
            A(f"s_mov_b32 s{S_T}, {int(PROBE[2:])}")
        else:
            pi, pj = int(PROBE[1], 16), int(PROBE[2], 16)
            A(f"s_sub_u32 s{S_T}, s{S_ST+2*pi}, s{S_ST+2*pj}")
            A(f"s_lshl_b32 s{S_T}, s{S_T}, 1")
            A(f"s_add_u32 s{S_T}, s{S_T}, 1500")
        A(f"s_add_u32 s{S_T}, s{S_T}, s{S_ST}")
        A("L_spin:")
        A(f"s_memrealtime s[{S_ST+30}:{S_ST+31}]")
        A("s_waitcnt lgkmcnt(0)")
        A(f"s_sub_u32 s{S_T2}, s{S_ST+30}, s{S_T}")
        A(f"s_cmp_lt_i32 s{S_T2}, 0")
        A("s_cbranch_scc1 L_spin")
        A("L_nospin:")
    A(f"s_lshl_b32 s{S_T}, s2, 11")
    A(f"s_lshl_b32 s{S_T2}, s{S_WV}, 7")
    A(f"s_add_u32 s{S_T}, s{S_T}, s{S_T2}")
    A("v_mov_b32 v30, 0")
    A("v_cmp_eq_u32 vcc, 0, v0")
    A("s_and_saveexec_b64 s[4:5], vcc")
    for i in range(NSTAMP):
        A(f"v_mov_b32 v20, s{S_ST+2*i}")
        A(f"v_mov_b32 v21, s{S_ST+2*i+1}")
        A(f"buffer_store_dwordx2 v[20:21], v30, s[{R_WS}:{R_WS+3}], s{S_T} offen offset:{8*i}")
        A("s_waitcnt vmcnt(0)")
A("L_end:")
A("s_endpgm")
out = wrap(A.text(), 256, 512, LDS_TOTAL, 256, 100 if STAMPS else 60, 256, notes="N: 64x448 tile per workgroup, column-block-major")
open(sys.argv[1], "w").write(out)
```

```python
import sys, struct
from asmgen import *
def flag(n): return n in sys.argv
def opt(n, d, t=str): return t(sys.argv[sys.argv.index(n)+1]) if n in sys.argv else d
STAMPS = flag("--stamps"); PROBE = opt("--probe", None)
PF = not flag("--nopf"); TLB = flag("--tlb")
CYC = flag("--cyc"); FINE = flag("--fine")
CPF = opt("--cpf", 512, int)
STFL = opt("--st", "sc1", str); XFL = opt("--xfl", "", str)
if STFL == "plain": STFL = ""
PFP = opt("--pfp", 3, int)
XF = opt("--xfirst", 0, int)
def f2u(f): return struct.unpack("<I", struct.pack("<f", f))[0]
A = Asm()
P = 928; PS = 464
XB = 16384 * 896
RING = 128 * P
SLOT = 14336
SCR = RING + 2 * SLOT
LDS_TOTAL = 163840
OST = RING
assert RING + 3 * SLOT <= LDS_TOTAL and OST + 6 * 16 * PS <= LDS_TOTAL
S_X, S_G, S_B, S_W, S_O, S_WS = 4, 6, 8, 10, 12, 14
R_X, R_W, R_O, R_G, R_B, R_WS = 16, 20, 24, 28, 32, 36
S_WV, S_XO, S_WO, S_OO, S_ONE, S_T, S_RB, S_T2, S_MSK, S_PF, S_X2 = 40, 41, 42, 43, 44, 45, 46, 47, 48, 49, 50
S_ST = 66; NSTAMP = 16
def stamp(i, fine=False):
    if STAMPS and (fine == FINE or i == 0):
        A(f"{'s_memtime' if CYC else 's_memrealtime'} s[{S_ST+2*i}:{S_ST+2*i+1}]")
def srd2(d, b):
    A(f"s_mov_b32 s{d}, s{b}"); A(f"s_and_b32 s{d+1}, s{b+1}, 0xffff")
class Q:
    def __init__(s): s.vm = []; s.lg = []
q = Q()
def qwait(l, tag, name, cap):
    if tag not in l: return None
    idx = max(i for i, t in enumerate(l) if t == tag)
    n = len(l) - 1 - idx
    del l[:idx + 1]
    return f"s_waitcnt {name}({min(n,cap)})"
def emit(item):
    if isinstance(item, str): A(item); return
    if item[0] == "vm": q.vm.append(item[1]); A(item[2])
    elif item[0] == "lg": q.lg.append(item[1]); A(item[2])
    else:
        w = qwait(q.vm, item[1], "vmcnt", 63) if item[0] == "vmwait" else qwait(q.lg, item[1], "lgkmcnt", 15)
        if w: A(w)

V_XOFF, V_L16, V_LW, V_SR, V_T0, V_T1, V_AR, V_AR2, V_OW = 1, 2, 3, 4, 5, 6, 7, 8, 9
T = 10
X1, X2, G, Bv, F, GRAW = 16, 44, 72, 128, 184, 240
A("s_cmp_ge_u32 s2, 256")
A("s_cbranch_scc1 L_end")
stamp(0)
A("s_load_dwordx8 s[4:11], s[0:1], 0")
A("s_load_dwordx2 s[12:13], s[0:1], 32")
if STAMPS: A("s_load_dwordx2 s[14:15], s[0:1], 48")
if CPF:
    A("s_getpc_b64 s[54:55]")
    A("L_pc:")
    A("s_lshr_b32 s3, s2, 3")
    A(f"s_mul_i32 s3, s3, {CPF}")
    A("v_lshl_add_u32 v2, v0, 2, s3")
    A(f"v_cmp_gt_u32 vcc, {CPF//4}, v0")
    A("s_and_saveexec_b64 s[56:57], vcc")
    A("v_cmp_gt_u32 vcc, L_end-L_pc, v2")
    A("s_and_b64 exec, exec, vcc")
    A("s_cbranch_execz L_nocpf")
    A("global_load_dword v255, v2, s[54:55]")
    A("L_nocpf:")
    A("s_mov_b64 exec, s[56:57]")
A("v_lshrrev_b32 v1, 6, v0")
A("v_and_b32 v0, 63, v0")
A(f"v_readfirstlane_b32 s{S_WV}, v1")
A(f"v_lshrrev_b32 v{T}, 3, v0")
A(f"v_and_b32 v{T+1}, 7, v0")
A(f"v_lshlrev_b32 v{T+1}, 4, v{T+1}")
A(f"v_mul_u32_u24 v{V_XOFF}, 896, v{T}")
A(f"v_add_u32 v{V_XOFF}, v{V_XOFF}, v{T+1}")
A(f"v_lshlrev_b32 v{V_L16}, 4, v0")
A(f"s_lshr_b32 s{S_T}, s2, 4")
A(f"s_lshl_b32 s{S_T}, s{S_T}, 3")
A(f"s_and_b32 s{S_T2}, s2, 7")
A(f"s_add_u32 s{S_T}, s{S_T}, s{S_T2}")
A(f"s_mul_i32 s{S_OO}, s{S_T}, {128*896}")
A(f"s_mul_i32 s{S_T}, s{S_WV}, {8*896}")
A(f"s_add_u32 s{S_XO}, s{S_OO}, s{S_T}")
A(f"s_add_u32 s{S_X2}, s{S_XO}, {64*896}")
for r, n in ((R_G, 896), (R_B, 896), (R_X, XB), (R_W, 448 * 896)):
    A(f"s_mov_b32 s{r+2}, {n}"); A(f"s_mov_b32 s{r+3}, 0x20000")
A(f"s_cmp_lg_u32 s{S_WV}, 0")
A("s_waitcnt lgkmcnt(0)")
A("s_cbranch_scc1 L_nogb")
srd2(R_G, S_G); srd2(R_B, S_B)
A(f"buffer_load_dwordx4 {v(GRAW,4)}, v{V_L16}, s[{R_G}:{R_G+3}], 0 offen")
A(f"buffer_load_dwordx4 {v(GRAW+4,4)}, v{V_L16}, s[{R_B}:{R_B+3}], 0 offen")
A("L_nogb:")
srd2(R_X, S_X)
for i in range(7):
    emit(("vm", f"x1_{i}", f"buffer_load_dwordx4 {v(X1+4*i,4)}, v{V_XOFF}, s[{R_X}:{R_X+3}], s{S_XO} offen offset:{128*i} {XFL}"))
def x2load(i): return ("vm", f"x2_{i}", f"buffer_load_dwordx4 {v(X2+4*i,4)}, v{V_XOFF}, s[{R_X}:{R_X+3}], s{S_X2} offen offset:{128*i} {XFL}")
stamp(1)
srd2(R_W, S_W)
srd(A, R_O, S_O, XB)
if STAMPS: srd(A, R_WS, S_WS, 1 << 22)
A(f"s_bfe_u32 s{S_WO}, s2, 0x10003")
A(f"s_mul_i32 s{S_WO}, s{S_WO}, 448")
A(f"s_add_u32 s{S_OO}, s{S_OO}, s{S_WO}")
A(f"s_and_b32 s{S_PF}, s2, 0xf8")
A(f"s_add_u32 s{S_PF}, s{S_PF}, s{S_WV}")
A(f"s_mul_i32 s{S_PF}, s{S_PF}, 1568")
A(f"v_mul_u32_u24 v{V_LW}, {P}, v{T}")
A(f"v_add_u32 v{V_LW}, v{V_LW}, v{T+1}")
A(f"s_mul_i32 s{S_T}, s{S_WV}, {8*P}")
A(f"v_add_u32 v{V_LW}, s{S_T}, v{V_LW}")
A(f"v_lshlrev_b32 v{V_SR}, 1, v{T+1}")
A(f"v_add_u32 v{V_SR}, {SCR}, v{V_SR}")
A(f"v_and_b32 v{T}, 15, v0")
A(f"v_lshrrev_b32 v{T+1}, 4, v0")
A(f"v_mul_u32_u24 v{V_AR}, {P}, v{T}")
A(f"v_lshl_add_u32 v{V_AR}, v{T+1}, 4, v{V_AR}")
A(f"v_add_u32 v{V_AR2}, {64*P}, v{V_AR}")
A(f"s_lshl_b32 s{S_T}, s{S_WV}, 6")
A(f"s_add_u32 s{S_T}, s{S_T}, {RING}")
A(f"v_mul_u32_u24 v{V_OW}, {PS}, v{T}")
A(f"v_lshl_add_u32 v{V_OW}, v{T+1}, 3, v{V_OW}")
A(f"v_add_u32 v{V_OW}, s{S_T}, v{V_OW}")
A(f"v_lshrrev_b32 v{T+2}, 2, v0")
A(f"v_mul_u32_u24 v{V_T0}, 448, v{T+2}")
A(f"v_and_b32 v{T+2}, 3, v0")
A(f"v_lshl_add_u32 v{V_T0}, v{T+2}, 3, v{V_T0}")
A(f"v_add_u32 v{V_T0}, s{S_T}, v{V_T0}")
A(f"v_and_b32 v{T+1}, 1, v{T+1}")
A(f"v_lshlrev_b32 v{T+1}, 5, v{T+1}")
A(f"v_sub_u32 v{V_T1}, v{V_T0}, v{T+1}")
A(f"v_add_u32 v{V_T1}, 32, v{V_T1}")
A(f"v_add_u32 v{V_T0}, v{V_T0}, v{T+1}")
A(f"s_mov_b32 s{S_ONE}, 0x3f803f80")
A(f"s_mov_b32 s{S_MSK}, 0xffff0000")
A(f"s_cmp_lg_u32 s{S_WV}, 0")
A("s_cbranch_scc1 L_nogb2")
A(f"v_lshlrev_b32 v{T}, 5, v0")
A(f"v_add_u32 v{T}, {SCR}, v{T}")
A(f"s_waitcnt vmcnt(7)")
U = Bv + 40
for j in range(8):
    A(f"v_lshlrev_b32 v{U+2*j}, 16, v{GRAW+j}")
    A(f"v_and_b32 v{U+2*j+1}, s{S_MSK}, v{GRAW+j}")
A(f"ds_write_b128 v{T}, {v(U,4)}")
A(f"ds_write_b128 v{T}, {v(U+4,4)} offset:16")
A(f"ds_write_b128 v{T}, {v(U+8,4)} offset:2048")
A(f"ds_write_b128 v{T}, {v(U+12,4)} offset:2064")
A("s_waitcnt lgkmcnt(0)")
A("L_nogb2:")
for i in range(XF): emit(x2load(i))
RS = T + 4
def layernorm(X, tag, first, yoff, hook):
    SUM, SQ = T, T + 1
    for r in range(4): A(f"v_mov_b32 v{T+r}, 0")
    if first:
        A("s_barrier")
        stamp(2)
    for i in range(7):
        if first:
            A(f"ds_read_b128 {v(G+8*i,4)}, v{V_SR} offset:{256*i}")
            A(f"ds_read_b128 {v(G+8*i+4,4)}, v{V_SR} offset:{256*i+16}")
            A(f"ds_read_b128 {v(Bv+8*i,4)}, v{V_SR} offset:{2048+256*i}")
            A(f"ds_read_b128 {v(Bv+8*i+4,4)}, v{V_SR} offset:{2048+256*i+16}")
        emit(("vmwait", f"{tag}_{i}"))
        hook(i)
        for j in range(4):
            r = X + 4 * i + j
            A(f"v_dot2c_f32_bf16 v{SUM + 2*(j&1)}, s{S_ONE}, v{r}")
            A(f"v_dot2c_f32_bf16 v{SQ + 2*(j&1)}, v{r}, v{r}")
        if i < 6:
            for j in range(4):
                A(f"v_lshlrev_b32 v{F+8*i+2*j}, 16, v{X+4*i+j}")
                A(f"v_and_b32 v{F+8*i+2*j+1}, s{S_MSK}, v{X+4*i+j}")
    up = []
    for j in range(4):
        up.append(f"v_lshlrev_b32 v{F+48+2*j}, 16, v{X+24+j}")
        up.append(f"v_and_b32 v{F+48+2*j+1}, s{S_MSK}, v{X+24+j}")
    A(up[0]); A(up[1]); A(up[2])
    A(f"v_add_f32 v{SUM}, v{SUM}, v{SUM+2}")
    A(f"v_add_f32 v{SQ}, v{SQ}, v{SQ+2}")
    for n, dpp in enumerate(("quad_perm:[1,0,3,2]", "quad_perm:[2,3,0,1]", "row_half_mirror")):
        A(up[3 + n])
        A(f"v_add_f32_dpp v{SUM}, v{SUM}, v{SUM} {dpp} row_mask:0xf bank_mask:0xf")
        A(f"v_add_f32_dpp v{SQ}, v{SQ}, v{SQ} {dpp} row_mask:0xf bank_mask:0xf")
    MEAN = T + 2
    A(f"v_mul_f32 v{MEAN}, {f2u(1/448):#x}, v{SUM}")
    A(f"v_mul_f32 v{SQ}, {f2u(1/448):#x}, v{SQ}")
    A(f"v_fma_f32 v{SQ}, -v{MEAN}, v{MEAN}, v{SQ}")
    A(f"v_max_f32 v{SQ}, 0, v{SQ}")
    A(f"v_add_f32 v{SQ}, {f2u(1e-5):#x}, v{SQ}")
    A(f"v_rsq_f32 v{RS}, v{SQ}")
    A(up[6]); A(up[7])
    A(f"v_mul_f32 v{RS+1}, -v{MEAN}, v{RS}")
    stamp(3 if first else 5)
    if first: A("s_waitcnt lgkmcnt(0)")
    def s1(i): return [f"v_pk_fma_f32 {v(F+8*i+2*j,2)}, {v(F+8*i+2*j,2)}, {v(RS,2)}, {v(RS,2)} op_sel:[0,0,1] op_sel_hi:[1,0,1]" for j in range(4)]
    def s2(i): return [f"v_pk_fma_f32 {v(F+8*i+2*j,2)}, {v(F+8*i+2*j,2)}, {v(G+8*i+2*j,2)}, {v(Bv+8*i+2*j,2)}" for j in range(4)]
    def s3(i): return [f"v_cvt_pk_bf16_f32 v{X+4*i+j}, v{F+8*i+2*j}, v{F+8*i+2*j+1}" for j in range(4)] + \
                      [f"ds_write_b128 v{V_LW}, {v(X+4*i,4)} offset:{yoff + 128*i}"]
    for step in range(9):
        if step < 7:
            for l_ in s1(step): A(l_)
        if 0 <= step - 1 < 7:
            for l_ in s2(step - 1): A(l_)
        if 0 <= step - 2 < 7:
            for l_ in s3(step - 2): A(l_)
def pfissue():
    emit(("vm", "pf", f"buffer_load_dwordx4 {v(240,4)}, v{V_L16}, s[{R_W}:{R_W+3}], s{S_PF} offen"))
    A("s_mov_b32 exec_hi, 3")
    emit(("vm", "pf", f"buffer_load_dwordx4 {v(244,4)}, v{V_L16}, s[{R_W}:{R_W+3}], s{S_PF} offen offset:1024"))
    A("s_mov_b32 exec_hi, -1")
    if TLB: emit(("vm", "pf", f"buffer_load_dword v248, off, s[{R_O}:{R_O+3}], s{S_OO}"))
def hook1(i):
    if i + XF < 7: emit(x2load(i + XF))
    if PF and PFP < 0 and i == 6: pfissue()
def hook2(i):
    if PF and i == PFP: pfissue()
layernorm(X1, "x1", True, 0, hook1)
stamp(4)
layernorm(X2, "x2", False, 64 * P, hook2)
A(f"s_cmp_eq_u32 s{S_WV}, 7")
A("s_cbranch_scc1 L_w7")

hq = Q(); hq.vm = list(q.vm); q = Q()
WR = 16; ACC1 = 128; ACC2 = 160; AF = 176
def wreg(k, t): return WR + 8 * k + 4 * t
def trread(k):
    return [("lg", f"B{k}", f"ds_read_b64_tr_b16 {v(wreg(k,t)+2*hf,2)}, v{V_T1 if t else V_T0} offset:{SLOT*(k%3) + 16*448*hf}")
            for t in range(2) for hf in range(2)]
def aread(tag, buf, mt, k):
    return ("lg", tag, f"ds_read_b128 {v(AF+4*buf,4)}, v{V_AR if mt < 4 else V_AR2} offset:{(mt&3)*16*P + 64*k}")
def epi(areg, mt):
    out = []
    for t in range(2):
        d = areg + 4 * t
        out.append(f"v_cvt_pk_bf16_f32 v{d}, v{d}, v{d+1}")
        out.append(f"v_cvt_pk_bf16_f32 v{d+1}, v{d+2}, v{d+3}")
        out.append(("lg", f"OW{mt}", f"ds_write_b64 v{V_OW}, {v(d,2)} offset:{(mt%6)*16*PS + 32*t}"))
    return out
A("s_waitcnt lgkmcnt(0)")
stamp(6)
A("s_barrier")
for mt in range(4): emit(aread(f"A0_{mt}", mt, mt, 0))
A("s_barrier")
stamp(7)
for it in trread(0): emit(it)
BPOS = opt("--bpos", 1, int)
for k in range(14):
    if k % 2 == 0: stamp(1 + k // 2, True)
    fill = {}
    if k + 1 < 14:
        tr = trread(k + 1)
        fill[BPOS] = ["s_barrier"] + tr[:2]; fill[BPOS + 1] = tr[2:]
    else:
        fill[BPOS] = ["s_barrier"]
    emit(("lgwait", f"B{k}"))
    for mt in range(4):
        emit(("lgwait", f"A{k}_{mt}"))
        for t in range(2):
            d = ACC1 + 8 * mt + 4 * t
            A(f"v_mfma_f32_16x16x32_bf16 {v(d,4)}, {v(wreg(k,t),4)}, {v(AF+4*(4*(k&1)+mt),4)}, {'0' if k == 0 else v(d,4)}")
            if t == 0:
                if k + 1 < 14: emit(aread(f"A{k+1}_{mt}", 4 * ((k + 1) & 1) + mt, mt, k + 1))
                else: emit(aread(f"P4_{mt}", mt, 4, mt))
            for it in fill.get(2 * mt + t, []): emit(it)
stamp(8, True)
stamp(8)
seq = [(mt, k) for mt in range(4, 8) for k in range(14)]
PFD = 4
pub = []
for n, (mt, k) in enumerate(seq):
    if k == 0: stamp(5 + mt, True)
    emit(("lgwait", f"P{mt}_{k}"))
    for t in range(2):
        d = ACC2 + 8 * (mt & 1) + 4 * t
        A(f"v_mfma_f32_16x16x32_bf16 {v(d,4)}, {v(wreg(k,t),4)}, {v(AF+4*(n&7),4)}, {'0' if k == 0 else v(d,4)}")
        if t == 0 and n + PFD < len(seq): emit(aread(f"P{seq[n+PFD][0]}_{seq[n+PFD][1]}", (n + PFD) & 7, *seq[n + PFD]))
        if mt == 4 and 2 <= k < 10:
            e = epi(ACC1 + 8 * ((k - 2) // 2), (k - 2) // 2)
            if t == 1:
                for it in e[3 * (k & 1):3 * (k & 1) + 3]: emit(it)
        if mt > 4 and t == 1 and k in (3, 4):
            e = epi(ACC2 + 8 * ((mt - 1) & 1), mt - 1)
            for it in e[3 * (k - 3):3 * (k - 3) + 3]: emit(it)
    if mt == 4 and k == 7: emit(("lgwait", "OW1")); A("s_barrier"); pub.append([0, 1])
    if mt == 4 and k == 12: emit(("lgwait", "OW3")); A("s_barrier"); pub.append([2, 3])
    if mt > 4 and k == 8: emit(("lgwait", f"OW{mt-1}")); A("s_barrier"); pub.append([mt - 1])
stamp(13, True)
stamp(9)
A("s_nop 7")
for it in epi(ACC2 + 8, 7): emit(it)
emit(("lgwait", "OW7")); A("s_barrier"); pub.append([7])
stamp(10)
A("s_branch L_fin")

A("L_w7:")
q = hq
VW = 16; VO = 24; VR = 32; OB = 40
A(f"s_movk_i32 s{S_T}, {896-448}")
A(f"s_movk_i32 s{S_T2}, {PS-448}")
A(f"v_mul_u32_u24 v{T+2}, 2341, v0")
for i in range(7):
    if i: A(f"v_add_u32 v{T}, {64*i*2341}, v{T+2}")
    A(f"v_lshrrev_b32 v{T}, 16, v{T if i else T+2}")
    A(f"v_add_u32 v{T+1}, {1024*i}, v{V_L16}")
    A(f"v_mad_u32_u24 v{VO+i}, v{T}, s{S_T}, v{T+1}")
    A(f"v_mad_u32_u24 v{VR+i}, v{T}, s{S_T2}, v{T+1}")
    A(f"v_add_u32 v{VR+i}, {OST}, v{VR+i}")
    A(f"v_lshrrev_b32 v{T+1}, 2, v{T}")
    A(f"v_mul_u32_u24 v{T+1}, {4*896}, v{T+1}")
    A(f"v_and_b32 v{T}, 4, v{T}")
    A(f"v_lshlrev_b32 v{T}, 3, v{T}")
    A(f"v_xor_b32 v{T}, v{T}, v{VO+i}")
    A(f"v_add_u32 v{VW+i}, v{T}, v{T+1}")
    if i & 3: A(f"v_subrev_u32 v{VW+i}, {1024*(i&3)}, v{VW+i}")
def dma(k):
    out = []
    for hf in range(2):
        for i in range(7):
            if (i & 3) == 0:
                out.append(f"s_add_u32 m0, {RING + SLOT*(k%3) + 7168*hf + 1024*i}, 0")
                out.append(f"s_add_u32 s{S_T}, s{S_WO}, {(32*k + 4*hf)*896}")
            out.append(("vm", f"W{k}", f"buffer_load_dwordx4 v{VW+i}, s[{R_W}:{R_W+3}], s{S_T} offen offset:{1024*(i&3)} lds"))
    return out
def issue(l):
    for it in l: emit(it)
A("s_waitcnt lgkmcnt(0)")
stamp(6)
A("s_barrier")
issue(dma(0)); issue(dma(1)); issue(dma(2))
for k in range(14):
    emit(("vmwait", f"W{k}"))
    A("s_barrier")
    if k >= 1 and k + 2 < 14: issue(dma(k + 2))
stamp(8)
A("s_barrier")
for names in pub:
    A("s_barrier")
    for mt in names:
        b = OB + 28 * (mt & 3)
        for i in range(7): emit(("lg", f"R{mt}_{i}", f"ds_read_b128 {v(b+4*i,4)}, v{VR+i} offset:{(mt%6)*16*PS}"))
    for mt in names:
        b = OB + 28 * (mt & 3)
        for i in range(7):
            emit(("lgwait", f"R{mt}_{i}"))
            A(f"buffer_store_dwordx4 {v(b+4*i,4)}, v{VO+i}, s[{R_O}:{R_O+3}], s{S_OO} offen {STFL}")
        A(f"s_add_u32 s{S_OO}, s{S_OO}, {16*896}")
stamp(10)
A("L_fin:")
if STAMPS:
    A("s_waitcnt vmcnt(0)")
    stamp(11)
    A("s_waitcnt lgkmcnt(0)")
    if PROBE is not None:
        A(f"s_cmp_lg_u32 s{S_WV}, {PROBE[0]}")
        A("s_cbranch_scc1 L_nospin")
        if PROBE[1] == "f":
            A(f"s_mov_b32 s{S_T}, {int(PROBE[2:])}")
        else:
            pi, pj = int(PROBE[1], 16), int(PROBE[2], 16)
            A(f"s_sub_u32 s{S_T}, s{S_ST+2*pi}, s{S_ST+2*pj}")
            A(f"s_lshl_b32 s{S_T}, s{S_T}, 1")
            A(f"s_add_u32 s{S_T}, s{S_T}, 1500")
        A(f"s_add_u32 s{S_T}, s{S_T}, s{S_ST}")
        A("L_spin:")
        A(f"s_memrealtime s[{S_ST+30}:{S_ST+31}]")
        A("s_waitcnt lgkmcnt(0)")
        A(f"s_sub_u32 s{S_T2}, s{S_ST+30}, s{S_T}")
        A(f"s_cmp_lt_i32 s{S_T2}, 0")
        A("s_cbranch_scc1 L_spin")
        A("L_nospin:")
    A(f"s_lshl_b32 s{S_T}, s2, 11")
    A(f"s_lshl_b32 s{S_T2}, s{S_WV}, 7")
    A(f"s_add_u32 s{S_T}, s{S_T}, s{S_T2}")
    A("v_mov_b32 v14, 0")
    A("v_cmp_eq_u32 vcc, 0, v0")
    A("s_and_saveexec_b64 s[4:5], vcc")
    for i in range(NSTAMP):
        A(f"v_mov_b32 v12, s{S_ST+2*i}")
        A(f"v_mov_b32 v13, s{S_ST+2*i+1}")
        A(f"buffer_store_dwordx2 v[12:13], v14, s[{R_WS}:{R_WS+3}], s{S_T} offen offset:{8*i}")
        A("s_waitcnt vmcnt(0)")
A("L_end:")
A("s_endpgm")
out = wrap(A.text(), 256, 512, LDS_TOTAL, 256, 100 if STAMPS else 60, 256, notes="TA: 128x224 tile per workgroup")
open(sys.argv[1], "w").write(out)
```

```python
import sys, struct
from asmgen import *
def flag(n): return n in sys.argv
def opt(n, d, t=str): return t(sys.argv[sys.argv.index(n)+1]) if n in sys.argv else d
STAMPS = flag("--stamps"); PROBE = opt("--probe", None)
PF = not flag("--nopf"); TLB = flag("--tlb")
CYC = flag("--cyc"); FINE = flag("--fine")
CPF = opt("--cpf", 512, int)
STFL = opt("--st", "sc1", str); XFL = opt("--xfl", "", str)
if STFL == "plain": STFL = ""
PFP = opt("--pfp", 3, int)
XF = opt("--xfirst", 0, int)
def f2u(f): return struct.unpack("<I", struct.pack("<f", f))[0]
A = Asm()
P = 928; PS = 464
XB = 16384 * 896
RING = 128 * P
SLOT = 14336
SCR = RING + 2 * SLOT
LDS_TOTAL = 163840
OST = RING
assert RING + 3 * SLOT <= LDS_TOTAL and OST + 6 * 16 * PS <= LDS_TOTAL
S_X, S_G, S_B, S_W, S_O, S_WS = 4, 6, 8, 10, 12, 14
R_X, R_W, R_O, R_G, R_B, R_WS = 16, 20, 24, 28, 32, 36
S_WV, S_XO, S_WO, S_OO, S_ONE, S_T, S_RB, S_T2, S_MSK, S_PF, S_X2 = 40, 41, 42, 43, 44, 45, 46, 47, 48, 49, 50
S_ST = 66; NSTAMP = 16
def stamp(i, fine=False):
    if STAMPS and (fine == FINE or i == 0):
        A(f"{'s_memtime' if CYC else 's_memrealtime'} s[{S_ST+2*i}:{S_ST+2*i+1}]")
def srd2(d, b):
    A(f"s_mov_b32 s{d}, s{b}"); A(f"s_and_b32 s{d+1}, s{b+1}, 0xffff")
class Q:
    def __init__(s): s.vm = []; s.lg = []
q = Q()
def qwait(l, tag, name, cap):
    if tag not in l: return None
    idx = max(i for i, t in enumerate(l) if t == tag)
    n = len(l) - 1 - idx
    del l[:idx + 1]
    return f"s_waitcnt {name}({min(n,cap)})"
def emit(item):
    if isinstance(item, str): A(item); return
    if item[0] == "vm": q.vm.append(item[1]); A(item[2])
    elif item[0] == "lg": q.lg.append(item[1]); A(item[2])
    else:
        w = qwait(q.vm, item[1], "vmcnt", 63) if item[0] == "vmwait" else qwait(q.lg, item[1], "lgkmcnt", 15)
        if w: A(w)

V_XOFF, V_L16, V_LW, V_SR, V_T0, V_T1, V_AR, V_AR2, V_OW = 1, 2, 3, 4, 5, 6, 7, 8, 9
T = 10
X1, X2, G, Bv, F, GRAW = 16, 44, 72, 128, 184, 240
SW = opt('--sw', 3, int)
EARLYW = not flag('--latew')
A("s_cmp_ge_u32 s2, 256")
A("s_cbranch_scc1 L_end")
stamp(0)
A("s_load_dwordx8 s[4:11], s[0:1], 0")
A("s_load_dwordx2 s[12:13], s[0:1], 32")
if STAMPS: A("s_load_dwordx2 s[14:15], s[0:1], 48")
if CPF:
    A("s_getpc_b64 s[54:55]")
    A("L_pc:")
    A("s_lshr_b32 s3, s2, 3")
    A(f"s_mul_i32 s3, s3, {CPF}")
    A("v_lshl_add_u32 v2, v0, 2, s3")
    A(f"v_cmp_gt_u32 vcc, {CPF//4}, v0")
    A("s_and_saveexec_b64 s[56:57], vcc")
    A("v_cmp_gt_u32 vcc, L_end-L_pc, v2")
    A("s_and_b64 exec, exec, vcc")
    A("s_cbranch_execz L_nocpf")
    A("global_load_dword v255, v2, s[54:55]")
    A("L_nocpf:")
    A("s_mov_b64 exec, s[56:57]")
A("v_lshrrev_b32 v1, 6, v0")
A("v_and_b32 v0, 63, v0")
A(f"v_readfirstlane_b32 s{S_WV}, v1")
A(f"v_lshrrev_b32 v{T}, 3, v0")
A(f"v_and_b32 v{T+1}, 7, v0")
A(f"v_lshlrev_b32 v{T+1}, 4, v{T+1}")
A(f"v_mul_u32_u24 v{V_XOFF}, 896, v{T}")
A(f"v_add_u32 v{V_XOFF}, v{V_XOFF}, v{T+1}")
A(f"v_lshlrev_b32 v{V_L16}, 4, v0")
A(f"s_lshr_b32 s{S_T}, s2, 4")
A(f"s_lshl_b32 s{S_T}, s{S_T}, 3")
A(f"s_and_b32 s{S_T2}, s2, 7")
A(f"s_add_u32 s{S_T}, s{S_T}, s{S_T2}")
A(f"s_mul_i32 s{S_OO}, s{S_T}, {128*896}")
A(f"s_mul_i32 s{S_T}, s{S_WV}, {8*896}")
A(f"s_add_u32 s{S_XO}, s{S_OO}, s{S_T}")
A(f"s_add_u32 s{S_X2}, s{S_XO}, {64*896}")
for r, n in ((R_G, 896), (R_B, 896), (R_X, XB), (R_W, 448 * 896)):
    A(f"s_mov_b32 s{r+2}, {n}"); A(f"s_mov_b32 s{r+3}, 0x20000")
A(f"s_cmp_lg_u32 s{S_WV}, 0")
A("s_waitcnt lgkmcnt(0)")
A("s_cbranch_scc1 L_nogb")
srd2(R_G, S_G); srd2(R_B, S_B)
A(f"buffer_load_dwordx4 {v(GRAW,4)}, v{V_L16}, s[{R_G}:{R_G+3}], 0 offen")
A(f"buffer_load_dwordx4 {v(GRAW+4,4)}, v{V_L16}, s[{R_B}:{R_B+3}], 0 offen")
A("L_nogb:")
srd2(R_X, S_X)
for i in range(7):
    emit(("vm", f"x1_{i}", f"buffer_load_dwordx4 {v(X1+4*i,4)}, v{V_XOFF}, s[{R_X}:{R_X+3}], s{S_XO} offen offset:{128*i} {XFL}"))
def x2load(i): return ("vm", f"x2_{i}", f"buffer_load_dwordx4 {v(X2+4*i,4)}, v{V_XOFF}, s[{R_X}:{R_X+3}], s{S_X2} offen offset:{128*i} {XFL}")
stamp(1)
PRIO = opt("--prio", 0, int)
if PRIO:
    A(f"s_lshr_b32 s{S_T}, s{S_WV}, 2")
    A(f"s_cmp_eq_u32 s{S_T}, 0")
    A("s_cbranch_scc1 L_nop")
    A(f"s_setprio {PRIO}")
    A("L_nop:")
srd2(R_W, S_W)
srd(A, R_O, S_O, XB)
if STAMPS: srd(A, R_WS, S_WS, 1 << 22)
A(f"s_bfe_u32 s{S_WO}, s2, 0x10003")
A(f"s_mul_i32 s{S_WO}, s{S_WO}, 448")
A(f"s_add_u32 s{S_OO}, s{S_OO}, s{S_WO}")
A(f"s_and_b32 s{S_PF}, s2, 0xf8")
A(f"s_add_u32 s{S_PF}, s{S_PF}, s{S_WV}")
A(f"s_mul_i32 s{S_PF}, s{S_PF}, 1568")
A(f"v_mul_u32_u24 v{V_LW}, {P}, v{T}")
A(f"v_add_u32 v{V_LW}, v{V_LW}, v{T+1}")
A(f"s_mul_i32 s{S_T}, s{S_WV}, {8*P}")
A(f"v_add_u32 v{V_LW}, s{S_T}, v{V_LW}")
A(f"v_lshlrev_b32 v{V_SR}, 1, v{T+1}")
A(f"v_add_u32 v{V_SR}, {SCR}, v{V_SR}")
A(f"v_and_b32 v{T}, 15, v0")
A(f"v_lshrrev_b32 v{T+1}, 4, v0")
A(f"v_mul_u32_u24 v{V_AR}, {P}, v{T}")
A(f"v_lshl_add_u32 v{V_AR}, v{T+1}, 4, v{V_AR}")
A(f"v_add_u32 v{V_AR2}, {64*P}, v{V_AR}")
A(f"s_cmp_gt_u32 s{S_WV}, {SW}")
A(f"s_subb_u32 s{S_T}, s{S_WV}, 0")
A(f"s_lshl_b32 s{S_T}, s{S_T}, 6")
A(f"s_add_u32 s{S_T}, s{S_T}, {RING}")
A(f"v_mul_u32_u24 v{V_OW}, {PS}, v{T}")
A(f"v_lshl_add_u32 v{V_OW}, v{T+1}, 3, v{V_OW}")
A(f"v_add_u32 v{V_OW}, s{S_T}, v{V_OW}")
A(f"v_lshrrev_b32 v{T+2}, 2, v0")
A(f"v_mul_u32_u24 v{V_T0}, 448, v{T+2}")
A(f"v_and_b32 v{T+2}, 3, v0")
A(f"v_lshl_add_u32 v{V_T0}, v{T+2}, 3, v{V_T0}")
A(f"v_add_u32 v{V_T0}, s{S_T}, v{V_T0}")
A(f"v_and_b32 v{T+1}, 1, v{T+1}")
A(f"v_lshlrev_b32 v{T+1}, 5, v{T+1}")
A(f"v_sub_u32 v{V_T1}, v{V_T0}, v{T+1}")
A(f"v_add_u32 v{V_T1}, 32, v{V_T1}")
A(f"v_add_u32 v{V_T0}, v{V_T0}, v{T+1}")
A(f"s_mov_b32 s{S_ONE}, 0x3f803f80")
A(f"s_mov_b32 s{S_MSK}, 0xffff0000")
A(f"s_cmp_lg_u32 s{S_WV}, 0")
A("s_cbranch_scc1 L_nogb2")
A(f"v_lshlrev_b32 v{T}, 5, v0")
A(f"v_add_u32 v{T}, {SCR}, v{T}")
A(f"s_waitcnt vmcnt(7)")
U = Bv + 40
for j in range(8):
    A(f"v_lshlrev_b32 v{U+2*j}, 16, v{GRAW+j}")
    A(f"v_and_b32 v{U+2*j+1}, s{S_MSK}, v{GRAW+j}")
A(f"ds_write_b128 v{T}, {v(U,4)}")
A(f"ds_write_b128 v{T}, {v(U+4,4)} offset:16")
A(f"ds_write_b128 v{T}, {v(U+8,4)} offset:2048")
A(f"ds_write_b128 v{T}, {v(U+12,4)} offset:2064")
A("s_waitcnt lgkmcnt(0)")
A("L_nogb2:")
for i in range(XF): emit(x2load(i))
RS = T + 4
def layernorm(X, tag, first, yoff, hook):
    SUM, SQ = T, T + 1
    for r in range(4): A(f"v_mov_b32 v{T+r}, 0")
    if first:
        A("s_barrier")
        stamp(2)
    for i in range(7):
        if first:
            A(f"ds_read_b128 {v(G+8*i,4)}, v{V_SR} offset:{256*i}")
            A(f"ds_read_b128 {v(G+8*i+4,4)}, v{V_SR} offset:{256*i+16}")
            A(f"ds_read_b128 {v(Bv+8*i,4)}, v{V_SR} offset:{2048+256*i}")
            A(f"ds_read_b128 {v(Bv+8*i+4,4)}, v{V_SR} offset:{2048+256*i+16}")
        emit(("vmwait", f"{tag}_{i}"))
        hook(i)
        for j in range(4):
            r = X + 4 * i + j
            A(f"v_dot2c_f32_bf16 v{SUM + 2*(j&1)}, s{S_ONE}, v{r}")
            A(f"v_dot2c_f32_bf16 v{SQ + 2*(j&1)}, v{r}, v{r}")
        if i < 6:
            for j in range(4):
                A(f"v_lshlrev_b32 v{F+8*i+2*j}, 16, v{X+4*i+j}")
                A(f"v_and_b32 v{F+8*i+2*j+1}, s{S_MSK}, v{X+4*i+j}")
    up = []
    for j in range(4):
        up.append(f"v_lshlrev_b32 v{F+48+2*j}, 16, v{X+24+j}")
        up.append(f"v_and_b32 v{F+48+2*j+1}, s{S_MSK}, v{X+24+j}")
    A(up[0]); A(up[1]); A(up[2])
    A(f"v_add_f32 v{SUM}, v{SUM}, v{SUM+2}")
    A(f"v_add_f32 v{SQ}, v{SQ}, v{SQ+2}")
    for n, dpp in enumerate(("quad_perm:[1,0,3,2]", "quad_perm:[2,3,0,1]", "row_half_mirror")):
        A(up[3 + n])
        A(f"v_add_f32_dpp v{SUM}, v{SUM}, v{SUM} {dpp} row_mask:0xf bank_mask:0xf")
        A(f"v_add_f32_dpp v{SQ}, v{SQ}, v{SQ} {dpp} row_mask:0xf bank_mask:0xf")
    MEAN = T + 2
    A(f"v_mul_f32 v{MEAN}, {f2u(1/448):#x}, v{SUM}")
    A(f"v_mul_f32 v{SQ}, {f2u(1/448):#x}, v{SQ}")
    A(f"v_fma_f32 v{SQ}, -v{MEAN}, v{MEAN}, v{SQ}")
    A(f"v_max_f32 v{SQ}, 0, v{SQ}")
    A(f"v_add_f32 v{SQ}, {f2u(1e-5):#x}, v{SQ}")
    A(f"v_rsq_f32 v{RS}, v{SQ}")
    A(up[6]); A(up[7])
    A(f"v_mul_f32 v{RS+1}, -v{MEAN}, v{RS}")
    stamp(3 if first else 5)
    if first: A("s_waitcnt lgkmcnt(0)")
    def s1(i): return [f"v_pk_fma_f32 {v(F+8*i+2*j,2)}, {v(F+8*i+2*j,2)}, {v(RS,2)}, {v(RS,2)} op_sel:[0,0,1] op_sel_hi:[1,0,1]" for j in range(4)]
    def s2(i): return [f"v_pk_fma_f32 {v(F+8*i+2*j,2)}, {v(F+8*i+2*j,2)}, {v(G+8*i+2*j,2)}, {v(Bv+8*i+2*j,2)}" for j in range(4)]
    def s3(i): return [f"v_cvt_pk_bf16_f32 v{X+4*i+j}, v{F+8*i+2*j}, v{F+8*i+2*j+1}" for j in range(4)] + \
                      [f"ds_write_b128 v{V_LW}, {v(X+4*i,4)} offset:{yoff + 128*i}"]
    for step in range(9):
        if step < 7:
            for l_ in s1(step): A(l_)
        if 0 <= step - 1 < 7:
            for l_ in s2(step - 1): A(l_)
        if 0 <= step - 2 < 7:
            for l_ in s3(step - 2): A(l_)
def pfissue():
    emit(("vm", "pf", f"buffer_load_dwordx4 {v(240,4)}, v{V_L16}, s[{R_W}:{R_W+3}], s{S_PF} offen"))
    A("s_mov_b32 exec_hi, 3")
    emit(("vm", "pf", f"buffer_load_dwordx4 {v(244,4)}, v{V_L16}, s[{R_W}:{R_W+3}], s{S_PF} offen offset:1024"))
    A("s_mov_b32 exec_hi, -1")
    if TLB: emit(("vm", "pf", f"buffer_load_dword v248, off, s[{R_O}:{R_O+3}], s{S_OO}"))
def hook1(i):
    if i + XF < 7: emit(x2load(i + XF))
    if PF and PFP < 0 and i == 6: pfissue()
def hook2(i):
    if PF and i == PFP: pfissue()
layernorm(X1, "x1", True, 0, hook1)
stamp(4)
layernorm(X2, "x2", False, 64 * P, hook2)
A(f"s_cmp_eq_u32 s{S_WV}, {SW}")
A("s_cbranch_scc1 L_w7")

hq = Q(); hq.vm = list(q.vm); q = Q()
WR = 16; ACC1 = 128; ACC2 = 160; AF = 176
def wreg(k, t): return WR + 8 * k + 4 * t
def trread(k):
    return [("lg", f"B{k}", f"ds_read_b64_tr_b16 {v(wreg(k,t)+2*hf,2)}, v{V_T1 if t else V_T0} offset:{SLOT*(k%3) + 16*448*hf}")
            for t in range(2) for hf in range(2)]
def aread(tag, buf, mt, k):
    return ("lg", tag, f"ds_read_b128 {v(AF+4*buf,4)}, v{V_AR if mt < 4 else V_AR2} offset:{(mt&3)*16*P + 64*k}")
def epi(areg, mt):
    out = []
    for t in range(2):
        d = areg + 4 * t
        out.append(f"v_cvt_pk_bf16_f32 v{d}, v{d}, v{d+1}")
        out.append(f"v_cvt_pk_bf16_f32 v{d+1}, v{d+2}, v{d+3}")
        out.append(("lg", f"OW{mt}", f"ds_write_b64 v{V_OW}, {v(d,2)} offset:{(mt%6)*16*PS + 32*t}"))
    return out
A("s_waitcnt lgkmcnt(0)")
stamp(6)
if PRIO: A("s_setprio 0")
A("s_barrier")
for mt in range(4): emit(aread(f"A0_{mt}", mt, mt, 0))
if not EARLYW: A("s_barrier")
stamp(7)
for it in trread(0): emit(it)
BPOS = opt("--bpos", 1, int)
for k in range(14):
    if k % 2 == 0: stamp(1 + k // 2, True)
    fill = {}
    if k + 1 < 14:
        tr = trread(k + 1)
        fill[BPOS] = ["s_barrier"] + tr[:2]; fill[BPOS + 1] = tr[2:]
    else:
        fill[BPOS] = ["s_barrier"]
    emit(("lgwait", f"B{k}"))
    for mt in range(4):
        emit(("lgwait", f"A{k}_{mt}"))
        for t in range(2):
            d = ACC1 + 8 * mt + 4 * t
            A(f"v_mfma_f32_16x16x32_bf16 {v(d,4)}, {v(wreg(k,t),4)}, {v(AF+4*(4*(k&1)+mt),4)}, {'0' if k == 0 else v(d,4)}")
            if t == 0:
                if k + 1 < 14: emit(aread(f"A{k+1}_{mt}", 4 * ((k + 1) & 1) + mt, mt, k + 1))
                else: emit(aread(f"P4_{mt}", mt, 4, mt))
            for it in fill.get(2 * mt + t, []): emit(it)
stamp(8, True)
stamp(8)
seq = [(mt, k) for mt in range(4, 8) for k in range(14)]
PFD = 4
pub = []
for n, (mt, k) in enumerate(seq):
    if k == 0: stamp(5 + mt, True)
    emit(("lgwait", f"P{mt}_{k}"))
    for t in range(2):
        d = ACC2 + 8 * (mt & 1) + 4 * t
        A(f"v_mfma_f32_16x16x32_bf16 {v(d,4)}, {v(wreg(k,t),4)}, {v(AF+4*(n&7),4)}, {'0' if k == 0 else v(d,4)}")
        if t == 0 and n + PFD < len(seq): emit(aread(f"P{seq[n+PFD][0]}_{seq[n+PFD][1]}", (n + PFD) & 7, *seq[n + PFD]))
        if mt == 4 and 2 <= k < 10:
            e = epi(ACC1 + 8 * ((k - 2) // 2), (k - 2) // 2)
            if t == 1:
                for it in e[3 * (k & 1):3 * (k & 1) + 3]: emit(it)
        if mt > 4 and t == 1 and k in (3, 4):
            e = epi(ACC2 + 8 * ((mt - 1) & 1), mt - 1)
            for it in e[3 * (k - 3):3 * (k - 3) + 3]: emit(it)
    if mt == 4 and k == 7: emit(("lgwait", "OW1")); A("s_barrier"); pub.append([0, 1])
    if mt == 4 and k == 12: emit(("lgwait", "OW3")); A("s_barrier"); pub.append([2, 3])
    if mt > 4 and k == 8: emit(("lgwait", f"OW{mt-1}")); A("s_barrier"); pub.append([mt - 1])
stamp(13, True)
stamp(9)
A("s_nop 7")
for it in epi(ACC2 + 8, 7): emit(it)
emit(("lgwait", "OW7")); A("s_barrier"); pub.append([7])
stamp(10)
A("s_branch L_fin")

A("L_w7:")
q = hq
VW = 16; VO = 24; VR = 32; OB = 40
A(f"s_movk_i32 s{S_T}, {896-448}")
A(f"s_movk_i32 s{S_T2}, {PS-448}")
A(f"v_mul_u32_u24 v{T+2}, 2341, v0")
for i in range(7):
    if i: A(f"v_add_u32 v{T}, {64*i*2341}, v{T+2}")
    A(f"v_lshrrev_b32 v{T}, 16, v{T if i else T+2}")
    A(f"v_add_u32 v{T+1}, {1024*i}, v{V_L16}")
    A(f"v_mad_u32_u24 v{VO+i}, v{T}, s{S_T}, v{T+1}")
    A(f"v_mad_u32_u24 v{VR+i}, v{T}, s{S_T2}, v{T+1}")
    A(f"v_add_u32 v{VR+i}, {OST}, v{VR+i}")
    A(f"v_lshrrev_b32 v{T+1}, 2, v{T}")
    A(f"v_mul_u32_u24 v{T+1}, {4*896}, v{T+1}")
    A(f"v_and_b32 v{T}, 4, v{T}")
    A(f"v_lshlrev_b32 v{T}, 3, v{T}")
    A(f"v_xor_b32 v{T}, v{T}, v{VO+i}")
    A(f"v_add_u32 v{VW+i}, v{T}, v{T+1}")
    if i & 3: A(f"v_subrev_u32 v{VW+i}, {1024*(i&3)}, v{VW+i}")
def dma(k):
    out = []
    for hf in range(2):
        for i in range(7):
            if (i & 3) == 0:
                out.append(f"s_add_u32 m0, {RING + SLOT*(k%3) + 7168*hf + 1024*i}, 0")
                out.append(f"s_add_u32 s{S_T}, s{S_WO}, {(32*k + 4*hf)*896}")
            out.append(("vm", f"W{k}", f"buffer_load_dwordx4 v{VW+i}, s[{R_W}:{R_W+3}], s{S_T} offen offset:{1024*(i&3)} lds"))
    return out
def issue(l):
    for it in l: emit(it)
A("s_waitcnt lgkmcnt(0)")
stamp(6)
if not EARLYW: A("s_barrier")
issue(dma(0)); issue(dma(1))
if not EARLYW: issue(dma(2))
for k in range(14):
    emit(("vmwait", f"W{k}"))
    A("s_barrier")
    if (k >= 1 or EARLYW) and k + 2 < 14: issue(dma(k + 2))
stamp(8)
A("s_barrier")
for names in pub:
    A("s_barrier")
    for mt in names:
        b = OB + 28 * (mt & 3)
        for i in range(7): emit(("lg", f"R{mt}_{i}", f"ds_read_b128 {v(b+4*i,4)}, v{VR+i} offset:{(mt%6)*16*PS}"))
    for mt in names:
        b = OB + 28 * (mt & 3)
        for i in range(7):
            emit(("lgwait", f"R{mt}_{i}"))
            A(f"buffer_store_dwordx4 {v(b+4*i,4)}, v{VO+i}, s[{R_O}:{R_O+3}], s{S_OO} offen {STFL}")
        A(f"s_add_u32 s{S_OO}, s{S_OO}, {16*896}")
stamp(10)
A("L_fin:")
if STAMPS:
    A("s_waitcnt vmcnt(0)")
    stamp(11)
    A("s_waitcnt lgkmcnt(0)")
    if PROBE is not None:
        A(f"s_cmp_lg_u32 s{S_WV}, {PROBE[0]}")
        A("s_cbranch_scc1 L_nospin")
        if PROBE[1] == "f":
            A(f"s_mov_b32 s{S_T}, {int(PROBE[2:])}")
        else:
            pi, pj = int(PROBE[1], 16), int(PROBE[2], 16)
            A(f"s_sub_u32 s{S_T}, s{S_ST+2*pi}, s{S_ST+2*pj}")
            A(f"s_lshl_b32 s{S_T}, s{S_T}, 1")
            A(f"s_add_u32 s{S_T}, s{S_T}, 1500")
        A(f"s_add_u32 s{S_T}, s{S_T}, s{S_ST}")
        A("L_spin:")
        A(f"s_memrealtime s[{S_ST+30}:{S_ST+31}]")
        A("s_waitcnt lgkmcnt(0)")
        A(f"s_sub_u32 s{S_T2}, s{S_ST+30}, s{S_T}")
        A(f"s_cmp_lt_i32 s{S_T2}, 0")
        A("s_cbranch_scc1 L_spin")
        A("L_nospin:")
    A(f"s_lshl_b32 s{S_T}, s2, 11")
    A(f"s_lshl_b32 s{S_T2}, s{S_WV}, 7")
    A(f"s_add_u32 s{S_T}, s{S_T}, s{S_T2}")
    A("v_mov_b32 v14, 0")
    A("v_cmp_eq_u32 vcc, 0, v0")
    A("s_and_saveexec_b64 s[4:5], vcc")
    for i in range(NSTAMP):
        A(f"v_mov_b32 v12, s{S_ST+2*i}")
        A(f"v_mov_b32 v13, s{S_ST+2*i+1}")
        A(f"buffer_store_dwordx2 v[12:13], v14, s[{R_WS}:{R_WS+3}], s{S_T} offen offset:{8*i}")
        A("s_waitcnt vmcnt(0)")
A("L_end:")
A("s_endpgm")
out = wrap(A.text(), 256, 512, LDS_TOTAL, 256, 100 if STAMPS else 60, 256, notes="TC: 128x224 tile per workgroup")
open(sys.argv[1], "w").write(out)
```

```python
import sys, struct
from asmgen import *
def flag(n): return n in sys.argv
def opt(n, d, t=str): return t(sys.argv[sys.argv.index(n)+1]) if n in sys.argv else d
STAMPS = flag("--stamps"); PROBE = opt("--probe", None)
PF = not flag("--nopf"); TLB = flag("--tlb")
CYC = flag("--cyc"); FINE = flag("--fine")
CPF = opt("--cpf", 512, int)
STFL = opt("--st", "sc1", str); XFL = opt("--xfl", "", str)
if STFL == "plain": STFL = ""
PFP = opt("--pfp", 3, int)
XF = opt("--xfirst", 0, int)
def f2u(f): return struct.unpack("<I", struct.pack("<f", f))[0]
A = Asm()
P = 928; PS = 464
XB = 16384 * 896
RING = 128 * P
SLOT = 14336
SCR = RING + 2 * SLOT
LDS_TOTAL = 163840
OST = RING
assert RING + 3 * SLOT <= LDS_TOTAL and OST + 6 * 16 * PS <= LDS_TOTAL
S_X, S_G, S_B, S_W, S_O, S_WS = 4, 6, 8, 10, 12, 14
R_X, R_W, R_O, R_G, R_B, R_WS = 16, 20, 24, 28, 32, 36
S_WV, S_XO, S_WO, S_OO, S_ONE, S_T, S_RB, S_T2, S_MSK, S_PF, S_X2 = 40, 41, 42, 43, 44, 45, 46, 47, 48, 49, 50
S_ST = 66; NSTAMP = 16
def stamp(i, fine=False):
    if STAMPS and (fine == FINE or i == 0):
        A(f"{'s_memtime' if CYC else 's_memrealtime'} s[{S_ST+2*i}:{S_ST+2*i+1}]")
def srd2(d, b):
    A(f"s_mov_b32 s{d}, s{b}"); A(f"s_and_b32 s{d+1}, s{b+1}, 0xffff")
class Q:
    def __init__(s): s.vm = []; s.lg = []
q = Q()
def qwait(l, tag, name, cap):
    if tag not in l: return None
    idx = max(i for i, t in enumerate(l) if t == tag)
    n = len(l) - 1 - idx
    del l[:idx + 1]
    return f"s_waitcnt {name}({min(n,cap)})"
def emit(item):
    if isinstance(item, str): A(item); return
    if item[0] == "vm": q.vm.append(item[1]); A(item[2])
    elif item[0] == "lg": q.lg.append(item[1]); A(item[2])
    else:
        w = qwait(q.vm, item[1], "vmcnt", 63) if item[0] == "vmwait" else qwait(q.lg, item[1], "lgkmcnt", 15)
        if w: A(w)

V_XOFF, V_L16, V_LW, V_SR, V_T0, V_T1, V_AR, V_AR2, V_OW = 1, 2, 3, 4, 5, 6, 7, 8, 9
V_MSK, V_ONE = 250, 251
T = 10
X1, X2, G, Bv, F, GRAW = 16, 44, 72, 128, 184, 240
SW = opt('--sw', 3, int)
EARLYW = not flag('--latew')
A("s_cmp_ge_u32 s2, 256")
A("s_cbranch_scc1 L_end")
stamp(0)
A("s_load_dwordx8 s[4:11], s[0:1], 0")
A("s_load_dwordx2 s[12:13], s[0:1], 32")
if STAMPS: A("s_load_dwordx2 s[14:15], s[0:1], 48")
if CPF:
    A("s_getpc_b64 s[54:55]")
    A("L_pc:")
    A("s_lshr_b32 s3, s2, 3")
    A(f"s_mul_i32 s3, s3, {CPF}")
    A("v_lshl_add_u32 v2, v0, 2, s3")
    A(f"v_cmp_gt_u32 vcc, {CPF//4}, v0")
    A("s_and_saveexec_b64 s[56:57], vcc")
    A("v_cmp_gt_u32 vcc, L_end-L_pc, v2")
    A("s_and_b64 exec, exec, vcc")
    A("s_cbranch_execz L_nocpf")
    A("global_load_dword v255, v2, s[54:55]")
    A("L_nocpf:")
    A("s_mov_b64 exec, s[56:57]")
A("v_lshrrev_b32 v1, 6, v0")
A("v_and_b32 v0, 63, v0")
A(f"v_readfirstlane_b32 s{S_WV}, v1")
A(f"v_lshrrev_b32 v{T}, 3, v0")
A(f"v_and_b32 v{T+1}, 7, v0")
A(f"v_lshlrev_b32 v{T+1}, 4, v{T+1}")
A(f"v_mul_u32_u24 v{V_XOFF}, 896, v{T}")
A(f"v_add_u32 v{V_XOFF}, v{V_XOFF}, v{T+1}")
A(f"v_lshlrev_b32 v{V_L16}, 4, v0")
A(f"s_lshr_b32 s{S_T}, s2, 4")
A(f"s_lshl_b32 s{S_T}, s{S_T}, 3")
A(f"s_and_b32 s{S_T2}, s2, 7")
A(f"s_add_u32 s{S_T}, s{S_T}, s{S_T2}")
A(f"s_mul_i32 s{S_OO}, s{S_T}, {128*896}")
A(f"s_mul_i32 s{S_T}, s{S_WV}, {8*896}")
A(f"s_add_u32 s{S_XO}, s{S_OO}, s{S_T}")
A(f"s_add_u32 s{S_X2}, s{S_XO}, {64*896}")
for r, n in ((R_G, 896), (R_B, 896), (R_X, XB), (R_W, 448 * 896)):
    A(f"s_mov_b32 s{r+2}, {n}"); A(f"s_mov_b32 s{r+3}, 0x20000")
A(f"s_cmp_lg_u32 s{S_WV}, 0")
A("s_waitcnt lgkmcnt(0)")
A("s_cbranch_scc1 L_nogb")
srd2(R_G, S_G); srd2(R_B, S_B)
A(f"buffer_load_dwordx4 {v(GRAW,4)}, v{V_L16}, s[{R_G}:{R_G+3}], 0 offen")
A(f"buffer_load_dwordx4 {v(GRAW+4,4)}, v{V_L16}, s[{R_B}:{R_B+3}], 0 offen")
A("L_nogb:")
srd2(R_X, S_X)
for i in range(7):
    emit(("vm", f"x1_{i}", f"buffer_load_dwordx4 {v(X1+4*i,4)}, v{V_XOFF}, s[{R_X}:{R_X+3}], s{S_XO} offen offset:{128*i} {XFL}"))
def x2load(i): return ("vm", f"x2_{i}", f"buffer_load_dwordx4 {v(X2+4*i,4)}, v{V_XOFF}, s[{R_X}:{R_X+3}], s{S_X2} offen offset:{128*i} {XFL}")
stamp(1)
PRIO = opt("--prio", 0, int)
if PRIO:
    A(f"s_lshr_b32 s{S_T}, s{S_WV}, 2")
    A(f"s_cmp_eq_u32 s{S_T}, 0")
    A("s_cbranch_scc1 L_nop")
    A(f"s_setprio {PRIO}")
    A("L_nop:")
srd2(R_W, S_W)
srd(A, R_O, S_O, XB)
if STAMPS: srd(A, R_WS, S_WS, 1 << 22)
A(f"s_bfe_u32 s{S_WO}, s2, 0x10003")
A(f"s_mul_i32 s{S_WO}, s{S_WO}, 448")
A(f"s_add_u32 s{S_OO}, s{S_OO}, s{S_WO}")
A(f"s_and_b32 s{S_PF}, s2, 0xf8")
A(f"s_add_u32 s{S_PF}, s{S_PF}, s{S_WV}")
A(f"s_mul_i32 s{S_PF}, s{S_PF}, 1568")
A(f"v_mul_u32_u24 v{V_LW}, {P}, v{T}")
A(f"v_add_u32 v{V_LW}, v{V_LW}, v{T+1}")
A(f"s_mul_i32 s{S_T}, s{S_WV}, {8*P}")
A(f"v_add_u32 v{V_LW}, s{S_T}, v{V_LW}")
A(f"v_lshlrev_b32 v{V_SR}, 1, v{T+1}")
A(f"v_add_u32 v{V_SR}, {SCR}, v{V_SR}")
A(f"v_and_b32 v{T}, 15, v0")
A(f"v_lshrrev_b32 v{T+1}, 4, v0")
A(f"v_mul_u32_u24 v{V_AR}, {P}, v{T}")
A(f"v_lshl_add_u32 v{V_AR}, v{T+1}, 4, v{V_AR}")
A(f"v_add_u32 v{V_AR2}, {64*P}, v{V_AR}")
A(f"s_cmp_gt_u32 s{S_WV}, {SW}")
A(f"s_subb_u32 s{S_T}, s{S_WV}, 0")
A(f"s_lshl_b32 s{S_T}, s{S_T}, 6")
A(f"s_add_u32 s{S_T}, s{S_T}, {RING}")
A(f"v_mul_u32_u24 v{V_OW}, {PS}, v{T}")
A(f"v_lshl_add_u32 v{V_OW}, v{T+1}, 3, v{V_OW}")
A(f"v_add_u32 v{V_OW}, s{S_T}, v{V_OW}")
A(f"v_lshrrev_b32 v{T+2}, 2, v0")
A(f"v_mul_u32_u24 v{V_T0}, 448, v{T+2}")
A(f"v_and_b32 v{T+2}, 3, v0")
A(f"v_lshl_add_u32 v{V_T0}, v{T+2}, 3, v{V_T0}")
A(f"v_add_u32 v{V_T0}, s{S_T}, v{V_T0}")
A(f"v_and_b32 v{T+1}, 1, v{T+1}")
A(f"v_lshlrev_b32 v{T+1}, 5, v{T+1}")
A(f"v_sub_u32 v{V_T1}, v{V_T0}, v{T+1}")
A(f"v_add_u32 v{V_T1}, 32, v{V_T1}")
A(f"v_add_u32 v{V_T0}, v{V_T0}, v{T+1}")
A(f"v_mov_b32 v{V_MSK}, 0xffff0000")
A(f"v_mov_b32 v{V_ONE}, 0x3f803f80")
A(f"s_cmp_lg_u32 s{S_WV}, 0")
A("s_cbranch_scc1 L_nogb2")
A(f"v_lshlrev_b32 v{T}, 5, v0")
A(f"v_add_u32 v{T}, {SCR}, v{T}")
A(f"s_waitcnt vmcnt(7)")
U = Bv + 40
for j in range(8):
    A(f"v_lshlrev_b32 v{U+2*j}, 16, v{GRAW+j}")
    A(f"v_and_b32 v{U+2*j+1}, v{V_MSK}, v{GRAW+j}")
A(f"ds_write_b128 v{T}, {v(U,4)}")
A(f"ds_write_b128 v{T}, {v(U+4,4)} offset:16")
A(f"ds_write_b128 v{T}, {v(U+8,4)} offset:2048")
A(f"ds_write_b128 v{T}, {v(U+12,4)} offset:2064")
A("s_waitcnt lgkmcnt(0)")
A("L_nogb2:")
for i in range(XF): emit(x2load(i))
RS = T + 4
def layernorm(X, tag, first, yoff, hook):
    SUM, SQ = T, T + 1
    for r in range(4): A(f"v_mov_b32 v{T+r}, 0")
    GP = opt("--gpos", 0, int)
    for i in range(7):
        if first and i == GP:
            A("s_barrier")
            stamp(2)
        if first and i >= GP:
            for c in range(7):
                if GP + c * (7 - GP) // 7 == i:
                    A(f"ds_read_b128 {v(G+8*c,4)}, v{V_SR} offset:{256*c}")
                    A(f"ds_read_b128 {v(G+8*c+4,4)}, v{V_SR} offset:{256*c+16}")
                    A(f"ds_read_b128 {v(Bv+8*c,4)}, v{V_SR} offset:{2048+256*c}")
                    A(f"ds_read_b128 {v(Bv+8*c+4,4)}, v{V_SR} offset:{2048+256*c+16}")
        emit(("vmwait", f"{tag}_{i}"))
        hook(i)
        for j in range(4):
            r = X + 4 * i + j
            A(f"v_dot2c_f32_bf16 v{SUM + 2*(j&1)}, v{V_ONE}, v{r}")
            A(f"v_dot2c_f32_bf16 v{SQ + 2*(j&1)}, v{r}, v{r}")
        if i < 6:
            for j in range(4):
                A(f"v_lshlrev_b32 v{F+8*i+2*j}, 16, v{X+4*i+j}")
                A(f"v_and_b32 v{F+8*i+2*j+1}, v{V_MSK}, v{X+4*i+j}")
    up = []
    for j in range(4):
        up.append(f"v_lshlrev_b32 v{F+48+2*j}, 16, v{X+24+j}")
        up.append(f"v_and_b32 v{F+48+2*j+1}, v{V_MSK}, v{X+24+j}")
    A(up[0]); A(up[1]); A(up[2])
    A(f"v_add_f32 v{SUM}, v{SUM}, v{SUM+2}")
    A(f"v_add_f32 v{SQ}, v{SQ}, v{SQ+2}")
    for n, dpp in enumerate(("quad_perm:[1,0,3,2]", "quad_perm:[2,3,0,1]", "row_half_mirror")):
        A(up[3 + n])
        A(f"v_add_f32_dpp v{SUM}, v{SUM}, v{SUM} {dpp} row_mask:0xf bank_mask:0xf")
        A(f"v_add_f32_dpp v{SQ}, v{SQ}, v{SQ} {dpp} row_mask:0xf bank_mask:0xf")
    MEAN = T + 2
    A(f"v_mul_f32 v{MEAN}, {f2u(1/448):#x}, v{SUM}")
    A(f"v_mul_f32 v{SQ}, {f2u(1/448):#x}, v{SQ}")
    A(f"v_fma_f32 v{SQ}, -v{MEAN}, v{MEAN}, v{SQ}")
    A(f"v_max_f32 v{SQ}, 0, v{SQ}")
    A(f"v_add_f32 v{SQ}, {f2u(1e-5):#x}, v{SQ}")
    A(f"v_rsq_f32 v{RS}, v{SQ}")
    A(up[6]); A(up[7])
    A(f"v_mul_f32 v{RS+1}, -v{MEAN}, v{RS}")
    stamp(3 if first else 5)
    if first: A("s_waitcnt lgkmcnt(0)")
    def s1(i): return [f"v_pk_fma_f32 {v(F+8*i+2*j,2)}, {v(F+8*i+2*j,2)}, {v(RS,2)}, {v(RS,2)} op_sel:[0,0,1] op_sel_hi:[1,0,1]" for j in range(4)]
    def s2(i): return [f"v_pk_fma_f32 {v(F+8*i+2*j,2)}, {v(F+8*i+2*j,2)}, {v(G+8*i+2*j,2)}, {v(Bv+8*i+2*j,2)}" for j in range(4)]
    def s3(i): return [f"v_cvt_pk_bf16_f32 v{X+4*i+j}, v{F+8*i+2*j}, v{F+8*i+2*j+1}" for j in range(4)] + \
                      [f"ds_write_b128 v{V_LW}, {v(X+4*i,4)} offset:{yoff + 128*i}"]
    for step in range(9):
        if step < 7:
            for l_ in s1(step): A(l_)
        if 0 <= step - 1 < 7:
            for l_ in s2(step - 1): A(l_)
        if 0 <= step - 2 < 7:
            for l_ in s3(step - 2): A(l_)
def pfissue():
    emit(("vm", "pf", f"buffer_load_dwordx4 {v(240,4)}, v{V_L16}, s[{R_W}:{R_W+3}], s{S_PF} offen"))
    A("s_mov_b32 exec_hi, 3")
    emit(("vm", "pf", f"buffer_load_dwordx4 {v(244,4)}, v{V_L16}, s[{R_W}:{R_W+3}], s{S_PF} offen offset:1024"))
    A("s_mov_b32 exec_hi, -1")
    if TLB: emit(("vm", "pf", f"buffer_load_dword v248, off, s[{R_O}:{R_O+3}], s{S_OO}"))
def hook1(i):
    if i + XF < 7: emit(x2load(i + XF))
    if PF and PFP < 0 and i == 6: pfissue()
def hook2(i):
    if PF and i == PFP: pfissue()
layernorm(X1, "x1", True, 0, hook1)
stamp(4)
layernorm(X2, "x2", False, 64 * P, hook2)
A(f"s_cmp_eq_u32 s{S_WV}, {SW}")
A("s_cbranch_scc1 L_w7")

hq = Q(); hq.vm = list(q.vm); q = Q()
WR = 16; ACC1 = 128; ACC2 = 160; AF = 176
def wreg(k, t): return WR + 8 * k + 4 * t
def trread(k):
    return [("lg", f"B{k}", f"ds_read_b64_tr_b16 {v(wreg(k,t)+2*hf,2)}, v{V_T1 if t else V_T0} offset:{SLOT*(k%3) + 16*448*hf}")
            for t in range(2) for hf in range(2)]
def aread(tag, buf, mt, k):
    return ("lg", tag, f"ds_read_b128 {v(AF+4*buf,4)}, v{V_AR if mt < 4 else V_AR2} offset:{(mt&3)*16*P + 64*k}")
def epi(areg, mt):
    out = []
    for t in range(2):
        d = areg + 4 * t
        out.append(f"v_cvt_pk_bf16_f32 v{d}, v{d}, v{d+1}")
        out.append(f"v_cvt_pk_bf16_f32 v{d+1}, v{d+2}, v{d+3}")
        out.append(("lg", f"OW{mt}", f"ds_write_b64 v{V_OW}, {v(d,2)} offset:{(mt%6)*16*PS + 32*t}"))
    return out
A("s_waitcnt lgkmcnt(0)")
stamp(6)
if PRIO: A("s_setprio 0")
A("s_barrier")
for mt in range(4): emit(aread(f"A0_{mt}", mt, mt, 0))
if not EARLYW: A("s_barrier")
stamp(7)
for it in trread(0): emit(it)
BPOS = opt("--bpos", 1, int)
for k in range(14):
    if k % 2 == 0: stamp(1 + k // 2, True)
    fill = {}
    if k + 1 < 14:
        tr = trread(k + 1)
        fill[BPOS] = ([] if flag("--nobar") else ["s_barrier"]) + tr[:2]; fill[BPOS + 1] = tr[2:]
    else:
        fill[BPOS] = ["s_barrier"]
    emit(("lgwait", f"B{k}"))
    for mt in range(4):
        emit(("lgwait", f"A{k}_{mt}"))
        for t in range(2):
            d = ACC1 + 8 * mt + 4 * t
            A(f"v_mfma_f32_16x16x32_bf16 {v(d,4)}, {v(wreg(k,t),4)}, {v(AF+4*(4*(k&1)+mt),4)}, {'0' if k == 0 else v(d,4)}")
            if t == 0:
                if k + 1 < 14: emit(aread(f"A{k+1}_{mt}", 4 * ((k + 1) & 1) + mt, mt, k + 1))
                else: emit(aread(f"P4_{mt}", mt, 4, mt))
            for it in fill.get(2 * mt + t, []): emit(it)
stamp(8, True)
stamp(8)
seq = [(mt, k) for mt in range(4, 8) for k in range(14)]
PFD = 4
pub = []
for n, (mt, k) in enumerate(seq):
    if k == 0: stamp(5 + mt, True)
    emit(("lgwait", f"P{mt}_{k}"))
    for t in range(2):
        d = ACC2 + 8 * (mt & 1) + 4 * t
        A(f"v_mfma_f32_16x16x32_bf16 {v(d,4)}, {v(wreg(k,t),4)}, {v(AF+4*(n&7),4)}, {'0' if k == 0 else v(d,4)}")
        if t == 0 and n + PFD < len(seq): emit(aread(f"P{seq[n+PFD][0]}_{seq[n+PFD][1]}", (n + PFD) & 7, *seq[n + PFD]))
        if mt == 4 and 2 <= k < 10:
            e = epi(ACC1 + 8 * ((k - 2) // 2), (k - 2) // 2)
            if t == 1:
                for it in e[3 * (k & 1):3 * (k & 1) + 3]: emit(it)
        if mt > 4 and t == 1 and k in (3, 4):
            e = epi(ACC2 + 8 * ((mt - 1) & 1), mt - 1)
            for it in e[3 * (k - 3):3 * (k - 3) + 3]: emit(it)
    if mt == 4 and k == 7: emit(("lgwait", "OW1")); A("s_barrier"); pub.append([0, 1])
    if mt == 4 and k == 12: emit(("lgwait", "OW3")); A("s_barrier"); pub.append([2, 3])
    if mt > 4 and k == 8: emit(("lgwait", f"OW{mt-1}")); A("s_barrier"); pub.append([mt - 1])
stamp(13, True)
stamp(9)
A("s_nop 7")
for it in epi(ACC2 + 8, 7): emit(it)
emit(("lgwait", "OW7")); A("s_barrier"); pub.append([7])
stamp(10)
A("s_branch L_fin")

A("L_w7:")
q = hq
VW = 16; VO = 24; VR = 32; OB = 40
A(f"s_movk_i32 s{S_T}, {896-448}")
A(f"s_movk_i32 s{S_T2}, {PS-448}")
A(f"v_mul_u32_u24 v{T+2}, 2341, v0")
for i in range(7):
    if i: A(f"v_add_u32 v{T}, {64*i*2341}, v{T+2}")
    A(f"v_lshrrev_b32 v{T}, 16, v{T if i else T+2}")
    A(f"v_add_u32 v{T+1}, {1024*i}, v{V_L16}")
    A(f"v_mad_u32_u24 v{VO+i}, v{T}, s{S_T}, v{T+1}")
    A(f"v_mad_u32_u24 v{VR+i}, v{T}, s{S_T2}, v{T+1}")
    A(f"v_add_u32 v{VR+i}, {OST}, v{VR+i}")
    A(f"v_lshrrev_b32 v{T+1}, 2, v{T}")
    A(f"v_mul_u32_u24 v{T+1}, {4*896}, v{T+1}")
    A(f"v_and_b32 v{T}, 4, v{T}")
    A(f"v_lshlrev_b32 v{T}, 3, v{T}")
    A(f"v_xor_b32 v{T}, v{T}, v{VO+i}")
    A(f"v_add_u32 v{VW+i}, v{T}, v{T+1}")
    if i & 3: A(f"v_subrev_u32 v{VW+i}, {1024*(i&3)}, v{VW+i}")
def dma(k):
    out = []
    for hf in range(2):
        for i in range(7):
            if (i & 3) == 0:
                out.append(f"s_add_u32 m0, {RING + SLOT*(k%3) + 7168*hf + 1024*i}, 0")
                out.append(f"s_add_u32 s{S_T}, s{S_WO}, {(32*k + 4*hf)*896}")
            out.append(("vm", f"W{k}", f"buffer_load_dwordx4 v{VW+i}, s[{R_W}:{R_W+3}], s{S_T} offen offset:{1024*(i&3)} lds"))
    return out
def issue(l):
    for it in l: emit(it)
A("s_waitcnt lgkmcnt(0)")
stamp(6)
if not EARLYW: A("s_barrier")
issue(dma(0)); issue(dma(1))
if not EARLYW: issue(dma(2))
for k in range(14):
    emit(("vmwait", f"W{k}"))
    if k == 0 or not flag("--nobar"): A("s_barrier")
    if (k >= 1 or EARLYW) and k + 2 < 14: issue(dma(k + 2))
stamp(8)
A("s_barrier")
for names in pub:
    A("s_barrier")
    for mt in names:
        b = OB + 28 * (mt & 3)
        for i in range(7): emit(("lg", f"R{mt}_{i}", f"ds_read_b128 {v(b+4*i,4)}, v{VR+i} offset:{(mt%6)*16*PS}"))
    for mt in names:
        b = OB + 28 * (mt & 3)
        for i in range(7):
            emit(("lgwait", f"R{mt}_{i}"))
            A(f"buffer_store_dwordx4 {v(b+4*i,4)}, v{VO+i}, s[{R_O}:{R_O+3}], s{S_OO} offen {STFL}")
        A(f"s_add_u32 s{S_OO}, s{S_OO}, {16*896}")
stamp(10)
A("L_fin:")
if STAMPS:
    A("s_waitcnt vmcnt(0)")
    stamp(11)
    A("s_waitcnt lgkmcnt(0)")
    if PROBE is not None:
        A(f"s_cmp_lg_u32 s{S_WV}, {PROBE[0]}")
        A("s_cbranch_scc1 L_nospin")
        if PROBE[1] == "f":
            A(f"s_mov_b32 s{S_T}, {int(PROBE[2:])}")
        else:
            pi, pj = int(PROBE[1], 16), int(PROBE[2], 16)
            A(f"s_sub_u32 s{S_T}, s{S_ST+2*pi}, s{S_ST+2*pj}")
            A(f"s_lshl_b32 s{S_T}, s{S_T}, 1")
            A(f"s_add_u32 s{S_T}, s{S_T}, 1500")
        A(f"s_add_u32 s{S_T}, s{S_T}, s{S_ST}")
        A("L_spin:")
        A(f"s_memrealtime s[{S_ST+30}:{S_ST+31}]")
        A("s_waitcnt lgkmcnt(0)")
        A(f"s_sub_u32 s{S_T2}, s{S_ST+30}, s{S_T}")
        A(f"s_cmp_lt_i32 s{S_T2}, 0")
        A("s_cbranch_scc1 L_spin")
        A("L_nospin:")
    A(f"s_lshl_b32 s{S_T}, s2, 11")
    A(f"s_lshl_b32 s{S_T2}, s{S_WV}, 7")
    A(f"s_add_u32 s{S_T}, s{S_T}, s{S_T2}")
    A("v_mov_b32 v14, 0")
    A("v_cmp_eq_u32 vcc, 0, v0")
    A("s_and_saveexec_b64 s[4:5], vcc")
    for i in range(NSTAMP):
        A(f"v_mov_b32 v12, s{S_ST+2*i}")
        A(f"v_mov_b32 v13, s{S_ST+2*i+1}")
        A(f"buffer_store_dwordx2 v[12:13], v14, s[{R_WS}:{R_WS+3}], s{S_T} offen offset:{8*i}")
        A("s_waitcnt vmcnt(0)")
A("L_end:")
A("s_endpgm")
out = wrap(A.text(), 256, 512, LDS_TOTAL, 256, 100 if STAMPS else 60, 256, notes="TC: 128x224 tile per workgroup")
open(sys.argv[1], "w").write(out)
```

```python
import sys, struct
from asmgen import *
def flag(n): return n in sys.argv
def opt(n, d, t=str): return t(sys.argv[sys.argv.index(n)+1]) if n in sys.argv else d
STAMPS = flag("--stamps"); PROBE = opt("--probe", None)
PF = not flag("--nopf"); TLB = flag("--tlb")
CYC = flag("--cyc"); FINE = flag("--fine")
CPF = opt("--cpf", 512, int)
STFL = opt("--st", "sc1", str); XFL = opt("--xfl", "", str)
if STFL == "plain": STFL = ""
PFP = opt("--pfp", 3, int)
XF = opt("--xfirst", 0, int)
def f2u(f): return struct.unpack("<I", struct.pack("<f", f))[0]
A = Asm()
P = 928; PS = 464
XB = 16384 * 896
RING = 128 * P
SLOT = 14336
SCR = RING + 2 * SLOT
LDS_TOTAL = 163840
OST = RING
assert RING + 3 * SLOT <= LDS_TOTAL and OST + 6 * 16 * PS <= LDS_TOTAL
S_X, S_G, S_B, S_W, S_O, S_WS = 4, 6, 8, 10, 12, 14
R_X, R_W, R_O, R_G, R_B, R_WS = 16, 20, 24, 28, 32, 36
S_WV, S_XO, S_WO, S_OO, S_ONE, S_T, S_RB, S_T2, S_MSK, S_PF, S_X2 = 40, 41, 42, 43, 44, 45, 46, 47, 48, 49, 50
S_ST = 66; NSTAMP = 16
def stamp(i, fine=False):
    if STAMPS and (fine == FINE or i == 0):
        A(f"{'s_memtime' if CYC else 's_memrealtime'} s[{S_ST+2*i}:{S_ST+2*i+1}]")
def srd2(d, b):
    A(f"s_mov_b32 s{d}, s{b}"); A(f"s_and_b32 s{d+1}, s{b+1}, 0xffff")
class Q:
    def __init__(s): s.vm = []; s.lg = []
q = Q()
def qwait(l, tag, name, cap):
    if tag not in l: return None
    idx = max(i for i, t in enumerate(l) if t == tag)
    n = len(l) - 1 - idx
    del l[:idx + 1]
    return f"s_waitcnt {name}({min(n,cap)})"
def emit(item):
    if isinstance(item, str): A(item); return
    if item[0] == "vm": q.vm.append(item[1]); A(item[2])
    elif item[0] == "lg": q.lg.append(item[1]); A(item[2])
    else:
        w = qwait(q.vm, item[1], "vmcnt", 63) if item[0] == "vmwait" else qwait(q.lg, item[1], "lgkmcnt", 15)
        if w: A(w)

V_XOFF, V_L16, V_LW, V_SR, V_T0, V_T1, V_AR, V_AR2, V_OW = 1, 2, 3, 4, 5, 6, 7, 8, 9
V_MSK, V_ONE = 250, 251
T = 10
X1, X2, G, Bv, F, GRAW = 16, 44, 72, 128, 184, 240
SW = opt('--sw', 3, int)
EARLYW = not flag('--latew')
A("s_cmp_ge_u32 s2, 256")
A("s_cbranch_scc1 L_end")
stamp(0)
A("s_load_dwordx8 s[4:11], s[0:1], 0")
A("s_load_dwordx2 s[12:13], s[0:1], 32")
if STAMPS: A("s_load_dwordx2 s[14:15], s[0:1], 48")
if CPF:
    A("s_getpc_b64 s[54:55]")
    A("L_pc:")
    A("s_lshr_b32 s3, s2, 3")
    A(f"s_mul_i32 s3, s3, {CPF}")
    A("v_lshl_add_u32 v2, v0, 2, s3")
    A(f"v_cmp_gt_u32 vcc, {CPF//4}, v0")
    A("s_and_saveexec_b64 s[56:57], vcc")
    A("v_cmp_gt_u32 vcc, L_end-L_pc, v2")
    A("s_and_b64 exec, exec, vcc")
    A("s_cbranch_execz L_nocpf")
    A("global_load_dword v255, v2, s[54:55]")
    A("L_nocpf:")
    A("s_mov_b64 exec, s[56:57]")
A("v_lshrrev_b32 v1, 6, v0")
A("v_and_b32 v0, 63, v0")
A(f"v_readfirstlane_b32 s{S_WV}, v1")
A(f"v_lshrrev_b32 v{T}, 3, v0")
A(f"v_and_b32 v{T+1}, 7, v0")
A(f"v_lshlrev_b32 v{T+1}, 4, v{T+1}")
A(f"v_mul_u32_u24 v{V_XOFF}, 896, v{T}")
A(f"v_add_u32 v{V_XOFF}, v{V_XOFF}, v{T+1}")
A(f"v_lshlrev_b32 v{V_L16}, 4, v0")
A(f"s_lshr_b32 s{S_T}, s2, 4")
A(f"s_lshl_b32 s{S_T}, s{S_T}, 3")
A(f"s_and_b32 s{S_T2}, s2, 7")
A(f"s_add_u32 s{S_T}, s{S_T}, s{S_T2}")
A(f"s_mul_i32 s{S_OO}, s{S_T}, {128*896}")
A(f"s_mul_i32 s{S_T}, s{S_WV}, {8*896}")
A(f"s_add_u32 s{S_XO}, s{S_OO}, s{S_T}")
A(f"s_add_u32 s{S_X2}, s{S_XO}, {64*896}")
for r, n in ((R_G, 896), (R_B, 896), (R_X, XB), (R_W, 448 * 896)):
    A(f"s_mov_b32 s{r+2}, {n}"); A(f"s_mov_b32 s{r+3}, 0x20000")
A(f"s_cmp_lg_u32 s{S_WV}, 0")
A("s_waitcnt lgkmcnt(0)")
A("s_cbranch_scc1 L_nogb")
srd2(R_G, S_G); srd2(R_B, S_B)
A(f"buffer_load_dwordx4 {v(GRAW,4)}, v{V_L16}, s[{R_G}:{R_G+3}], 0 offen")
A(f"buffer_load_dwordx4 {v(GRAW+4,4)}, v{V_L16}, s[{R_B}:{R_B+3}], 0 offen")
A("L_nogb:")
srd2(R_X, S_X)
for i in range(7):
    emit(("vm", f"x1_{i}", f"buffer_load_dwordx4 {v(X1+4*i,4)}, v{V_XOFF}, s[{R_X}:{R_X+3}], s{S_XO} offen offset:{128*i} {XFL}"))
def x2load(i): return ("vm", f"x2_{i}", f"buffer_load_dwordx4 {v(X2+4*i,4)}, v{V_XOFF}, s[{R_X}:{R_X+3}], s{S_X2} offen offset:{128*i} {XFL}")
stamp(1)
PRIO = opt("--prio", 0, int)
if PRIO:
    A(f"s_lshr_b32 s{S_T}, s{S_WV}, 2")
    A(f"s_cmp_eq_u32 s{S_T}, 0")
    A("s_cbranch_scc1 L_nop")
    A(f"s_setprio {PRIO}")
    A("L_nop:")
srd2(R_W, S_W)
srd(A, R_O, S_O, XB)
if STAMPS: srd(A, R_WS, S_WS, 1 << 22)
A(f"s_bfe_u32 s{S_WO}, s2, 0x10003")
A(f"s_mul_i32 s{S_WO}, s{S_WO}, 448")
A(f"s_add_u32 s{S_OO}, s{S_OO}, s{S_WO}")
A(f"s_and_b32 s{S_PF}, s2, 0xf8")
A(f"s_add_u32 s{S_PF}, s{S_PF}, s{S_WV}")
A(f"s_mul_i32 s{S_PF}, s{S_PF}, 1568")
A(f"v_mul_u32_u24 v{V_LW}, {P}, v{T}")
A(f"v_add_u32 v{V_LW}, v{V_LW}, v{T+1}")
A(f"s_mul_i32 s{S_T}, s{S_WV}, {8*P}")
A(f"v_add_u32 v{V_LW}, s{S_T}, v{V_LW}")
A(f"v_lshlrev_b32 v{V_SR}, 1, v{T+1}")
A(f"v_add_u32 v{V_SR}, {SCR}, v{V_SR}")
A(f"v_and_b32 v{T}, 15, v0")
A(f"v_lshrrev_b32 v{T+1}, 4, v0")
A(f"v_mul_u32_u24 v{V_AR}, {P}, v{T}")
A(f"v_lshl_add_u32 v{V_AR}, v{T+1}, 4, v{V_AR}")
A(f"v_add_u32 v{V_AR2}, {64*P}, v{V_AR}")
A(f"s_cmp_gt_u32 s{S_WV}, {SW}")
A(f"s_subb_u32 s{S_T}, s{S_WV}, 0")
A(f"s_lshl_b32 s{S_T}, s{S_T}, 6")
A(f"s_add_u32 s{S_T}, s{S_T}, {RING}")
A(f"v_mul_u32_u24 v{V_OW}, {PS}, v{T}")
A(f"v_lshl_add_u32 v{V_OW}, v{T+1}, 3, v{V_OW}")
A(f"v_add_u32 v{V_OW}, s{S_T}, v{V_OW}")
A(f"v_lshrrev_b32 v{T+2}, 2, v0")
A(f"v_mul_u32_u24 v{V_T0}, 448, v{T+2}")
A(f"v_and_b32 v{T+2}, 3, v0")
A(f"v_lshl_add_u32 v{V_T0}, v{T+2}, 3, v{V_T0}")
A(f"v_add_u32 v{V_T0}, s{S_T}, v{V_T0}")
A(f"v_and_b32 v{T+1}, 1, v{T+1}")
A(f"v_lshlrev_b32 v{T+1}, 5, v{T+1}")
A(f"v_sub_u32 v{V_T1}, v{V_T0}, v{T+1}")
A(f"v_add_u32 v{V_T1}, 32, v{V_T1}")
A(f"v_add_u32 v{V_T0}, v{V_T0}, v{T+1}")
A(f"v_mov_b32 v{V_MSK}, 0xffff0000")
A(f"v_mov_b32 v{V_ONE}, 0x3f803f80")
A(f"s_cmp_lg_u32 s{S_WV}, 0")
A("s_cbranch_scc1 L_nogb2")
A(f"v_lshlrev_b32 v{T}, 5, v0")
A(f"v_add_u32 v{T}, {SCR}, v{T}")
A(f"s_waitcnt vmcnt(7)")
U = Bv + 40
for j in range(8):
    A(f"v_lshlrev_b32 v{U+2*j}, 16, v{GRAW+j}")
    A(f"v_and_b32 v{U+2*j+1}, v{V_MSK}, v{GRAW+j}")
A(f"ds_write_b128 v{T}, {v(U,4)}")
A(f"ds_write_b128 v{T}, {v(U+4,4)} offset:16")
A(f"ds_write_b128 v{T}, {v(U+8,4)} offset:2048")
A(f"ds_write_b128 v{T}, {v(U+12,4)} offset:2064")
A("s_waitcnt lgkmcnt(0)")
A("L_nogb2:")
for i in range(XF): emit(x2load(i))
RS = T + 4
def layernorm(X, tag, first, yoff, hook):
    SUM, SQ = T, T + 1
    for r in range(4): A(f"v_mov_b32 v{T+r}, 0")
    GP = opt("--gpos", 0, int)
    for i in range(7):
        if first and i == GP:
            A("s_barrier")
            stamp(2)
        if first and i >= GP:
            for c in range(7):
                if GP + c * (7 - GP) // 7 == i:
                    A(f"ds_read_b128 {v(G+8*c,4)}, v{V_SR} offset:{256*c}")
                    A(f"ds_read_b128 {v(G+8*c+4,4)}, v{V_SR} offset:{256*c+16}")
                    A(f"ds_read_b128 {v(Bv+8*c,4)}, v{V_SR} offset:{2048+256*c}")
                    A(f"ds_read_b128 {v(Bv+8*c+4,4)}, v{V_SR} offset:{2048+256*c+16}")
        emit(("vmwait", f"{tag}_{i}"))
        hook(i)
        for j in range(4):
            r = X + 4 * i + j
            A(f"v_dot2c_f32_bf16 v{SUM + 2*(j&1)}, v{V_ONE}, v{r}")
            A(f"v_dot2c_f32_bf16 v{SQ + 2*(j&1)}, v{r}, v{r}")
        if i < 6:
            for j in range(4):
                A(f"v_lshlrev_b32 v{F+8*i+2*j}, 16, v{X+4*i+j}")
                A(f"v_and_b32 v{F+8*i+2*j+1}, v{V_MSK}, v{X+4*i+j}")
    up = []
    for j in range(4):
        up.append(f"v_lshlrev_b32 v{F+48+2*j}, 16, v{X+24+j}")
        up.append(f"v_and_b32 v{F+48+2*j+1}, v{V_MSK}, v{X+24+j}")
    A(up[0]); A(up[1]); A(up[2])
    A(f"v_add_f32 v{SUM}, v{SUM}, v{SUM+2}")
    A(f"v_add_f32 v{SQ}, v{SQ}, v{SQ+2}")
    for n, dpp in enumerate(("quad_perm:[1,0,3,2]", "quad_perm:[2,3,0,1]", "row_half_mirror")):
        A(up[3 + n])
        A(f"v_add_f32_dpp v{SUM}, v{SUM}, v{SUM} {dpp} row_mask:0xf bank_mask:0xf")
        A(f"v_add_f32_dpp v{SQ}, v{SQ}, v{SQ} {dpp} row_mask:0xf bank_mask:0xf")
    MEAN = T + 2
    A(f"v_mul_f32 v{MEAN}, {f2u(1/448):#x}, v{SUM}")
    A(f"v_mul_f32 v{SQ}, {f2u(1/448):#x}, v{SQ}")
    A(f"v_fma_f32 v{SQ}, -v{MEAN}, v{MEAN}, v{SQ}")
    A(f"v_max_f32 v{SQ}, 0, v{SQ}")
    A(f"v_add_f32 v{SQ}, {f2u(1e-5):#x}, v{SQ}")
    A(f"v_rsq_f32 v{RS}, v{SQ}")
    A(up[6]); A(up[7])
    A(f"v_mul_f32 v{RS+1}, -v{MEAN}, v{RS}")
    stamp(3 if first else 5)
    if first: A("s_waitcnt lgkmcnt(0)")
    def s1(i): return [f"v_pk_fma_f32 {v(F+8*i+2*j,2)}, {v(F+8*i+2*j,2)}, {v(RS,2)}, {v(RS,2)} op_sel:[0,0,1] op_sel_hi:[1,0,1]" for j in range(4)]
    def s2(i): return [f"v_pk_fma_f32 {v(F+8*i+2*j,2)}, {v(F+8*i+2*j,2)}, {v(G+8*i+2*j,2)}, {v(Bv+8*i+2*j,2)}" for j in range(4)]
    def s3(i): return [f"v_cvt_pk_bf16_f32 v{X+4*i+j}, v{F+8*i+2*j}, v{F+8*i+2*j+1}" for j in range(4)] + \
                      [f"ds_write_b128 v{V_LW}, {v(X+4*i,4)} offset:{yoff + 128*i}"]
    for step in range(9):
        if step < 7:
            for l_ in s1(step): A(l_)
        if 0 <= step - 1 < 7:
            for l_ in s2(step - 1): A(l_)
        if 0 <= step - 2 < 7:
            for l_ in s3(step - 2): A(l_)
def pfissue():
    emit(("vm", "pf", f"buffer_load_dwordx4 {v(240,4)}, v{V_L16}, s[{R_W}:{R_W+3}], s{S_PF} offen"))
    A("s_mov_b32 exec_hi, 3")
    emit(("vm", "pf", f"buffer_load_dwordx4 {v(244,4)}, v{V_L16}, s[{R_W}:{R_W+3}], s{S_PF} offen offset:1024"))
    A("s_mov_b32 exec_hi, -1")
    if TLB: emit(("vm", "pf", f"buffer_load_dword v248, off, s[{R_O}:{R_O+3}], s{S_OO}"))
def hook1(i):
    if i + XF < 7: emit(x2load(i + XF))
    if PF and PFP < 0 and i == 6: pfissue()
def hook2(i):
    if PF and i == PFP: pfissue()
layernorm(X1, "x1", True, 0, hook1)
stamp(4)
layernorm(X2, "x2", False, 64 * P, hook2)
A(f"s_cmp_eq_u32 s{S_WV}, {SW}")
A("s_cbranch_scc1 L_w7")

hq = Q(); hq.vm = list(q.vm); q = Q()
WR = 16; ACC1 = 128; ACC2 = 160; AF = 176
def wreg(k, t): return WR + 8 * k + 4 * t
def trread(k):
    return [("lg", f"B{k}", f"ds_read_b64_tr_b16 {v(wreg(k,t)+2*hf,2)}, v{V_T1 if t else V_T0} offset:{SLOT*(k%3) + 16*448*hf}")
            for t in range(2) for hf in range(2)]
def aread(tag, buf, mt, k):
    return ("lg", tag, f"ds_read_b128 {v(AF+4*buf,4)}, v{V_AR if mt < 4 else V_AR2} offset:{(mt&3)*16*P + 64*k}")
def epi(areg, mt):
    out = []
    for t in range(2):
        d = areg + 4 * t
        out.append(f"v_cvt_pk_bf16_f32 v{d}, v{d}, v{d+1}")
        out.append(f"v_cvt_pk_bf16_f32 v{d+1}, v{d+2}, v{d+3}")
        out.append(("lg", f"OW{mt}", f"ds_write_b64 v{V_OW}, {v(d,2)} offset:{(mt%6)*16*PS + 32*t}"))
    return out
A("s_waitcnt lgkmcnt(0)")
stamp(6)
if PRIO: A("s_setprio 0")
A("s_barrier")
for mt in range(4): emit(aread(f"A0_{mt}", mt, mt, 0))
if not EARLYW: A("s_barrier")
stamp(7)
for it in trread(0): emit(it)
BPOS = opt("--bpos", 1, int)
for k in range(14):
    if k % 2 == 0: stamp(1 + k // 2, True)
    fill = {}
    if k + 1 < 14:
        tr = trread(k + 1)
        fill[BPOS] = ([] if flag("--nobar") else ["s_barrier"]) + tr[:2]; fill[BPOS + 1] = tr[2:]
    else:
        fill[BPOS] = ["s_barrier"]
    emit(("lgwait", f"B{k}"))
    for mt in range(4):
        emit(("lgwait", f"A{k}_{mt}"))
        for t in range(2):
            d = ACC1 + 8 * mt + 4 * t
            A(f"v_mfma_f32_16x16x32_bf16 {v(d,4)}, {v(wreg(k,t),4)}, {v(AF+4*(4*(k&1)+mt),4)}, {'0' if k == 0 else v(d,4)}")
            if t == 0:
                if k + 1 < 14: emit(aread(f"A{k+1}_{mt}", 4 * ((k + 1) & 1) + mt, mt, k + 1))
                else: emit(aread(f"P4_{mt}", mt, 4, mt))
            for it in fill.get(2 * mt + t, []): emit(it)
stamp(8, True)
stamp(8)
seq = [(mt, k) for mt in range(4, 8) for k in range(14)]
PFD = opt("--pfd", 4, int)
pub = []
E0 = opt("--e0", 2, int); ES = opt("--es", 1, int); BL = opt("--bl", 3, int)
plan = {}; bplan = {}
order = [0, 1, 2, 3]
n_ = E0
MODE = opt("--emode", 0, int)
if MODE == 0:
    for mt in range(4):
        plan[n_] = (mt, 0); plan[n_ + ES] = (mt, 1); n_ += 2 * ES
        if mt & 1: bplan[n_ - ES + BL] = [mt - 1, mt]
    for mt in range(4, 7):
        plan[14 * (mt - 3) + 3] = (mt, 0); plan[14 * (mt - 3) + 4] = (mt, 1); bplan[14 * (mt - 3) + 4 + BL + 1] = [mt]
else:
    pos = [2, 9, 16, 23, 30, 37, 45]
    tiles = [0, 1, 4, 2, 5, 3, 6]
    for p_, mt in zip(pos, tiles):
        assert mt < 4 or p_ >= 14 * (mt - 3) + 3 - 1, (p_, mt)
        plan[p_] = (mt, 0); plan[p_ + 1] = (mt, 1); bplan[p_ + 1 + BL] = [mt]
for d_ in range(4, PFD): emit(aread(f"P4_{d_}", d_, 4, d_))
for n, (mt, k) in enumerate(seq):
    if k == 0: stamp(5 + mt, True)
    emit(("lgwait", f"P{mt}_{k}"))
    for t in range(2):
        d = ACC2 + 8 * (mt & 1) + 4 * t
        A(f"v_mfma_f32_16x16x32_bf16 {v(d,4)}, {v(wreg(k,t),4)}, {v(AF+4*(n&7),4)}, {'0' if k == 0 else v(d,4)}")
        if t == 0 and n + PFD < len(seq): emit(aread(f"P{seq[n+PFD][0]}_{seq[n+PFD][1]}", (n + PFD) & 7, *seq[n + PFD]))
        if t == 1 and n in plan:
            m2, hf = plan[n]
            e = epi(ACC1 + 8 * m2 if m2 < 4 else ACC2 + 8 * (m2 & 1), m2)
            for it in e[3 * hf:3 * hf + 3]: emit(it)
    if n in bplan:
        emit(("lgwait", f"OW{bplan[n][-1]}"))
        if not flag("--nobar2"): A("s_barrier")
        pub.append(bplan[n])
stamp(13, True)
stamp(9)
A("s_nop 7")
for it in epi(ACC2 + 8, 7): emit(it)
emit(("lgwait", "OW7")); A("s_barrier"); pub.append([7])
stamp(10)
A("s_branch L_fin")

A("L_w7:")
q = hq
VW = 16; VO = 24; VR = 32; OB = 40
A(f"s_movk_i32 s{S_T}, {896-448}")
A(f"s_movk_i32 s{S_T2}, {PS-448}")
A(f"v_mul_u32_u24 v{T+2}, 2341, v0")
for i in range(7):
    if i: A(f"v_add_u32 v{T}, {64*i*2341}, v{T+2}")
    A(f"v_lshrrev_b32 v{T}, 16, v{T if i else T+2}")
    A(f"v_add_u32 v{T+1}, {1024*i}, v{V_L16}")
    A(f"v_mad_u32_u24 v{VO+i}, v{T}, s{S_T}, v{T+1}")
    A(f"v_mad_u32_u24 v{VR+i}, v{T}, s{S_T2}, v{T+1}")
    A(f"v_add_u32 v{VR+i}, {OST}, v{VR+i}")
    A(f"v_lshrrev_b32 v{T+1}, 2, v{T}")
    A(f"v_mul_u32_u24 v{T+1}, {4*896}, v{T+1}")
    A(f"v_and_b32 v{T}, 4, v{T}")
    A(f"v_lshlrev_b32 v{T}, 3, v{T}")
    A(f"v_xor_b32 v{T}, v{T}, v{VO+i}")
    A(f"v_add_u32 v{VW+i}, v{T}, v{T+1}")
    if i & 3: A(f"v_subrev_u32 v{VW+i}, {1024*(i&3)}, v{VW+i}")
def dma(k):
    out = []
    for hf in range(2):
        for i in range(7):
            if (i & 3) == 0:
                out.append(f"s_add_u32 m0, {RING + SLOT*(k%3) + 7168*hf + 1024*i}, 0")
                out.append(f"s_add_u32 s{S_T}, s{S_WO}, {(32*k + 4*hf)*896}")
            out.append(("vm", f"W{k}", f"buffer_load_dwordx4 v{VW+i}, s[{R_W}:{R_W+3}], s{S_T} offen offset:{1024*(i&3)} lds"))
    return out
def issue(l):
    for it in l: emit(it)
A("s_waitcnt lgkmcnt(0)")
stamp(6)
if not EARLYW: A("s_barrier")
issue(dma(0)); issue(dma(1))
if not EARLYW: issue(dma(2))
for k in range(14):
    emit(("vmwait", f"W{k}"))
    if k == 0 or not flag("--nobar"): A("s_barrier")
    if (k >= 1 or EARLYW) and k + 2 < 14: issue(dma(k + 2))
stamp(8)
A("s_barrier")
for names in pub:
    if names == [7] or not flag("--nobar2"): A("s_barrier")
    for mt in names:
        b = OB + 28 * (mt % 6)
        for i in range(7): emit(("lg", f"R{mt}_{i}", f"ds_read_b128 {v(b+4*i,4)}, v{VR+i} offset:{(mt%6)*16*PS}"))
    for mt in names:
        b = OB + 28 * (mt % 6)
        for i in range(7):
            emit(("lgwait", f"R{mt}_{i}"))
            if i == 0: A(f"s_add_u32 s{S_T}, s{S_OO}, {16*896*mt}")
            fl = STFL if mt < opt("--plainfrom", 8, int) else opt("--lastfl", "", str)
            A(f"buffer_store_dwordx4 {v(b+4*i,4)}, v{VO+i}, s[{R_O}:{R_O+3}], s{S_T} offen {fl}")
stamp(10)
A("L_fin:")
if STAMPS:
    A("s_waitcnt vmcnt(0)")
    stamp(11)
    A("s_waitcnt lgkmcnt(0)")
    if PROBE is not None:
        A(f"s_cmp_lg_u32 s{S_WV}, {PROBE[0]}")
        A("s_cbranch_scc1 L_nospin")
        if PROBE[1] == "f":
            A(f"s_mov_b32 s{S_T}, {int(PROBE[2:])}")
        else:
            pi, pj = int(PROBE[1], 16), int(PROBE[2], 16)
            A(f"s_sub_u32 s{S_T}, s{S_ST+2*pi}, s{S_ST+2*pj}")
            A(f"s_lshl_b32 s{S_T}, s{S_T}, 1")
            A(f"s_add_u32 s{S_T}, s{S_T}, 1500")
        A(f"s_add_u32 s{S_T}, s{S_T}, s{S_ST}")
        A("L_spin:")
        A(f"s_memrealtime s[{S_ST+30}:{S_ST+31}]")
        A("s_waitcnt lgkmcnt(0)")
        A(f"s_sub_u32 s{S_T2}, s{S_ST+30}, s{S_T}")
        A(f"s_cmp_lt_i32 s{S_T2}, 0")
        A("s_cbranch_scc1 L_spin")
        A("L_nospin:")
    A(f"s_lshl_b32 s{S_T}, s2, 11")
    A(f"s_lshl_b32 s{S_T2}, s{S_WV}, 7")
    A(f"s_add_u32 s{S_T}, s{S_T}, s{S_T2}")
    A("v_mov_b32 v14, 0")
    A("v_cmp_eq_u32 vcc, 0, v0")
    A("s_and_saveexec_b64 s[4:5], vcc")
    for i in range(NSTAMP):
        A(f"v_mov_b32 v12, s{S_ST+2*i}")
        A(f"v_mov_b32 v13, s{S_ST+2*i+1}")
        A(f"buffer_store_dwordx2 v[12:13], v14, s[{R_WS}:{R_WS+3}], s{S_T} offen offset:{8*i}")
        A("s_waitcnt vmcnt(0)")
A("L_end:")
A("s_endpgm")
out = wrap(A.text(), 256, 512, LDS_TOTAL, 256, 100 if STAMPS else 60, 256, notes="TC: 128x224 tile per workgroup")
open(sys.argv[1], "w").write(out)
```

```python
import sys, struct
from asmgen import *
def flag(n): return n in sys.argv
def opt(n, d, t=str): return t(sys.argv[sys.argv.index(n)+1]) if n in sys.argv else d
STAMPS = flag("--stamps"); PROBE = opt("--probe", None)
PF = not flag("--nopf"); TLB = flag("--tlb")
CYC = flag("--cyc"); FINE = flag("--fine")
CPF = opt("--cpf", 512, int)
STFL = opt("--st", "sc1", str); XFL = opt("--xfl", "", str)
if STFL == "plain": STFL = ""
PFP = opt("--pfp", 3, int)
XF = opt("--xfirst", 0, int)
def f2u(f): return struct.unpack("<I", struct.pack("<f", f))[0]
A = Asm()
P = 928; PS = 80
XB = 16384 * 896
RING = 64 * P
SLOT = 14336
SCR = RING + 7 * SLOT
LDS_TOTAL = 163840
OST = 128 * P
assert SCR + 4096 <= LDS_TOTAL and OST + 8 * 4 * 16 * PS <= LDS_TOTAL
S_X, S_G, S_B, S_W, S_O, S_WS = 4, 6, 8, 10, 12, 14
R_X, R_W, R_O, R_G, R_B, R_WS = 16, 20, 24, 28, 32, 36
S_WV, S_XO, S_WO, S_OO, S_ONE, S_T, S_RB, S_T2, S_MSK, S_PF, S_X2 = 40, 41, 42, 43, 44, 45, 46, 47, 48, 49, 50
S_ST = 66; NSTAMP = 16
def stamp(i, fine=False):
    if STAMPS and (fine == FINE or i == 0):
        A(f"{'s_memtime' if CYC else 's_memrealtime'} s[{S_ST+2*i}:{S_ST+2*i+1}]")
def srd2(d, b):
    A(f"s_mov_b32 s{d}, s{b}"); A(f"s_and_b32 s{d+1}, s{b+1}, 0xffff")
class Q:
    def __init__(s): s.vm = []; s.lg = []
q = Q()
def qwait(l, tag, name, cap):
    if tag not in l: return None
    idx = max(i for i, t in enumerate(l) if t == tag)
    n = len(l) - 1 - idx
    del l[:idx + 1]
    return f"s_waitcnt {name}({min(n,cap)})"
def emit(item):
    if isinstance(item, str): A(item); return
    if item[0] == "vm": q.vm.append(item[1]); A(item[2])
    elif item[0] == "lg": q.lg.append(item[1]); A(item[2])
    else:
        w = qwait(q.vm, item[1], "vmcnt", 63) if item[0] == "vmwait" else qwait(q.lg, item[1], "lgkmcnt", 15)
        if w: A(w)

V_XOFF, V_L16, V_LW, V_SR, V_T0, V_T1, V_AR, V_AR2, V_OW = 1, 2, 3, 4, 5, 6, 7, 8, 9
V_MSK, V_ONE, V_OR, V_OG, V_T2, V_T3 = 250, 251, 252, 253, 248, 249
T = 10
X1, G, Bv, X2, GRAW = 16, 44, 100, 208, 240
def Fr(i, j): return (156 + 8 * i + j) if i < 6 else (240 + j)
SW = opt('--sw', 3, int)
EARLYW = not flag('--latew')
A("s_cmp_ge_u32 s2, 256")
A("s_cbranch_scc1 L_end")
stamp(0)
A("s_load_dwordx8 s[4:11], s[0:1], 0")
A("s_load_dwordx2 s[12:13], s[0:1], 32")
if STAMPS: A("s_load_dwordx2 s[14:15], s[0:1], 48")
if CPF:
    A("s_getpc_b64 s[54:55]")
    A("L_pc:")
    A("s_lshr_b32 s3, s2, 3")
    A(f"s_mul_i32 s3, s3, {CPF}")
    A("v_lshl_add_u32 v2, v0, 2, s3")
    A(f"v_cmp_gt_u32 vcc, {CPF//4}, v0")
    A("s_and_saveexec_b64 s[56:57], vcc")
    A("v_cmp_gt_u32 vcc, L_end-L_pc, v2")
    A("s_and_b64 exec, exec, vcc")
    A("s_cbranch_execz L_nocpf")
    A("global_load_dword v254, v2, s[54:55]")
    A("L_nocpf:")
    A("s_mov_b64 exec, s[56:57]")
A("v_lshrrev_b32 v1, 6, v0")
A("v_and_b32 v0, 63, v0")
A(f"v_readfirstlane_b32 s{S_WV}, v1")
A(f"v_lshrrev_b32 v{T}, 3, v0")
A(f"v_and_b32 v{T+1}, 7, v0")
A(f"v_lshlrev_b32 v{T+1}, 4, v{T+1}")
A(f"v_mul_u32_u24 v{V_XOFF}, 896, v{T}")
A(f"v_add_u32 v{V_XOFF}, v{V_XOFF}, v{T+1}")
A(f"v_lshlrev_b32 v{V_L16}, 4, v0")
A(f"s_lshr_b32 s{S_T}, s2, 4")
A(f"s_lshl_b32 s{S_T}, s{S_T}, 3")
A(f"s_and_b32 s{S_T2}, s2, 7")
A(f"s_add_u32 s{S_T}, s{S_T}, s{S_T2}")
A(f"s_mul_i32 s{S_OO}, s{S_T}, {128*896}")
A(f"s_mul_i32 s{S_T}, s{S_WV}, {8*896}")
A(f"s_add_u32 s{S_XO}, s{S_OO}, s{S_T}")
A(f"s_add_u32 s{S_X2}, s{S_XO}, {64*896}")
for r, n in ((R_G, 896), (R_B, 896), (R_X, XB), (R_W, 448 * 896)):
    A(f"s_mov_b32 s{r+2}, {n}"); A(f"s_mov_b32 s{r+3}, 0x20000")
A(f"s_cmp_lg_u32 s{S_WV}, 0")
A("s_waitcnt lgkmcnt(0)")
A("s_cbranch_scc1 L_nogb")
srd2(R_G, S_G); srd2(R_B, S_B)
A(f"buffer_load_dwordx4 {v(GRAW,4)}, v{V_L16}, s[{R_G}:{R_G+3}], 0 offen")
A(f"buffer_load_dwordx4 {v(GRAW+4,4)}, v{V_L16}, s[{R_B}:{R_B+3}], 0 offen")
A("L_nogb:")
srd2(R_X, S_X)
for i in range(7):
    emit(("vm", f"x1_{i}", f"buffer_load_dwordx4 {v(X1+4*i,4)}, v{V_XOFF}, s[{R_X}:{R_X+3}], s{S_XO} offen offset:{128*i} {XFL}"))
def x2load(i): return ("vm", f"x2_{i}", f"buffer_load_dwordx4 {v(X2+4*i,4)}, v{V_XOFF}, s[{R_X}:{R_X+3}], s{S_X2} offen offset:{128*i} {XFL}")
stamp(1)
PRIO = opt("--prio", 0, int)
if PRIO:
    A(f"s_lshr_b32 s{S_T}, s{S_WV}, 2")
    A(f"s_cmp_eq_u32 s{S_T}, 0")
    A("s_cbranch_scc1 L_nop")
    A(f"s_setprio {PRIO}")
    A("L_nop:")
srd2(R_W, S_W)
srd(A, R_O, S_O, XB)
if STAMPS: srd(A, R_WS, S_WS, 1 << 22)
A(f"s_bfe_u32 s{S_WO}, s2, 0x10003")
A(f"s_mul_i32 s{S_WO}, s{S_WO}, 448")
A(f"s_add_u32 s{S_OO}, s{S_OO}, s{S_WO}")
A(f"s_and_b32 s{S_PF}, s2, 0xf8")
A(f"s_add_u32 s{S_PF}, s{S_PF}, s{S_WV}")
A(f"s_mul_i32 s{S_PF}, s{S_PF}, 1568")
A(f"v_mul_u32_u24 v{V_LW}, {P}, v{T}")
A(f"v_add_u32 v{V_LW}, v{V_LW}, v{T+1}")
A(f"s_mul_i32 s{S_T}, s{S_WV}, {8*P}")
A(f"v_add_u32 v{V_LW}, s{S_T}, v{V_LW}")
A(f"v_lshlrev_b32 v{V_SR}, 1, v{T+1}")
A(f"v_add_u32 v{V_SR}, {SCR}, v{V_SR}")
A(f"v_and_b32 v{T}, 15, v0")
A(f"v_lshrrev_b32 v{T+1}, 4, v0")
A(f"v_mul_u32_u24 v{V_AR}, {P}, v{T}")
A(f"v_lshl_add_u32 v{V_AR}, v{T+1}, 4, v{V_AR}")
A(f"v_add_u32 v{V_AR2}, {64*P}, v{V_AR}")
A(f"s_cmp_gt_u32 s{S_WV}, {SW}")
A(f"s_subb_u32 s{S_T}, s{S_WV}, 0")
A(f"s_lshl_b32 s{S_T}, s{S_T}, 6")
A(f"s_add_u32 s{S_T}, s{S_T}, {RING}")
A(f"s_sub_u32 s{S_T2}, s{S_T}, {RING}")
A(f"s_add_u32 s{S_OO}, s{S_OO}, s{S_T2}")
A(f"s_mul_i32 s{S_RB}, s{S_WV}, {4*16*PS}")
A(f"s_add_u32 s{S_RB}, s{S_RB}, {OST}")
A(f"v_mul_u32_u24 v{V_OW}, {PS}, v{T}")
A(f"v_lshl_add_u32 v{V_OW}, v{T+1}, 3, v{V_OW}")
A(f"v_add_u32 v{V_OW}, s{S_RB}, v{V_OW}")
A(f"v_lshrrev_b32 v{T+2}, 2, v0")
A(f"v_and_b32 v{T+3}, 3, v0")
A(f"v_mul_u32_u24 v{V_OR}, {PS}, v{T+2}")
A(f"v_lshl_add_u32 v{V_OR}, v{T+3}, 4, v{V_OR}")
A(f"v_add_u32 v{V_OR}, s{S_RB}, v{V_OR}")
A(f"v_mul_u32_u24 v{V_OG}, 896, v{T+2}")
A(f"v_lshl_add_u32 v{V_OG}, v{T+3}, 4, v{V_OG}")
A(f"v_lshrrev_b32 v{T+2}, 2, v0")
A(f"v_mul_u32_u24 v{V_T0}, 448, v{T+2}")
A(f"v_and_b32 v{T+2}, 3, v0")
A(f"v_lshl_add_u32 v{V_T0}, v{T+2}, 3, v{V_T0}")
A(f"v_add_u32 v{V_T0}, s{S_T}, v{V_T0}")
A(f"v_and_b32 v{T+1}, 1, v{T+1}")
A(f"v_lshlrev_b32 v{T+1}, 5, v{T+1}")
A(f"v_sub_u32 v{V_T1}, v{V_T0}, v{T+1}")
A(f"v_add_u32 v{V_T1}, 32, v{V_T1}")
A(f"v_add_u32 v{V_T0}, v{V_T0}, v{T+1}")
A(f"v_add_u32 v{V_T2}, {4*SLOT}, v{V_T0}")
A(f"v_add_u32 v{V_T3}, {4*SLOT}, v{V_T1}")
A(f"v_mov_b32 v{V_MSK}, 0xffff0000")
A(f"v_mov_b32 v{V_ONE}, 0x3f803f80")
A(f"s_cmp_lg_u32 s{S_WV}, 0")
A("s_cbranch_scc1 L_nogb2")
A(f"v_lshlrev_b32 v{T}, 5, v0")
A(f"v_add_u32 v{T}, {SCR}, v{T}")
A(f"s_waitcnt vmcnt(7)")
U = Bv + 40
for j in range(8):
    A(f"v_lshlrev_b32 v{U+2*j}, 16, v{GRAW+j}")
    A(f"v_and_b32 v{U+2*j+1}, v{V_MSK}, v{GRAW+j}")
A(f"ds_write_b128 v{T}, {v(U,4)}")
A(f"ds_write_b128 v{T}, {v(U+4,4)} offset:16")
A(f"ds_write_b128 v{T}, {v(U+8,4)} offset:2048")
A(f"ds_write_b128 v{T}, {v(U+12,4)} offset:2064")
A("s_waitcnt lgkmcnt(0)")
A("L_nogb2:")
for i in range(XF): emit(x2load(i))
RS = T + 4
def layernorm(X, tag, first, yoff, hook):
    SUM, SQ = T, T + 1
    for r in range(4): A(f"v_mov_b32 v{T+r}, 0")
    GP = opt("--gpos", 0, int)
    for i in range(7):
        if first and i == GP:
            A("s_barrier")
            stamp(2)
        if first and i >= GP:
            for c in range(7):
                if GP + c * (7 - GP) // 7 == i:
                    A(f"ds_read_b128 {v(G+8*c,4)}, v{V_SR} offset:{256*c}")
                    A(f"ds_read_b128 {v(G+8*c+4,4)}, v{V_SR} offset:{256*c+16}")
                    A(f"ds_read_b128 {v(Bv+8*c,4)}, v{V_SR} offset:{2048+256*c}")
                    A(f"ds_read_b128 {v(Bv+8*c+4,4)}, v{V_SR} offset:{2048+256*c+16}")
        emit(("vmwait", f"{tag}_{i}"))
        hook(i)
        for j in range(4):
            r = X + 4 * i + j
            A(f"v_dot2c_f32_bf16 v{SUM + 2*(j&1)}, v{V_ONE}, v{r}")
            A(f"v_dot2c_f32_bf16 v{SQ + 2*(j&1)}, v{r}, v{r}")
        if i < 6:
            for j in range(4):
                A(f"v_lshlrev_b32 v{Fr(i,2*j)}, 16, v{X+4*i+j}")
                A(f"v_and_b32 v{Fr(i,2*j+1)}, v{V_MSK}, v{X+4*i+j}")
    up = []
    for j in range(4):
        up.append(f"v_lshlrev_b32 v{Fr(6,2*j)}, 16, v{X+24+j}")
        up.append(f"v_and_b32 v{Fr(6,2*j+1)}, v{V_MSK}, v{X+24+j}")
    A(up[0]); A(up[1]); A(up[2])
    A(f"v_add_f32 v{SUM}, v{SUM}, v{SUM+2}")
    A(f"v_add_f32 v{SQ}, v{SQ}, v{SQ+2}")
    for n, dpp in enumerate(("quad_perm:[1,0,3,2]", "quad_perm:[2,3,0,1]", "row_half_mirror")):
        A(up[3 + n])
        A(f"v_add_f32_dpp v{SUM}, v{SUM}, v{SUM} {dpp} row_mask:0xf bank_mask:0xf")
        A(f"v_add_f32_dpp v{SQ}, v{SQ}, v{SQ} {dpp} row_mask:0xf bank_mask:0xf")
    MEAN = T + 2
    A(f"v_mul_f32 v{MEAN}, {f2u(1/448):#x}, v{SUM}")
    A(f"v_mul_f32 v{SQ}, {f2u(1/448):#x}, v{SQ}")
    A(f"v_fma_f32 v{SQ}, -v{MEAN}, v{MEAN}, v{SQ}")
    A(f"v_max_f32 v{SQ}, 0, v{SQ}")
    A(f"v_add_f32 v{SQ}, {f2u(1e-5):#x}, v{SQ}")
    A(f"v_rsq_f32 v{RS}, v{SQ}")
    A(up[6]); A(up[7])
    A(f"v_mul_f32 v{RS+1}, -v{MEAN}, v{RS}")
    stamp(3 if first else 5)
    if first: A("s_waitcnt lgkmcnt(0)")
    def s1(i): return [f"v_pk_fma_f32 {v(Fr(i,2*j),2)}, {v(Fr(i,2*j),2)}, {v(RS,2)}, {v(RS,2)} op_sel:[0,0,1] op_sel_hi:[1,0,1]" for j in range(4)]
    def s2(i): return [f"v_pk_fma_f32 {v(Fr(i,2*j),2)}, {v(Fr(i,2*j),2)}, {v(G+8*i+2*j,2)}, {v(Bv+8*i+2*j,2)}" for j in range(4)]
    def s3(i): return [f"v_cvt_pk_bf16_f32 v{X+4*i+j}, v{Fr(i,2*j)}, v{Fr(i,2*j+1)}" for j in range(4)] + \
                      ([f"ds_write_b128 v{V_LW}, {v(X+4*i,4)} offset:{yoff + 128*i}"] if first else [])
    for step in range(9):
        if step < 7:
            for l_ in s1(step): A(l_)
        if 0 <= step - 1 < 7:
            for l_ in s2(step - 1): A(l_)
        if 0 <= step - 2 < 7:
            for l_ in s3(step - 2): A(l_)
def pfissue():
    emit(("vm", "pf", f"buffer_load_dwordx4 {v(204,4)}, v{V_L16}, s[{R_W}:{R_W+3}], s{S_PF} offen"))
    A("s_mov_b32 exec_hi, 3")
    emit(("vm", "pf", f"buffer_load_dwordx4 {v(236,4)}, v{V_L16}, s[{R_W}:{R_W+3}], s{S_PF} offen offset:1024"))
    A("s_mov_b32 exec_hi, -1")
    if TLB: emit(("vm", "pf", f"buffer_load_dword v255, off, s[{R_O}:{R_O+3}], s{S_OO}"))
def hook1(i):
    if i + XF < 7: emit(x2load(i + XF))
    if PF and PFP < 0 and i == 6: pfissue()
def hook2(i):
    if PF and i == PFP: pfissue()
layernorm(X1, "x1", True, 0, hook1)
stamp(4)
layernorm(X2, "x2", False, 64 * P, hook2)
A(f"s_cmp_eq_u32 s{S_WV}, {SW}")
A("s_cbranch_scc1 L_w7")

hq = Q(); hq.vm = list(q.vm); q = Q()
WR = 16; ACC1 = 128; ACC2 = 160; AF = 176
def wreg(k, t): return WR + 8 * k + 4 * t
def trread(k):
    return [("lg", f"B{k}", f"ds_read_b64_tr_b16 {v(wreg(k,t)+2*hf,2)}, v{(V_T1 if t else V_T0) if k % 7 < 4 else (V_T3 if t else V_T2)} offset:{SLOT*(k%7%4) + 16*448*hf}")
            for t in range(2) for hf in range(2)]
def aread(tag, buf, mt, k):
    return ("lg", tag, f"ds_read_b128 {v(AF+4*buf,4)}, v{V_AR if mt < 4 else V_AR2} offset:{(mt&3)*16*P + 64*k}")
def epi(areg, mt):
    out = []
    for t in range(2):
        d = areg + 4 * t
        out.append(f"v_cvt_pk_bf16_f32 v{d}, v{d}, v{d+1}")
        out.append(f"v_cvt_pk_bf16_f32 v{d+1}, v{d+2}, v{d+3}")
        out.append(("lg", f"OW{mt}", f"ds_write_b64 v{V_OW}, {v(d,2)} offset:{(mt&3)*16*PS + 32*t}"))
    return out
def epi_b(areg, mt): return [("lgwait", f"OW{mt}"), ("lg", f"OR{mt}", f"ds_read_b128 {v(areg+4,4)}, v{V_OR} offset:{(mt&3)*16*PS}")]
def epi_c(areg, mt):
    fl = STFL if mt < opt("--plainfrom", 8, int) else opt("--lastfl", "", str)
    return [f"s_add_u32 s{S_T}, s{S_OO}, {16*896*mt}", ("lgwait", f"OR{mt}"), f"buffer_store_dwordx4 {v(areg+4,4)}, v{V_OG}, s[{R_O}:{R_O+3}], s{S_T} offen {fl}"]
A("s_waitcnt vmcnt(0) lgkmcnt(0)")
stamp(6)
L0 = opt("--l0", 2, int)
BP = {1: [3, 4], 3: [5, 6], 5: [7, 8], 7: [9, 10], 9: [11, 12, 13], 11: [], 13: []}
A("s_barrier")
emit(aread("A0_0", 0, 0, 0))
for it in trread(0): emit(it)
for mt in range(1, 4): emit(aread(f"A0_{mt}", mt, mt, 0))
stamp(7)
def y2w(i): return ("lg", "Y2", f"ds_write_b128 v{V_LW}, {v(X2+4*i,4)} offset:{64*P + 128*i}")
pend = trread(1) + trread(2); last = 2
for k in range(14):
    if k % 2 == 0: stamp(1 + k // 2, True)
    emit(("lgwait", f"B{k}"))
    for mt in range(4):
        emit(("lgwait", f"A{k}_{mt}"))
        for t in range(2):
            d = ACC1 + 8 * mt + 4 * t
            A(f"v_mfma_f32_16x16x32_bf16 {v(d,4)}, {v(wreg(k,t),4)}, {v(AF+4*(4*(k&1)+mt),4)}, {'0' if k == 0 else v(d,4)}")
            if k in BP and mt == 0 and t == 0:
                assert not pend
                emit(("lgwait", f"B{last}")); emit(("lgwait", "Y2"))
                A("s_barrier")
                for kk in BP[k]: pend += trread(kk); last = kk
                if k == 11: pend = [y2w(i) for i in range(7)]
            if t == 0:
                if k + 1 < 14: emit(aread(f"A{k+1}_{mt}", 4 * ((k + 1) & 1) + mt, mt, k + 1))
                else: emit(aread(f"P4_{mt}", mt, 4, mt))
            if pend and (t == 1 or k in (0, 9)): emit(pend.pop(0))
            if pend and t == 1 and k != 11 and k != 12: emit(pend.pop(0))
stamp(8, True)
stamp(8)
seq = [(mt, k) for mt in range(4, 8) for k in range(14)]
PFD = opt("--pfd", 4, int)
def areg(mt): return ACC1 + 8 * mt if mt < 4 else ACC2 + 8 * (mt & 1)
plan = {}
def sched(n0, mt):
    e = epi(areg(mt), mt)
    plan.setdefault(n0, []).extend(e[:3]); plan.setdefault(n0 + 1, []).extend(e[3:])
    plan.setdefault(n0 + 4, []).extend(epi_b(areg(mt), mt)); plan.setdefault(n0 + 7, []).extend(epi_c(areg(mt), mt))
ES = opt("--es", 3, int)
for mt in range(4): sched(2 + ES * mt, mt)
for mt in range(4, 7): sched(14 * (mt - 3) + 3, mt)
for d_ in range(4, PFD): emit(aread(f"P4_{d_}", d_, 4, d_))
for n, (mt, k) in enumerate(seq):
    if k == 0: stamp(5 + mt, True)
    emit(("lgwait", f"P{mt}_{k}"))
    for t in range(2):
        d = ACC2 + 8 * (mt & 1) + 4 * t
        A(f"v_mfma_f32_16x16x32_bf16 {v(d,4)}, {v(wreg(k,t),4)}, {v(AF+4*(n&7),4)}, {'0' if k == 0 else v(d,4)}")
        if t == 0 and n + PFD < len(seq): emit(aread(f"P{seq[n+PFD][0]}_{seq[n+PFD][1]}", (n + PFD) & 7, *seq[n + PFD]))
        if t == 1:
            for it in plan.pop(n, []): emit(it)
assert not plan
stamp(13, True)
stamp(9)
A("s_nop 7")
for it in epi(areg(7), 7) + epi_b(areg(7), 7) + epi_c(areg(7), 7): emit(it)
stamp(10)
A("s_branch L_fin")

A("L_w7:")
q = hq
VW = 16; VO = 24; VR = 32; OB = 40
A(f"s_movk_i32 s{S_T}, {896-448}")
A(f"v_mul_u32_u24 v{T+2}, 2341, v0")
for i in range(7):
    if i: A(f"v_add_u32 v{T}, {64*i*2341}, v{T+2}")
    A(f"v_lshrrev_b32 v{T}, 16, v{T if i else T+2}")
    A(f"v_add_u32 v{T+1}, {1024*i}, v{V_L16}")
    A(f"v_mad_u32_u24 v{VO+i}, v{T}, s{S_T}, v{T+1}")
    A(f"v_lshrrev_b32 v{T+1}, 2, v{T}")
    A(f"v_mul_u32_u24 v{T+1}, {4*896}, v{T+1}")
    A(f"v_and_b32 v{T}, 4, v{T}")
    A(f"v_lshlrev_b32 v{T}, 3, v{T}")
    A(f"v_xor_b32 v{T}, v{T}, v{VO+i}")
    A(f"v_add_u32 v{VW+i}, v{T}, v{T+1}")
    if i & 3: A(f"v_subrev_u32 v{VW+i}, {1024*(i&3)}, v{VW+i}")
def dma(k):
    out = []
    for hf in range(2):
        for i in range(7):
            if (i & 3) == 0:
                out.append(f"s_add_u32 m0, {RING + SLOT*(k%7) + 7168*hf + 1024*i}, 0")
                out.append(f"s_add_u32 s{S_T}, s{S_WO}, {(32*k + 4*hf)*896}")
            out.append(("vm", f"W{k}", f"buffer_load_dwordx4 v{VW+i}, s[{R_W}:{R_W+3}], s{S_T} offen offset:{1024*(i&3)} lds"))
    return out
def issue(l):
    for it in l: emit(it)
A("s_waitcnt lgkmcnt(0)")
stamp(6)
NPRE = opt("--npre", 6, int)
for k in range(NPRE): issue(dma(k))
emit(("vmwait", "W2"))
A("s_barrier")
nxt = NPRE
while nxt < 7: issue(dma(nxt)); nxt += 1
freed = -1
rd = 2
for p_ in sorted(BP):
    if BP[p_]: emit(("vmwait", f"W{BP[p_][-1]}"))
    if p_ == 13: A("s_waitcnt lgkmcnt(0)")
    A("s_barrier")
    freed = rd
    if BP[p_]: rd = BP[p_][-1]
    while nxt < 14 and nxt - 7 <= freed: issue(dma(nxt)); nxt += 1
    if p_ == 9: stamp(8)
    if p_ == 11:
        for i in range(7): A(y2w(i)[2])
assert nxt == 14
A("L_fin:")
if STAMPS:
    A("s_waitcnt vmcnt(0)")
    stamp(11)
    A("s_waitcnt lgkmcnt(0)")
    if PROBE is not None:
        A(f"s_cmp_lg_u32 s{S_WV}, {PROBE[0]}")
        A("s_cbranch_scc1 L_nospin")
        if PROBE[1] == "f":
            A(f"s_mov_b32 s{S_T}, {int(PROBE[2:])}")
        else:
            pi, pj = int(PROBE[1], 16), int(PROBE[2], 16)
            A(f"s_sub_u32 s{S_T}, s{S_ST+2*pi}, s{S_ST+2*pj}")
            A(f"s_lshl_b32 s{S_T}, s{S_T}, 1")
            A(f"s_add_u32 s{S_T}, s{S_T}, 1500")
        A(f"s_add_u32 s{S_T}, s{S_T}, s{S_ST}")
        A("L_spin:")
        A(f"s_memrealtime s[{S_ST+30}:{S_ST+31}]")
        A("s_waitcnt lgkmcnt(0)")
        A(f"s_sub_u32 s{S_T2}, s{S_ST+30}, s{S_T}")
        A(f"s_cmp_lt_i32 s{S_T2}, 0")
        A("s_cbranch_scc1 L_spin")
        A("L_nospin:")
    A(f"s_lshl_b32 s{S_T}, s2, 11")
    A(f"s_lshl_b32 s{S_T2}, s{S_WV}, 7")
    A(f"s_add_u32 s{S_T}, s{S_T}, s{S_T2}")
    A("v_mov_b32 v14, 0")
    A("v_cmp_eq_u32 vcc, 0, v0")
    A("s_and_saveexec_b64 s[4:5], vcc")
    for i in range(NSTAMP):
        A(f"v_mov_b32 v12, s{S_ST+2*i}")
        A(f"v_mov_b32 v13, s{S_ST+2*i+1}")
        A(f"buffer_store_dwordx2 v[12:13], v14, s[{R_WS}:{R_WS+3}], s{S_T} offen offset:{8*i}")
        A("s_waitcnt vmcnt(0)")
A("L_end:")
A("s_endpgm")
out = wrap(A.text(), 256, 512, LDS_TOTAL, 256, 100 if STAMPS else 60, 256, notes="TG: 128x224 tile per workgroup")
open(sys.argv[1], "w").write(out)
```

```python
import sys, struct
from asmgen import *
def flag(n): return n in sys.argv
def opt(n, d, t=str): return t(sys.argv[sys.argv.index(n)+1]) if n in sys.argv else d
STAMPS = flag("--stamps"); PROBE = opt("--probe", None)
PF = not flag("--nopf"); TLB = flag("--tlb")
CYC = flag("--cyc"); FINE = flag("--fine")
CPF = opt("--cpf", 512, int)
STFL = opt("--st", "sc1", str); XFL = opt("--xfl", "", str)
if STFL == "plain": STFL = ""
TRP = opt('--trp', 2, int)
PFP = opt("--pfp", 3, int)
XF = opt("--xfirst", 0, int)
def f2u(f): return struct.unpack("<I", struct.pack("<f", f))[0]
A = Asm()
P = 928; PS = 80
XB = 16384 * 896
RING = 128 * P
SLOT = 14336
SCR = RING + 2 * SLOT
LDS_TOTAL = 163840
OST = RING
assert RING + 3 * SLOT <= LDS_TOTAL
S_X, S_G, S_B, S_W, S_O, S_WS = 4, 6, 8, 10, 12, 14
R_X, R_W, R_O, R_G, R_B, R_WS = 16, 20, 24, 28, 32, 36
S_WV, S_XO, S_WO, S_OO, S_ONE, S_T, S_RB, S_T2, S_MSK, S_PF, S_X2 = 40, 41, 42, 43, 44, 45, 46, 47, 48, 49, 50
S_ST = 66; NSTAMP = 16
def stamp(i, fine=False):
    if STAMPS and (fine == FINE or i == 0):
        A(f"{'s_memtime' if CYC else 's_memrealtime'} s[{S_ST+2*i}:{S_ST+2*i+1}]")
def srd2(d, b):
    A(f"s_mov_b32 s{d}, s{b}"); A(f"s_and_b32 s{d+1}, s{b+1}, 0xffff")
class Q:
    def __init__(s): s.vm = []; s.lg = []
q = Q()
def qwait(l, tag, name, cap):
    if tag not in l: return None
    idx = max(i for i, t in enumerate(l) if t == tag)
    n = len(l) - 1 - idx
    del l[:idx + 1]
    return f"s_waitcnt {name}({min(n,cap)})"
def emit(item):
    if isinstance(item, str): A(item); return
    if item[0] == "vm": q.vm.append(item[1]); A(item[2])
    elif item[0] == "lg": q.lg.append(item[1]); A(item[2])
    else:
        w = qwait(q.vm, item[1], "vmcnt", 63) if item[0] == "vmwait" else qwait(q.lg, item[1], "lgkmcnt", 15)
        if w: A(w)

V_XOFF, V_L16, V_LW, V_SR, V_T0, V_T1, V_AR, V_AR2, V_OW = 1, 2, 3, 4, 5, 6, 7, 8, 9
V_MSK, V_ONE, V_OR, V_OG = 250, 251, 252, 253
T = 10
X1, X2, G, Bv, F, GRAW = 16, 44, 72, 128, 184, 240
SW = opt('--sw', 3, int)
EARLYW = not flag('--latew')
A("s_cmp_ge_u32 s2, 256")
A("s_cbranch_scc1 L_end")
stamp(0)
A("s_load_dwordx8 s[4:11], s[0:1], 0")
A("s_load_dwordx2 s[12:13], s[0:1], 32")
if STAMPS: A("s_load_dwordx2 s[14:15], s[0:1], 48")
if CPF:
    A("s_getpc_b64 s[54:55]")
    A("L_pc:")
    A("s_lshr_b32 s3, s2, 3")
    A(f"s_mul_i32 s3, s3, {CPF}")
    A("v_lshl_add_u32 v2, v0, 2, s3")
    A(f"v_cmp_gt_u32 vcc, {CPF//4}, v0")
    A("s_and_saveexec_b64 s[56:57], vcc")
    A("v_cmp_gt_u32 vcc, L_end-L_pc, v2")
    A("s_and_b64 exec, exec, vcc")
    A("s_cbranch_execz L_nocpf")
    A("global_load_dword v255, v2, s[54:55]")
    A("L_nocpf:")
    A("s_mov_b64 exec, s[56:57]")
A("v_lshrrev_b32 v1, 6, v0")
A("v_and_b32 v0, 63, v0")
A(f"v_readfirstlane_b32 s{S_WV}, v1")
A(f"v_lshrrev_b32 v{T}, 3, v0")
A(f"v_and_b32 v{T+1}, 7, v0")
A(f"v_lshlrev_b32 v{T+1}, 4, v{T+1}")
A(f"v_mul_u32_u24 v{V_XOFF}, 896, v{T}")
A(f"v_add_u32 v{V_XOFF}, v{V_XOFF}, v{T+1}")
A(f"v_lshlrev_b32 v{V_L16}, 4, v0")
A(f"s_lshr_b32 s{S_T}, s2, 4")
A(f"s_lshl_b32 s{S_T}, s{S_T}, 3")
A(f"s_and_b32 s{S_T2}, s2, 7")
A(f"s_add_u32 s{S_T}, s{S_T}, s{S_T2}")
A(f"s_mul_i32 s{S_OO}, s{S_T}, {128*896}")
A(f"s_mul_i32 s{S_T}, s{S_WV}, {8*896}")
A(f"s_add_u32 s{S_XO}, s{S_OO}, s{S_T}")
A(f"s_add_u32 s{S_X2}, s{S_XO}, {64*896}")
for r, n in ((R_G, 896), (R_B, 896), (R_X, XB), (R_W, 448 * 896)):
    A(f"s_mov_b32 s{r+2}, {n}"); A(f"s_mov_b32 s{r+3}, 0x20000")
A(f"s_cmp_lg_u32 s{S_WV}, 0")
A("s_waitcnt lgkmcnt(0)")
A("s_cbranch_scc1 L_nogb")
srd2(R_G, S_G); srd2(R_B, S_B)
A(f"buffer_load_dwordx4 {v(GRAW,4)}, v{V_L16}, s[{R_G}:{R_G+3}], 0 offen")
A(f"buffer_load_dwordx4 {v(GRAW+4,4)}, v{V_L16}, s[{R_B}:{R_B+3}], 0 offen")
A("L_nogb:")
srd2(R_X, S_X)
for i in range(7):
    emit(("vm", f"x1_{i}", f"buffer_load_dwordx4 {v(X1+4*i,4)}, v{V_XOFF}, s[{R_X}:{R_X+3}], s{S_XO} offen offset:{128*i} {XFL}"))
def x2load(i): return ("vm", f"x2_{i}", f"buffer_load_dwordx4 {v(X2+4*i,4)}, v{V_XOFF}, s[{R_X}:{R_X+3}], s{S_X2} offen offset:{128*i} {XFL}")
stamp(1)
PRIO = opt("--prio", 0, int)
if PRIO:
    A(f"s_lshr_b32 s{S_T}, s{S_WV}, 2")
    A(f"s_cmp_eq_u32 s{S_T}, 0")
    A("s_cbranch_scc1 L_nop")
    A(f"s_setprio {PRIO}")
    A("L_nop:")
srd2(R_W, S_W)
srd(A, R_O, S_O, XB)
if STAMPS: srd(A, R_WS, S_WS, 1 << 22)
A(f"s_bfe_u32 s{S_WO}, s2, 0x10003")
A(f"s_mul_i32 s{S_WO}, s{S_WO}, 448")
A(f"s_add_u32 s{S_OO}, s{S_OO}, s{S_WO}")
A(f"s_and_b32 s{S_PF}, s2, 0xf8")
A(f"s_add_u32 s{S_PF}, s{S_PF}, s{S_WV}")
A(f"s_mul_i32 s{S_PF}, s{S_PF}, 1568")
A(f"v_mul_u32_u24 v{V_LW}, {P}, v{T}")
A(f"v_add_u32 v{V_LW}, v{V_LW}, v{T+1}")
A(f"s_mul_i32 s{S_T}, s{S_WV}, {8*P}")
A(f"v_add_u32 v{V_LW}, s{S_T}, v{V_LW}")
A(f"v_lshlrev_b32 v{V_SR}, 1, v{T+1}")
A(f"v_add_u32 v{V_SR}, {SCR}, v{V_SR}")
A(f"v_and_b32 v{T}, 15, v0")
A(f"v_lshrrev_b32 v{T+1}, 4, v0")
A(f"v_mul_u32_u24 v{V_AR}, {P}, v{T}")
A(f"v_lshl_add_u32 v{V_AR}, v{T+1}, 4, v{V_AR}")
A(f"v_add_u32 v{V_AR2}, {64*P}, v{V_AR}")
A(f"s_cmp_gt_u32 s{S_WV}, {SW}")
A(f"s_subb_u32 s{S_T}, s{S_WV}, 0")
A(f"s_lshl_b32 s{S_T}, s{S_T}, 6")
A(f"s_add_u32 s{S_T}, s{S_T}, {RING}")
A(f"s_sub_u32 s{S_T2}, s{S_T}, {RING}")
A(f"s_add_u32 s{S_OO}, s{S_OO}, s{S_T2}")
A(f"s_mul_i32 s{S_RB}, s{S_WV}, {4*16*PS}")
A(f"s_add_u32 s{S_RB}, s{S_RB}, {OST}")
A(f"v_mul_u32_u24 v{V_OW}, {PS}, v{T}")
A(f"v_lshl_add_u32 v{V_OW}, v{T+1}, 3, v{V_OW}")
A(f"v_add_u32 v{V_OW}, s{S_RB}, v{V_OW}")
A(f"v_lshrrev_b32 v{T+2}, 2, v0")
A(f"v_and_b32 v{T+3}, 3, v0")
A(f"v_mul_u32_u24 v{V_OR}, {PS}, v{T+2}")
A(f"v_lshl_add_u32 v{V_OR}, v{T+3}, 4, v{V_OR}")
A(f"v_add_u32 v{V_OR}, s{S_RB}, v{V_OR}")
A(f"v_mul_u32_u24 v{V_OG}, 896, v{T+2}")
A(f"v_lshl_add_u32 v{V_OG}, v{T+3}, 4, v{V_OG}")
A(f"v_lshrrev_b32 v{T+2}, 2, v0")
A(f"v_mul_u32_u24 v{V_T0}, 448, v{T+2}")
A(f"v_and_b32 v{T+2}, 3, v0")
A(f"v_lshl_add_u32 v{V_T0}, v{T+2}, 3, v{V_T0}")
A(f"v_add_u32 v{V_T0}, s{S_T}, v{V_T0}")
A(f"v_and_b32 v{T+1}, 1, v{T+1}")
A(f"v_lshlrev_b32 v{T+1}, 5, v{T+1}")
A(f"v_sub_u32 v{V_T1}, v{V_T0}, v{T+1}")
A(f"v_add_u32 v{V_T1}, 32, v{V_T1}")
A(f"v_add_u32 v{V_T0}, v{V_T0}, v{T+1}")
A(f"v_mov_b32 v{V_MSK}, 0xffff0000")
A(f"v_mov_b32 v{V_ONE}, 0x3f803f80")
A(f"s_cmp_lg_u32 s{S_WV}, 0")
A("s_cbranch_scc1 L_nogb2")
A(f"v_lshlrev_b32 v{T}, 5, v0")
A(f"v_add_u32 v{T}, {SCR}, v{T}")
A(f"s_waitcnt vmcnt(7)")
U = Bv + 40
for j in range(8):
    A(f"v_lshlrev_b32 v{U+2*j}, 16, v{GRAW+j}")
    A(f"v_and_b32 v{U+2*j+1}, v{V_MSK}, v{GRAW+j}")
A(f"ds_write_b128 v{T}, {v(U,4)}")
A(f"ds_write_b128 v{T}, {v(U+4,4)} offset:16")
A(f"ds_write_b128 v{T}, {v(U+8,4)} offset:2048")
A(f"ds_write_b128 v{T}, {v(U+12,4)} offset:2064")
A("s_waitcnt lgkmcnt(0)")
A("L_nogb2:")
for i in range(XF): emit(x2load(i))
RS = T + 4
def layernorm(X, tag, first, yoff, hook):
    SUM, SQ = T, T + 1
    for r in range(4): A(f"v_mov_b32 v{T+r}, 0")
    GP = opt("--gpos", 0, int)
    for i in range(7):
        if first and i == GP:
            A("s_barrier")
            stamp(2)
        if first and i >= GP:
            for c in range(7):
                if GP + c * (7 - GP) // 7 == i:
                    A(f"ds_read_b128 {v(G+8*c,4)}, v{V_SR} offset:{256*c}")
                    A(f"ds_read_b128 {v(G+8*c+4,4)}, v{V_SR} offset:{256*c+16}")
                    A(f"ds_read_b128 {v(Bv+8*c,4)}, v{V_SR} offset:{2048+256*c}")
                    A(f"ds_read_b128 {v(Bv+8*c+4,4)}, v{V_SR} offset:{2048+256*c+16}")
        emit(("vmwait", f"{tag}_{i}"))
        hook(i)
        for j in range(4):
            r = X + 4 * i + j
            A(f"v_dot2c_f32_bf16 v{SUM + 2*(j&1)}, v{V_ONE}, v{r}")
            A(f"v_dot2c_f32_bf16 v{SQ + 2*(j&1)}, v{r}, v{r}")
        if i < 6:
            for j in range(4):
                A(f"v_lshlrev_b32 v{F+8*i+2*j}, 16, v{X+4*i+j}")
                A(f"v_and_b32 v{F+8*i+2*j+1}, v{V_MSK}, v{X+4*i+j}")
    up = []
    for j in range(4):
        up.append(f"v_lshlrev_b32 v{F+48+2*j}, 16, v{X+24+j}")
        up.append(f"v_and_b32 v{F+48+2*j+1}, v{V_MSK}, v{X+24+j}")
    A(up[0]); A(up[1]); A(up[2])
    A(f"v_add_f32 v{SUM}, v{SUM}, v{SUM+2}")
    A(f"v_add_f32 v{SQ}, v{SQ}, v{SQ+2}")
    for n, dpp in enumerate(("quad_perm:[1,0,3,2]", "quad_perm:[2,3,0,1]", "row_half_mirror")):
        A(up[3 + n])
        A(f"v_add_f32_dpp v{SUM}, v{SUM}, v{SUM} {dpp} row_mask:0xf bank_mask:0xf")
        A(f"v_add_f32_dpp v{SQ}, v{SQ}, v{SQ} {dpp} row_mask:0xf bank_mask:0xf")
    MEAN = T + 2
    A(f"v_mul_f32 v{MEAN}, {f2u(1/448):#x}, v{SUM}")
    A(f"v_mul_f32 v{SQ}, {f2u(1/448):#x}, v{SQ}")
    A(f"v_fma_f32 v{SQ}, -v{MEAN}, v{MEAN}, v{SQ}")
    A(f"v_max_f32 v{SQ}, 0, v{SQ}")
    A(f"v_add_f32 v{SQ}, {f2u(1e-5):#x}, v{SQ}")
    A(f"v_rsq_f32 v{RS}, v{SQ}")
    A(up[6]); A(up[7])
    A(f"v_mul_f32 v{RS+1}, -v{MEAN}, v{RS}")
    stamp(3 if first else 5)
    if first: A("s_waitcnt lgkmcnt(0)")
    def s1(i): return [f"v_pk_fma_f32 {v(F+8*i+2*j,2)}, {v(F+8*i+2*j,2)}, {v(RS,2)}, {v(RS,2)} op_sel:[0,0,1] op_sel_hi:[1,0,1]" for j in range(4)]
    def s2(i): return [f"v_pk_fma_f32 {v(F+8*i+2*j,2)}, {v(F+8*i+2*j,2)}, {v(G+8*i+2*j,2)}, {v(Bv+8*i+2*j,2)}" for j in range(4)]
    def s3(i): return [f"v_cvt_pk_bf16_f32 v{X+4*i+j}, v{F+8*i+2*j}, v{F+8*i+2*j+1}" for j in range(4)] + \
                      [f"ds_write_b128 v{V_LW}, {v(X+4*i,4)} offset:{yoff + 128*i}"]
    for step in range(9):
        if step < 7:
            for l_ in s1(step): A(l_)
        if 0 <= step - 1 < 7:
            for l_ in s2(step - 1): A(l_)
        if 0 <= step - 2 < 7:
            for l_ in s3(step - 2): A(l_)
def pfissue():
    emit(("vm", "pf", f"buffer_load_dwordx4 {v(240,4)}, v{V_L16}, s[{R_W}:{R_W+3}], s{S_PF} offen"))
    A("s_mov_b32 exec_hi, 3")
    emit(("vm", "pf", f"buffer_load_dwordx4 {v(244,4)}, v{V_L16}, s[{R_W}:{R_W+3}], s{S_PF} offen offset:1024"))
    A("s_mov_b32 exec_hi, -1")
    if TLB: emit(("vm", "pf", f"buffer_load_dword v248, off, s[{R_O}:{R_O+3}], s{S_OO}"))
def hook1(i):
    if i + XF < 7: emit(x2load(i + XF))
    if PF and PFP < 0 and i == 6: pfissue()
def hook2(i):
    if PF and i == PFP: pfissue()
layernorm(X1, "x1", True, 0, hook1)
stamp(4)
layernorm(X2, "x2", False, 64 * P, hook2)
A(f"s_cmp_eq_u32 s{S_WV}, {SW}")
A("s_cbranch_scc1 L_w7")

hq = Q(); hq.vm = list(q.vm); q = Q()
WR = 16; ACC1 = 128; ACC2 = 160; AF = 176
def wreg(k, t): return WR + 8 * k + 4 * t
def trread(k):
    return [("lg", f"B{k}", f"ds_read_b64_tr_b16 {v(wreg(k,t)+2*hf,2)}, v{V_T1 if t else V_T0} offset:{SLOT*(k%3) + 16*448*hf}")
            for t in range(2) for hf in range(2)]
def aread(tag, buf, mt, k):
    return ("lg", tag, f"ds_read_b128 {v(AF+4*buf,4)}, v{V_AR if mt < 4 else V_AR2} offset:{(mt&3)*16*P + 64*k}")
def epi(areg, mt):
    out = []
    for t in range(2):
        d = areg + 4 * t
        out.append(f"v_cvt_pk_bf16_f32 v{d}, v{d}, v{d+1}")
        out.append(f"v_cvt_pk_bf16_f32 v{d+1}, v{d+2}, v{d+3}")
        out.append(("lg", f"OW{mt}", f"ds_write_b64 v{V_OW}, {v(d,2)} offset:{(mt&3)*16*PS + 32*t}"))
    return out
def epi_b(areg, mt): return [("lgwait", f"OW{mt}"), ("lg", f"OR{mt}", f"ds_read_b128 {v(areg+4,4)}, v{V_OR} offset:{(mt&3)*16*PS}")]
def epi_c(areg, mt):
    fl = STFL if mt < opt("--plainfrom", 8, int) else opt("--lastfl", "", str)
    return [f"s_add_u32 s{S_T}, s{S_OO}, {16*896*mt}", ("lgwait", f"OR{mt}"), f"buffer_store_dwordx4 {v(areg+4,4)}, v{V_OG}, s[{R_O}:{R_O+3}], s{S_T} offen {fl}"]
A("s_waitcnt lgkmcnt(0)")
stamp(6)
if PRIO: A("s_setprio 0")
A("s_barrier")
for mt in range(4): emit(aread(f"A0_{mt}", mt, mt, 0))
if not EARLYW: A("s_barrier")
stamp(7)
for it in trread(0): emit(it)
BPOS = opt("--bpos", 3, int)
for k in range(14):
    if k % 2 == 0: stamp(1 + k // 2, True)
    fill = {g_: [] for g_ in range(8)}
    for mt in range(4):
        fill[mt].append(aread(f"A{k+1}_{mt}", 4 * ((k + 1) & 1) + mt, mt, k + 1) if k + 1 < 14 else aread(f"P4_{mt}", mt, 4, mt))
    fill[BPOS].append("s_barrier")
    if k + 1 < 14:
        for i_, it in enumerate(trread(k + 1)): fill[min(BPOS + 1 + i_ // TRP, 7)].append(it)
    emit(("lgwait", f"B{k}")); emit(("lgwait", f"A{k}_3"))
    for mt in range(4):
        for t in range(2):
            d = ACC1 + 8 * mt + 4 * t
            A(f"v_mfma_f32_16x16x32_bf16 {v(d,4)}, {v(wreg(k,t),4)}, {v(AF+4*(4*(k&1)+mt),4)}, {'0' if k == 0 else v(d,4)}")
            for it in fill[2 * mt + t]: emit(it)
stamp(8, True)
stamp(8)
seq = [(mt, k) for mt in range(4, 8) for k in range(14)]
PFD = opt("--pfd", 4, int)
def areg(mt): return ACC1 + 8 * mt if mt < 4 else ACC2 + 8 * (mt & 1)
plan = {}
def sched(n0, mt):
    e = epi(areg(mt), mt)
    plan.setdefault(n0, []).extend(e[:3]); plan.setdefault(n0 + 1, []).extend(e[3:])
    plan.setdefault(n0 + 4, []).extend(epi_b(areg(mt), mt)); plan.setdefault(n0 + 7, []).extend(epi_c(areg(mt), mt))
ES = opt("--es", 3, int)
for mt in range(4): sched(2 + ES * mt, mt)
for mt in range(4, 7): sched(14 * (mt - 3) + 3, mt)
for d_ in range(4, PFD): emit(aread(f"P4_{d_}", d_, 4, d_))
for n, (mt, k) in enumerate(seq):
    if k == 0: stamp(5 + mt, True)
    emit(("lgwait", f"P{mt}_{k}"))
    for t in range(2):
        d = ACC2 + 8 * (mt & 1) + 4 * t
        A(f"v_mfma_f32_16x16x32_bf16 {v(d,4)}, {v(wreg(k,t),4)}, {v(AF+4*(n&7),4)}, {'0' if k == 0 else v(d,4)}")
        if t == 0 and n + PFD < len(seq): emit(aread(f"P{seq[n+PFD][0]}_{seq[n+PFD][1]}", (n + PFD) & 7, *seq[n + PFD]))
        if t == 1:
            for it in plan.pop(n, []): emit(it)
assert not plan
stamp(13, True)
stamp(9)
A("s_nop 7")
for it in epi(areg(7), 7) + epi_b(areg(7), 7) + epi_c(areg(7), 7): emit(it)
stamp(10)
A("s_branch L_fin")

A("L_w7:")
q = hq
VW = 16; VO = 24; VR = 32; OB = 40
A(f"s_movk_i32 s{S_T}, {896-448}")
A(f"v_mul_u32_u24 v{T+2}, 2341, v0")
for i in range(7):
    if i: A(f"v_add_u32 v{T}, {64*i*2341}, v{T+2}")
    A(f"v_lshrrev_b32 v{T}, 16, v{T if i else T+2}")
    A(f"v_add_u32 v{T+1}, {1024*i}, v{V_L16}")
    A(f"v_mad_u32_u24 v{VO+i}, v{T}, s{S_T}, v{T+1}")
    A(f"v_lshrrev_b32 v{T+1}, 2, v{T}")
    A(f"v_mul_u32_u24 v{T+1}, {4*896}, v{T+1}")
    A(f"v_and_b32 v{T}, 4, v{T}")
    A(f"v_lshlrev_b32 v{T}, 3, v{T}")
    A(f"v_xor_b32 v{T}, v{T}, v{VO+i}")
    A(f"v_add_u32 v{VW+i}, v{T}, v{T+1}")
    if i & 3: A(f"v_subrev_u32 v{VW+i}, {1024*(i&3)}, v{VW+i}")
def dma(k):
    out = []
    for hf in range(2):
        for i in range(7):
            if (i & 3) == 0:
                out.append(f"s_add_u32 m0, {RING + SLOT*(k%3) + 7168*hf + 1024*i}, 0")
                out.append(f"s_add_u32 s{S_T}, s{S_WO}, {(32*k + 4*hf)*896}")
            out.append(("vm", f"W{k}", f"buffer_load_dwordx4 v{VW+i}, s[{R_W}:{R_W+3}], s{S_T} offen offset:{1024*(i&3)} lds"))
    return out
def issue(l):
    for it in l: emit(it)
A("s_waitcnt lgkmcnt(0)")
stamp(6)
if not EARLYW: A("s_barrier")
issue(dma(0)); issue(dma(1))
if not EARLYW: issue(dma(2))
for k in range(14):
    emit(("vmwait", f"W{k}"))
    if k == 0 or not flag("--nobar"): A("s_barrier")
    if (k >= 1 or EARLYW) and k + 2 < 14: issue(dma(k + 2))
stamp(8)
A("s_barrier")
A("L_fin:")
if STAMPS:
    A("s_waitcnt vmcnt(0)")
    stamp(11)
    A("s_waitcnt lgkmcnt(0)")
    if PROBE is not None:
        A(f"s_cmp_lg_u32 s{S_WV}, {PROBE[0]}")
        A("s_cbranch_scc1 L_nospin")
        if PROBE[1] == "f":
            A(f"s_mov_b32 s{S_T}, {int(PROBE[2:])}")
        else:
            pi, pj = int(PROBE[1], 16), int(PROBE[2], 16)
            A(f"s_sub_u32 s{S_T}, s{S_ST+2*pi}, s{S_ST+2*pj}")
            A(f"s_lshl_b32 s{S_T}, s{S_T}, 1")
            A(f"s_add_u32 s{S_T}, s{S_T}, 1500")
        A(f"s_add_u32 s{S_T}, s{S_T}, s{S_ST}")
        A("L_spin:")
        A(f"s_memrealtime s[{S_ST+30}:{S_ST+31}]")
        A("s_waitcnt lgkmcnt(0)")
        A(f"s_sub_u32 s{S_T2}, s{S_ST+30}, s{S_T}")
        A(f"s_cmp_lt_i32 s{S_T2}, 0")
        A("s_cbranch_scc1 L_spin")
        A("L_nospin:")
    A(f"s_lshl_b32 s{S_T}, s2, 11")
    A(f"s_lshl_b32 s{S_T2}, s{S_WV}, 7")
    A(f"s_add_u32 s{S_T}, s{S_T}, s{S_T2}")
    A("v_mov_b32 v14, 0")
    A("v_cmp_eq_u32 vcc, 0, v0")
    A("s_and_saveexec_b64 s[4:5], vcc")
    for i in range(NSTAMP):
        A(f"v_mov_b32 v12, s{S_ST+2*i}")
        A(f"v_mov_b32 v13, s{S_ST+2*i+1}")
        A(f"buffer_store_dwordx2 v[12:13], v14, s[{R_WS}:{R_WS+3}], s{S_T} offen offset:{8*i}")
        A("s_waitcnt vmcnt(0)")
A("L_end:")
A("s_endpgm")
out = wrap(A.text(), 256, 512, LDS_TOTAL, 256, 100 if STAMPS else 60, 256, notes="TE: 128x224 tile per workgroup")
open(sys.argv[1], "w").write(out)
```

```python
import sys, struct
from asmgen import *
def flag(n): return n in sys.argv
def opt(n, d, t=str): return t(sys.argv[sys.argv.index(n)+1]) if n in sys.argv else d
STAMPS = flag("--stamps"); PROBE = opt("--probe", None)
PF = not flag("--nopf"); TLB = flag("--tlb")
CYC = flag("--cyc"); FINE = flag("--fine")
CPF = opt("--cpf", 512, int)
STFL = opt("--st", "sc1", str); XFL = opt("--xfl", "", str)
if STFL == "plain": STFL = ""
TRP = opt('--trp', 2, int)
ALT = opt('--alt', 0, int)
PFP = opt("--pfp", 3, int)
XF = opt("--xfirst", 0, int)
def f2u(f): return struct.unpack("<I", struct.pack("<f", f))[0]
A = Asm()
P = 928; PS = 80
XB = 16384 * 896
RING = 128 * P
SLOT = 14336
SCR = RING + 2 * SLOT
LDS_TOTAL = 163840
OST = RING
assert RING + 3 * SLOT <= LDS_TOTAL
S_X, S_G, S_B, S_W, S_O, S_WS = 4, 6, 8, 10, 12, 14
R_X, R_W, R_O, R_G, R_B, R_WS = 16, 20, 24, 28, 32, 36
S_WV, S_XO, S_WO, S_OO, S_ONE, S_T, S_RB, S_T2, S_MSK, S_PF, S_X2 = 40, 41, 42, 43, 44, 45, 46, 47, 48, 49, 50
S_ST = 66; NSTAMP = 16
def stamp(i, fine=False):
    if STAMPS and (fine == FINE or i == 0):
        A(f"{'s_memtime' if CYC else 's_memrealtime'} s[{S_ST+2*i}:{S_ST+2*i+1}]")
def srd2(d, b):
    A(f"s_mov_b32 s{d}, s{b}"); A(f"s_and_b32 s{d+1}, s{b+1}, 0xffff")
class Q:
    def __init__(s): s.vm = []; s.lg = []
q = Q()
def qwait(l, tag, name, cap):
    if tag not in l: return None
    idx = max(i for i, t in enumerate(l) if t == tag)
    n = len(l) - 1 - idx
    del l[:idx + 1]
    return f"s_waitcnt {name}({min(n,cap)})"
def emit(item):
    if isinstance(item, str): A(item); return
    if item[0] == "vm": q.vm.append(item[1]); A(item[2])
    elif item[0] == "lg": q.lg.append(item[1]); A(item[2])
    else:
        w = qwait(q.vm, item[1], "vmcnt", 63) if item[0] == "vmwait" else qwait(q.lg, item[1], "lgkmcnt", 15)
        if w: A(w)

V_XOFF, V_L16, V_LW, V_SR, V_T0, V_T1, V_AR, V_AR2, V_OW = 1, 2, 3, 4, 5, 6, 7, 8, 9
V_MSK, V_ONE, V_OR, V_OG = 250, 251, 252, 253
T = 10
X1, X2, G, Bv, F, GRAW = 16, 44, 72, 128, 184, 240
SW = opt('--sw', 3, int)
EARLYW = not flag('--latew')
A("s_cmp_ge_u32 s2, 256")
A("s_cbranch_scc1 L_end")
stamp(0)
if flag("--dbgskew"): A("s_memrealtime s[62:63]")
A("s_load_dwordx8 s[4:11], s[0:1], 0")
A("s_load_dwordx2 s[12:13], s[0:1], 32")
if STAMPS: A("s_load_dwordx2 s[14:15], s[0:1], 48")
if CPF:
    A("s_getpc_b64 s[54:55]")
    A("L_pc:")
    A("s_lshr_b32 s3, s2, 3")
    A(f"s_mul_i32 s3, s3, {CPF}")
    A("v_lshl_add_u32 v2, v0, 2, s3")
    A(f"v_cmp_gt_u32 vcc, {CPF//4}, v0")
    A("s_and_saveexec_b64 s[56:57], vcc")
    A("v_cmp_gt_u32 vcc, L_end-L_pc, v2")
    A("s_and_b64 exec, exec, vcc")
    A("s_cbranch_execz L_nocpf")
    A("global_load_dword v255, v2, s[54:55]")
    A("L_nocpf:")
    A("s_mov_b64 exec, s[56:57]")
A("v_lshrrev_b32 v1, 6, v0")
A("v_and_b32 v0, 63, v0")
A(f"v_readfirstlane_b32 s{S_WV}, v1")
A(f"v_lshrrev_b32 v{T}, 3, v0")
A(f"v_and_b32 v{T+1}, 7, v0")
A(f"v_lshlrev_b32 v{T+1}, 4, v{T+1}")
A(f"v_mul_u32_u24 v{V_XOFF}, 896, v{T}")
A(f"v_add_u32 v{V_XOFF}, v{V_XOFF}, v{T+1}")
A(f"v_lshlrev_b32 v{V_L16}, 4, v0")
A(f"s_lshr_b32 s{S_T}, s2, 4")
A(f"s_lshl_b32 s{S_T}, s{S_T}, 3")
A(f"s_and_b32 s{S_T2}, s2, 7")
A(f"s_add_u32 s{S_T}, s{S_T}, s{S_T2}")
A(f"s_mul_i32 s{S_OO}, s{S_T}, {128*896}")
A(f"s_mul_i32 s{S_T}, s{S_WV}, {8*896}")
A(f"s_add_u32 s{S_XO}, s{S_OO}, s{S_T}")
A(f"s_add_u32 s{S_X2}, s{S_XO}, {64*896}")
for r, n in ((R_G, 896), (R_B, 896), (R_X, XB), (R_W, 448 * 896)):
    A(f"s_mov_b32 s{r+2}, {n}"); A(f"s_mov_b32 s{r+3}, 0x20000")
A(f"s_cmp_lg_u32 s{S_WV}, 0")
A("s_waitcnt lgkmcnt(0)")
A("s_cbranch_scc1 L_nogb")
srd2(R_G, S_G); srd2(R_B, S_B)
A(f"buffer_load_dwordx4 {v(GRAW,4)}, v{V_L16}, s[{R_G}:{R_G+3}], 0 offen")
A(f"buffer_load_dwordx4 {v(GRAW+4,4)}, v{V_L16}, s[{R_B}:{R_B+3}], 0 offen")
A("L_nogb:")
srd2(R_X, S_X)
for i in range(7):
    emit(("vm", f"x1_{i}", f"buffer_load_dwordx4 {v(X1+4*i,4)}, v{V_XOFF}, s[{R_X}:{R_X+3}], s{S_XO} offen offset:{128*i} {XFL}"))
def x2load(i): return ("vm", f"x2_{i}", f"buffer_load_dwordx4 {v(X2+4*i,4)}, v{V_XOFF}, s[{R_X}:{R_X+3}], s{S_X2} offen offset:{128*i} {XFL}")
stamp(1)
PRIO = opt("--prio", 0, int)
if PRIO:
    A(f"s_lshr_b32 s{S_T}, s{S_WV}, 2")
    A(f"s_cmp_eq_u32 s{S_T}, 0")
    A("s_cbranch_scc1 L_nop")
    A(f"s_setprio {PRIO}")
    A("L_nop:")
srd2(R_W, S_W)
srd(A, R_O, S_O, XB)
if STAMPS: srd(A, R_WS, S_WS, 1 << 22)
A(f"s_bfe_u32 s{S_WO}, s2, 0x10003")
A(f"s_mul_i32 s{S_WO}, s{S_WO}, 448")
A(f"s_add_u32 s{S_OO}, s{S_OO}, s{S_WO}")
A(f"s_and_b32 s{S_PF}, s2, 0xf8")
A(f"s_add_u32 s{S_PF}, s{S_PF}, s{S_WV}")
A(f"s_mul_i32 s{S_PF}, s{S_PF}, 1568")
A(f"v_mul_u32_u24 v{V_LW}, {P}, v{T}")
A(f"v_add_u32 v{V_LW}, v{V_LW}, v{T+1}")
A(f"s_mul_i32 s{S_T}, s{S_WV}, {8*P}")
A(f"v_add_u32 v{V_LW}, s{S_T}, v{V_LW}")
A(f"v_lshlrev_b32 v{V_SR}, 1, v{T+1}")
A(f"v_add_u32 v{V_SR}, {SCR}, v{V_SR}")
A(f"v_and_b32 v{T}, 15, v0")
A(f"v_lshrrev_b32 v{T+1}, 4, v0")
A(f"v_mul_u32_u24 v{V_AR}, {P}, v{T}")
A(f"v_lshl_add_u32 v{V_AR}, v{T+1}, 4, v{V_AR}")
A(f"v_add_u32 v{V_AR2}, {64*P}, v{V_AR}")
A(f"s_cmp_gt_u32 s{S_WV}, {SW}")
A(f"s_subb_u32 s{S_T}, s{S_WV}, 0")
A(f"s_lshl_b32 s{S_T}, s{S_T}, 6")
A(f"s_add_u32 s{S_T}, s{S_T}, {RING}")
A(f"s_sub_u32 s{S_T2}, s{S_T}, {RING}")
A(f"s_add_u32 s{S_OO}, s{S_OO}, s{S_T2}")
A(f"s_mul_i32 s{S_RB}, s{S_WV}, {4*16*PS}")
A(f"s_add_u32 s{S_RB}, s{S_RB}, {OST}")
A(f"v_mul_u32_u24 v{V_OW}, {PS}, v{T}")
A(f"v_lshl_add_u32 v{V_OW}, v{T+1}, 3, v{V_OW}")
A(f"v_add_u32 v{V_OW}, s{S_RB}, v{V_OW}")
A(f"v_lshrrev_b32 v{T+2}, 2, v0")
A(f"v_and_b32 v{T+3}, 3, v0")
A(f"v_mul_u32_u24 v{V_OR}, {PS}, v{T+2}")
A(f"v_lshl_add_u32 v{V_OR}, v{T+3}, 4, v{V_OR}")
A(f"v_add_u32 v{V_OR}, s{S_RB}, v{V_OR}")
A(f"v_mul_u32_u24 v{V_OG}, 896, v{T+2}")
A(f"v_lshl_add_u32 v{V_OG}, v{T+3}, 4, v{V_OG}")
A(f"v_lshrrev_b32 v{T+2}, 2, v0")
A(f"v_mul_u32_u24 v{V_T0}, 448, v{T+2}")
A(f"v_and_b32 v{T+2}, 3, v0")
A(f"v_lshl_add_u32 v{V_T0}, v{T+2}, 3, v{V_T0}")
A(f"v_add_u32 v{V_T0}, s{S_T}, v{V_T0}")
A(f"v_and_b32 v{T+1}, 1, v{T+1}")
A(f"v_lshlrev_b32 v{T+1}, 5, v{T+1}")
A(f"v_sub_u32 v{V_T1}, v{V_T0}, v{T+1}")
A(f"v_add_u32 v{V_T1}, 32, v{V_T1}")
A(f"v_add_u32 v{V_T0}, v{V_T0}, v{T+1}")
A(f"v_mov_b32 v{V_MSK}, 0xffff0000")
A(f"v_mov_b32 v{V_ONE}, 0x3f803f80")
A(f"s_cmp_lg_u32 s{S_WV}, 0")
A("s_cbranch_scc1 L_nogb2")
A(f"v_lshlrev_b32 v{T}, 5, v0")
A(f"v_add_u32 v{T}, {SCR}, v{T}")
A(f"s_waitcnt vmcnt(7)")
U = Bv + 40
for j in range(8):
    A(f"v_lshlrev_b32 v{U+2*j}, 16, v{GRAW+j}")
    A(f"v_and_b32 v{U+2*j+1}, v{V_MSK}, v{GRAW+j}")
A(f"ds_write_b128 v{T}, {v(U,4)}")
A(f"ds_write_b128 v{T}, {v(U+4,4)} offset:16")
A(f"ds_write_b128 v{T}, {v(U+8,4)} offset:2048")
A(f"ds_write_b128 v{T}, {v(U+12,4)} offset:2064")
A("s_waitcnt lgkmcnt(0)")
A("L_nogb2:")
for i in range(XF): emit(x2load(i))
RS = T + 4
def layernorm(X, tag, first, yoff, hook):
    SUM, SQ = T, T + 1
    for r in range(4): A(f"v_mov_b32 v{T+r}, 0")
    GP = opt("--gpos", 0, int)
    for i in range(7):
        if first and i == GP:
            A("s_barrier")
            stamp(2)
        if first and i >= GP:
            for c in range(7):
                if GP + c * (7 - GP) // 7 == i:
                    A(f"ds_read_b128 {v(G+8*c,4)}, v{V_SR} offset:{256*c}")
                    A(f"ds_read_b128 {v(G+8*c+4,4)}, v{V_SR} offset:{256*c+16}")
                    A(f"ds_read_b128 {v(Bv+8*c,4)}, v{V_SR} offset:{2048+256*c}")
                    A(f"ds_read_b128 {v(Bv+8*c+4,4)}, v{V_SR} offset:{2048+256*c+16}")
        emit(("vmwait", f"{tag}_{i}"))
        hook(i)
        for j in range(4):
            r = X + 4 * i + j
            A(f"v_dot2c_f32_bf16 v{SUM + 2*(j&1)}, v{V_ONE}, v{r}")
            A(f"v_dot2c_f32_bf16 v{SQ + 2*(j&1)}, v{r}, v{r}")
        if i < 6:
            for j in range(4):
                A(f"v_lshlrev_b32 v{F+8*i+2*j}, 16, v{X+4*i+j}")
                A(f"v_and_b32 v{F+8*i+2*j+1}, v{V_MSK}, v{X+4*i+j}")
    up = []
    for j in range(4):
        up.append(f"v_lshlrev_b32 v{F+48+2*j}, 16, v{X+24+j}")
        up.append(f"v_and_b32 v{F+48+2*j+1}, v{V_MSK}, v{X+24+j}")
    A(up[0]); A(up[1]); A(up[2])
    A(f"v_add_f32 v{SUM}, v{SUM}, v{SUM+2}")
    A(f"v_add_f32 v{SQ}, v{SQ}, v{SQ+2}")
    for n, dpp in enumerate(("quad_perm:[1,0,3,2]", "quad_perm:[2,3,0,1]", "row_half_mirror")):
        A(up[3 + n])
        A(f"v_add_f32_dpp v{SUM}, v{SUM}, v{SUM} {dpp} row_mask:0xf bank_mask:0xf")
        A(f"v_add_f32_dpp v{SQ}, v{SQ}, v{SQ} {dpp} row_mask:0xf bank_mask:0xf")
    MEAN = T + 2
    A(f"v_mul_f32 v{MEAN}, {f2u(1/448):#x}, v{SUM}")
    A(f"v_mul_f32 v{SQ}, {f2u(1/448):#x}, v{SQ}")
    A(f"v_fma_f32 v{SQ}, -v{MEAN}, v{MEAN}, v{SQ}")
    A(f"v_max_f32 v{SQ}, 0, v{SQ}")
    A(f"v_add_f32 v{SQ}, {f2u(1e-5):#x}, v{SQ}")
    A(f"v_rsq_f32 v{RS}, v{SQ}")
    A(up[6]); A(up[7])
    A(f"v_mul_f32 v{RS+1}, -v{MEAN}, v{RS}")
    stamp(3 if first else 5)
    if first: A("s_waitcnt lgkmcnt(0)")
    def s1(i): return [f"v_pk_fma_f32 {v(F+8*i+2*j,2)}, {v(F+8*i+2*j,2)}, {v(RS,2)}, {v(RS,2)} op_sel:[0,0,1] op_sel_hi:[1,0,1]" for j in range(4)]
    def s2(i): return [f"v_pk_fma_f32 {v(F+8*i+2*j,2)}, {v(F+8*i+2*j,2)}, {v(G+8*i+2*j,2)}, {v(Bv+8*i+2*j,2)}" for j in range(4)]
    def s3(i): return [f"v_cvt_pk_bf16_f32 v{X+4*i+j}, v{F+8*i+2*j}, v{F+8*i+2*j+1}" for j in range(4)] + \
                      [f"ds_write_b128 v{V_LW}, {v(X+4*i,4)} offset:{yoff + 128*i}"]
    for step in range(9):
        if step < 7:
            for l_ in s1(step): A(l_)
        if 0 <= step - 1 < 7:
            for l_ in s2(step - 1): A(l_)
        if 0 <= step - 2 < 7:
            for l_ in s3(step - 2): A(l_)
def pfissue():
    emit(("vm", "pf", f"buffer_load_dwordx4 {v(240,4)}, v{V_L16}, s[{R_W}:{R_W+3}], s{S_PF} offen"))
    A("s_mov_b32 exec_hi, 3")
    emit(("vm", "pf", f"buffer_load_dwordx4 {v(244,4)}, v{V_L16}, s[{R_W}:{R_W+3}], s{S_PF} offen offset:1024"))
    A("s_mov_b32 exec_hi, -1")
    if TLB: emit(("vm", "pf", f"buffer_load_dword v248, off, s[{R_O}:{R_O+3}], s{S_OO}"))
def hook1(i):
    if i + XF < 7: emit(x2load(i + XF))
    if PF and PFP < 0 and i == 6: pfissue()
def hook2(i):
    if PF and i == PFP: pfissue()
layernorm(X1, "x1", True, 0, hook1)
stamp(4)
layernorm(X2, "x2", False, 64 * P, hook2)
A(f"s_cmp_eq_u32 s{S_WV}, {SW}")
A("s_cbranch_scc1 L_w7")

hq = Q(); hq.vm = list(q.vm); q = Q()
WR = 16; ACC1 = 128; ACC2 = 160; AF = 176
def wreg(k, t): return WR + 8 * k + 4 * t
def trread(k):
    return [("lg", f"B{k}", f"ds_read_b64_tr_b16 {v(wreg(k,t)+2*hf,2)}, v{V_T1 if t else V_T0} offset:{SLOT*(k%3) + 16*448*hf}")
            for t in range(2) for hf in range(2)]
def aread(tag, buf, mt, k):
    return ("lg", tag, f"ds_read_b128 {v(AF+4*buf,4)}, v{V_AR if mt < 4 else V_AR2} offset:{(mt&3)*16*P + 64*k}")
def epi(areg, mt):
    out = []
    for t in range(2):
        d = areg + 4 * t
        out.append(f"v_cvt_pk_bf16_f32 v{d}, v{d}, v{d+1}")
        out.append(f"v_cvt_pk_bf16_f32 v{d+1}, v{d+2}, v{d+3}")
        out.append(("lg", f"OW{mt}", f"ds_write_b64 v{V_OW}, {v(d,2)} offset:{(mt&3)*16*PS + 32*t}"))
    return out
def epi_b(areg, mt): return [("lgwait", f"OW{mt}"), ("lg", f"OR{mt}", f"ds_read_b128 {v(areg+4,4)}, v{V_OR} offset:{(mt&3)*16*PS}")]
def epi_c(areg, mt):
    fl = STFL if mt < opt("--plainfrom", 8, int) else opt("--lastfl", "", str)
    return [f"s_add_u32 s{S_T}, s{S_OO}, {16*896*mt}", ("lgwait", f"OR{mt}"), f"buffer_store_dwordx4 {v(areg+4,4)}, v{V_OG}, s[{R_O}:{R_O+3}], s{S_T} offen {fl}"]
A("s_waitcnt lgkmcnt(0)")
stamp(6)
if PRIO: A("s_setprio 0")
A("s_barrier")
for mt in range(4): emit(aread(f"A0_{mt}", mt, mt, 0))
if not EARLYW: A("s_barrier")
stamp(7)
for it in trread(0): emit(it)
BPOS = opt("--bpos", 3, int)
for k in range(14):
    if k % 2 == 0: stamp(1 + k // 2, True)
    fill = {g_: [] for g_ in range(8)}
    for mt in range(4):
        fill[mt].append(aread(f"A{k+1}_{mt}", 4 * ((k + 1) & 1) + mt, mt, k + 1) if k + 1 < 14 else aread(f"P4_{mt}", mt, 4, mt))
    fill[BPOS].append("s_barrier")
    if k + 1 < 14:
        for i_, it in enumerate(trread(k + 1)): fill[min(BPOS + 1 + i_ // TRP, 7)].append(it)
    if ALT:
        fill[0].append(f"s_setprio {2 if (k & 1) == 0 else 0}" if ALT == 2 else "s_setprio 2")
        if ALT == 1: fill[4].append("s_setprio 0")
    emit(("lgwait", f"B{k}")); emit(("lgwait", f"A{k}_3"))
    for mt in range(4):
        for t in range(2):
            d = ACC1 + 8 * mt + 4 * t
            A(f"v_mfma_f32_16x16x32_bf16 {v(d,4)}, {v(wreg(k,t),4)}, {v(AF+4*(4*(k&1)+mt),4)}, {'0' if k == 0 else v(d,4)}")
            for it in fill[2 * mt + t]: emit(it)
stamp(8, True)
stamp(8)
seq = [(mt, k) for mt in range(4, 8) for k in range(14)]
PFD = opt("--pfd", 4, int)
def areg(mt): return ACC1 + 8 * mt if mt < 4 else ACC2 + 8 * (mt & 1)
plan = {}
def sched(n0, mt):
    e = epi(areg(mt), mt)
    plan.setdefault(n0, []).extend(e[:3]); plan.setdefault(n0 + 1, []).extend(e[3:])
    plan.setdefault(n0 + 4, []).extend(epi_b(areg(mt), mt)); plan.setdefault(n0 + 7, []).extend(epi_c(areg(mt), mt))
ES = opt("--es", 3, int)
for mt in range(4): sched(2 + ES * mt, mt)
for mt in range(4, 7): sched(14 * (mt - 3) + 3, mt)
for d_ in range(4, PFD): emit(aread(f"P4_{d_}", d_, 4, d_))
for n, (mt, k) in enumerate(seq):
    if k == 0: stamp(5 + mt, True)
    emit(("lgwait", f"P{mt}_{k}"))
    for t in range(2):
        d = ACC2 + 8 * (mt & 1) + 4 * t
        A(f"v_mfma_f32_16x16x32_bf16 {v(d,4)}, {v(wreg(k,t),4)}, {v(AF+4*(n&7),4)}, {'0' if k == 0 else v(d,4)}")
        if t == 0 and n + PFD < len(seq): emit(aread(f"P{seq[n+PFD][0]}_{seq[n+PFD][1]}", (n + PFD) & 7, *seq[n + PFD]))
        if t == 1:
            for it in plan.pop(n, []): emit(it)
assert not plan
stamp(13, True)
stamp(9)
A("s_nop 7")
for it in epi(areg(7), 7) + epi_b(areg(7), 7) + epi_c(areg(7), 7): emit(it)
stamp(10)
A("s_branch L_fin")

A("L_w7:")
q = hq
VW = 16; VO = 24; VR = 32; OB = 40
A(f"s_movk_i32 s{S_T}, {896-448}")
A(f"v_mul_u32_u24 v{T+2}, 2341, v0")
for i in range(7):
    if i: A(f"v_add_u32 v{T}, {64*i*2341}, v{T+2}")
    A(f"v_lshrrev_b32 v{T}, 16, v{T if i else T+2}")
    A(f"v_add_u32 v{T+1}, {1024*i}, v{V_L16}")
    A(f"v_mad_u32_u24 v{VO+i}, v{T}, s{S_T}, v{T+1}")
    A(f"v_lshrrev_b32 v{T+1}, 2, v{T}")
    A(f"v_mul_u32_u24 v{T+1}, {4*896}, v{T+1}")
    A(f"v_and_b32 v{T}, 4, v{T}")
    A(f"v_lshlrev_b32 v{T}, 3, v{T}")
    A(f"v_xor_b32 v{T}, v{T}, v{VO+i}")
    A(f"v_add_u32 v{VW+i}, v{T}, v{T+1}")
    if i & 3: A(f"v_subrev_u32 v{VW+i}, {1024*(i&3)}, v{VW+i}")
def dma(k):
    out = []
    for hf in range(2):
        for i in range(7):
            if (i & 3) == 0:
                out.append(f"s_add_u32 m0, {RING + SLOT*(k%3) + 7168*hf + 1024*i}, 0")
                out.append(f"s_add_u32 s{S_T}, s{S_WO}, {(32*k + 4*hf)*896}")
            out.append(("vm", f"W{k}", f"buffer_load_dwordx4 v{VW+i}, s[{R_W}:{R_W+3}], s{S_T} offen offset:{1024*(i&3)} lds"))
    return out
def issue(l):
    for it in l: emit(it)
A("s_waitcnt lgkmcnt(0)")
stamp(6)
if not EARLYW: A("s_barrier")
issue(dma(0)); issue(dma(1))
if not EARLYW: issue(dma(2))
for k in range(14):
    emit(("vmwait", f"W{k}"))
    if k == 0 or not flag("--nobar"): A("s_barrier")
    if (k >= 1 or EARLYW) and k + 2 < 14: issue(dma(k + 2))
stamp(8)
A("s_barrier")
A("L_fin:")
if flag("--dbgskew"):
    A("s_waitcnt vmcnt(0)")
    A("s_memrealtime s[100:101]") if False else None
    A("s_memrealtime s[58:59]")
    A("s_load_dwordx2 s[14:15], s[0:1], 40")
    A("s_getreg_b32 s60, hwreg(HW_REG_XCC_ID)")
    A("s_waitcnt lgkmcnt(0)")
    srd(A, R_WS, S_WS, 256)
    A("s_and_b32 s60, s60, 7")
    A("s_lshl_b32 s60, s60, 3")
    A("v_mov_b32 v12, s62")
    A("v_mov_b32 v13, s58")
    A("v_cmp_eq_u32 vcc, 0, v0")
    A("s_and_saveexec_b64 s[4:5], vcc")
    A(f"buffer_atomic_umax v12, off, s[{R_WS}:{R_WS+3}], s60")
    A(f"buffer_atomic_umax v13, off, s[{R_WS}:{R_WS+3}], s60 offset:4")
    A("s_waitcnt vmcnt(0)")
if STAMPS:
    A("s_waitcnt vmcnt(0)")
    stamp(11)
    A("s_waitcnt lgkmcnt(0)")
    if PROBE is not None:
        A(f"s_cmp_lg_u32 s{S_WV}, {PROBE[0]}")
        A("s_cbranch_scc1 L_nospin")
        if PROBE[1] == "f":
            A(f"s_mov_b32 s{S_T}, {int(PROBE[2:])}")
        else:
            pi, pj = int(PROBE[1], 16), int(PROBE[2], 16)
            A(f"s_sub_u32 s{S_T}, s{S_ST+2*pi}, s{S_ST+2*pj}")
            A(f"s_lshl_b32 s{S_T}, s{S_T}, 1")
            A(f"s_add_u32 s{S_T}, s{S_T}, 1500")
        A(f"s_add_u32 s{S_T}, s{S_T}, s{S_ST}")
        A("L_spin:")
        A(f"s_memrealtime s[{S_ST+30}:{S_ST+31}]")
        A("s_waitcnt lgkmcnt(0)")
        A(f"s_sub_u32 s{S_T2}, s{S_ST+30}, s{S_T}")
        A(f"s_cmp_lt_i32 s{S_T2}, 0")
        A("s_cbranch_scc1 L_spin")
        A("L_nospin:")
    A(f"s_lshl_b32 s{S_T}, s2, 11")
    A(f"s_lshl_b32 s{S_T2}, s{S_WV}, 7")
    A(f"s_add_u32 s{S_T}, s{S_T}, s{S_T2}")
    A("v_mov_b32 v14, 0")
    A("v_cmp_eq_u32 vcc, 0, v0")
    A("s_and_saveexec_b64 s[4:5], vcc")
    for i in range(NSTAMP):
        A(f"v_mov_b32 v12, s{S_ST+2*i}")
        A(f"v_mov_b32 v13, s{S_ST+2*i+1}")
        A(f"buffer_store_dwordx2 v[12:13], v14, s[{R_WS}:{R_WS+3}], s{S_T} offen offset:{8*i}")
        A("s_waitcnt vmcnt(0)")
A("L_end:")
A("s_endpgm")
out = wrap(A.text(), 256, 512, LDS_TOTAL, 256, 100 if STAMPS else 64, 256, notes="TE: 128x224 tile per workgroup")
open(sys.argv[1], "w").write(out)
```

```python
import sys, struct
from asmgen import *
def flag(n): return n in sys.argv
def opt(n, d, t=str): return t(sys.argv[sys.argv.index(n)+1]) if n in sys.argv else d
STAMPS = flag("--stamps"); PROBE = opt("--probe", None)
PF = not flag("--nopf"); TLB = flag("--tlb")
CYC = flag("--cyc"); FINE = flag("--fine")
CPF = opt("--cpf", 512, int)
STFL = opt("--st", "sc1", str); XFL = opt("--xfl", "", str)
if STFL == "plain": STFL = ""
TRP = opt('--trp', 2, int)
ALT = opt('--alt', 0, int)
PFP = opt("--pfp", 3, int)
XF = opt("--xfirst", 0, int)
def f2u(f): return struct.unpack("<I", struct.pack("<f", f))[0]
A = Asm()
P = 928; PS = 80
XB = 16384 * 896
RING = 128 * P
SLOT = 14336
SCR = RING + 2 * SLOT
LDS_TOTAL = 163840
OST = RING
assert RING + 3 * SLOT <= LDS_TOTAL
S_X, S_G, S_B, S_W, S_O, S_WS = 4, 6, 8, 10, 12, 14
R_X, R_W, R_O, R_G, R_B, R_WS = 16, 20, 24, 28, 32, 36
S_WV, S_XO, S_WO, S_OO, S_ONE, S_T, S_RB, S_T2, S_MSK, S_PF, S_X2 = 40, 41, 42, 43, 44, 45, 46, 47, 48, 49, 50
S_ST = 66; NSTAMP = 16
def stamp(i, fine=False):
    if STAMPS and (fine == FINE or i == 0):
        A(f"{'s_memtime' if CYC else 's_memrealtime'} s[{S_ST+2*i}:{S_ST+2*i+1}]")
def srd2(d, b):
    A(f"s_mov_b32 s{d}, s{b}"); A(f"s_and_b32 s{d+1}, s{b+1}, 0xffff")
class Q:
    def __init__(s): s.vm = []; s.lg = []
q = Q()
def qwait(l, tag, name, cap):
    if tag not in l: return None
    idx = max(i for i, t in enumerate(l) if t == tag)
    n = len(l) - 1 - idx
    del l[:idx + 1]
    return f"s_waitcnt {name}({min(n,cap)})"
def emit(item):
    if isinstance(item, str): A(item); return
    if item[0] == "vm": q.vm.append(item[1]); A(item[2])
    elif item[0] == "lg": q.lg.append(item[1]); A(item[2])
    else:
        w = qwait(q.vm, item[1], "vmcnt", 63) if item[0] == "vmwait" else qwait(q.lg, item[1], "lgkmcnt", 15)
        if w: A(w)

V_XOFF, V_L16, V_LW, V_SR, V_T0, V_T1, V_AR, V_AR2, V_OW = 1, 2, 3, 4, 5, 6, 7, 8, 9
V_MSK, V_ONE, V_OR, V_OG = 250, 251, 252, 253
T = 10
X1, X2, G, Bv, F, GRAW = 16, 44, 72, 128, 184, 240
SW = opt('--sw', 3, int)
EARLYW = not flag('--latew')
A("s_cmp_ge_u32 s2, 256")
A("s_cbranch_scc1 L_end")
stamp(0)
if flag("--dbgskew"): A("s_memrealtime s[62:63]")
A("s_load_dwordx8 s[4:11], s[0:1], 0")
A("s_load_dwordx2 s[12:13], s[0:1], 32")
if STAMPS: A("s_load_dwordx2 s[14:15], s[0:1], 48")
if CPF:
    A("s_getpc_b64 s[54:55]")
    A("L_pc:")
    if flag("--cpfb"):
        A("s_lshr_b32 s3, s2, 3")
        A(f"s_mul_i32 s3, s3, {CPF}")
        A("v_lshl_add_u32 v2, v0, 2, s3")
        A(f"v_cmp_gt_u32 vcc, {CPF//4}, v0")
        A("s_and_saveexec_b64 s[56:57], vcc")
        A("v_cmp_gt_u32 vcc, L_end-L_pc, v2")
        A("s_and_b64 exec, exec, vcc")
        A("s_cbranch_execz L_nocpf")
        A("global_load_dword v255, v2, s[54:55]")
        A("L_nocpf:")
        A("s_mov_b64 exec, s[56:57]")
    else:
        A("s_and_b32 s3, s2, 0xf8")
        A("s_lshl_b32 s3, s3, 6")
        A("v_and_b32 v2, 0x1c0, v0")
        A("v_add_u32 v2, s3, v2")
        A("v_min_u32 v2, L_end-L_pc, v2")
        A("global_load_dword v255, v2, s[54:55]")
A("v_lshrrev_b32 v1, 6, v0")
A("v_and_b32 v0, 63, v0")
A(f"v_readfirstlane_b32 s{S_WV}, v1")
A(f"v_lshrrev_b32 v{T}, 3, v0")
A(f"v_and_b32 v{T+1}, 7, v0")
A(f"v_lshlrev_b32 v{T+1}, 4, v{T+1}")
A(f"v_mul_u32_u24 v{V_XOFF}, 896, v{T}")
A(f"v_add_u32 v{V_XOFF}, v{V_XOFF}, v{T+1}")
A(f"v_lshlrev_b32 v{V_L16}, 4, v0")
A(f"s_lshr_b32 s{S_T}, s2, 4")
A(f"s_lshl_b32 s{S_T}, s{S_T}, 3")
A(f"s_and_b32 s{S_T2}, s2, 7")
A(f"s_add_u32 s{S_T}, s{S_T}, s{S_T2}")
A(f"s_mul_i32 s{S_OO}, s{S_T}, {128*896}")
A(f"s_mul_i32 s{S_T}, s{S_WV}, {8*896}")
A(f"s_add_u32 s{S_XO}, s{S_OO}, s{S_T}")
A(f"s_add_u32 s{S_X2}, s{S_XO}, {64*896}")
for r, n in ((R_G, 896), (R_B, 896), (R_X, XB), (R_W, 448 * 896)):
    A(f"s_mov_b32 s{r+2}, {n}"); A(f"s_mov_b32 s{r+3}, 0x20000")
A(f"s_cmp_lg_u32 s{S_WV}, 0")
A("s_waitcnt lgkmcnt(0)")
A("s_cbranch_scc1 L_nogb")
srd2(R_G, S_G); srd2(R_B, S_B)
A(f"buffer_load_dwordx4 {v(GRAW,4)}, v{V_L16}, s[{R_G}:{R_G+3}], 0 offen")
A(f"buffer_load_dwordx4 {v(GRAW+4,4)}, v{V_L16}, s[{R_B}:{R_B+3}], 0 offen")
A("L_nogb:")
srd2(R_X, S_X)
for i in range(7):
    emit(("vm", f"x1_{i}", f"buffer_load_dwordx4 {v(X1+4*i,4)}, v{V_XOFF}, s[{R_X}:{R_X+3}], s{S_XO} offen offset:{128*i} {XFL}"))
def x2load(i): return ("vm", f"x2_{i}", f"buffer_load_dwordx4 {v(X2+4*i,4)}, v{V_XOFF}, s[{R_X}:{R_X+3}], s{S_X2} offen offset:{128*i} {XFL}")
stamp(1)
PRIO = opt("--prio", 0, int)
if PRIO:
    A(f"s_lshr_b32 s{S_T}, s{S_WV}, 2")
    A(f"s_cmp_eq_u32 s{S_T}, 0")
    A("s_cbranch_scc1 L_nop")
    A(f"s_setprio {PRIO}")
    A("L_nop:")
srd2(R_W, S_W)
srd(A, R_O, S_O, XB)
if STAMPS: srd(A, R_WS, S_WS, 1 << 22)
A(f"s_bfe_u32 s{S_WO}, s2, 0x10003")
A(f"s_mul_i32 s{S_WO}, s{S_WO}, 448")
A(f"s_add_u32 s{S_OO}, s{S_OO}, s{S_WO}")
A(f"s_and_b32 s{S_PF}, s2, 0xf8")
A(f"s_add_u32 s{S_PF}, s{S_PF}, s{S_WV}")
A(f"s_mul_i32 s{S_PF}, s{S_PF}, 1568")
A(f"v_mul_u32_u24 v{V_LW}, {P}, v{T}")
A(f"v_add_u32 v{V_LW}, v{V_LW}, v{T+1}")
A(f"s_mul_i32 s{S_T}, s{S_WV}, {8*P}")
A(f"v_add_u32 v{V_LW}, s{S_T}, v{V_LW}")
A(f"v_lshlrev_b32 v{V_SR}, 1, v{T+1}")
A(f"v_add_u32 v{V_SR}, {SCR}, v{V_SR}")
A(f"v_and_b32 v{T}, 15, v0")
A(f"v_lshrrev_b32 v{T+1}, 4, v0")
A(f"v_mul_u32_u24 v{V_AR}, {P}, v{T}")
A(f"v_lshl_add_u32 v{V_AR}, v{T+1}, 4, v{V_AR}")
A(f"v_add_u32 v{V_AR2}, {64*P}, v{V_AR}")
A(f"s_cmp_gt_u32 s{S_WV}, {SW}")
A(f"s_subb_u32 s{S_T}, s{S_WV}, 0")
A(f"s_lshl_b32 s{S_T}, s{S_T}, 6")
A(f"s_add_u32 s{S_T}, s{S_T}, {RING}")
A(f"s_sub_u32 s{S_T2}, s{S_T}, {RING}")
A(f"s_add_u32 s{S_OO}, s{S_OO}, s{S_T2}")
A(f"s_mul_i32 s{S_RB}, s{S_WV}, {4*16*PS}")
A(f"s_add_u32 s{S_RB}, s{S_RB}, {OST}")
A(f"v_mul_u32_u24 v{V_OW}, {PS}, v{T}")
A(f"v_lshl_add_u32 v{V_OW}, v{T+1}, 3, v{V_OW}")
A(f"v_add_u32 v{V_OW}, s{S_RB}, v{V_OW}")
A(f"v_lshrrev_b32 v{T+2}, 2, v0")
A(f"v_and_b32 v{T+3}, 3, v0")
A(f"v_mul_u32_u24 v{V_OR}, {PS}, v{T+2}")
A(f"v_lshl_add_u32 v{V_OR}, v{T+3}, 4, v{V_OR}")
A(f"v_add_u32 v{V_OR}, s{S_RB}, v{V_OR}")
A(f"v_mul_u32_u24 v{V_OG}, 896, v{T+2}")
A(f"v_lshl_add_u32 v{V_OG}, v{T+3}, 4, v{V_OG}")
A(f"v_lshrrev_b32 v{T+2}, 2, v0")
A(f"v_mul_u32_u24 v{V_T0}, 448, v{T+2}")
A(f"v_and_b32 v{T+2}, 3, v0")
A(f"v_lshl_add_u32 v{V_T0}, v{T+2}, 3, v{V_T0}")
A(f"v_add_u32 v{V_T0}, s{S_T}, v{V_T0}")
A(f"v_and_b32 v{T+1}, 1, v{T+1}")
A(f"v_lshlrev_b32 v{T+1}, 5, v{T+1}")
A(f"v_sub_u32 v{V_T1}, v{V_T0}, v{T+1}")
A(f"v_add_u32 v{V_T1}, 32, v{V_T1}")
A(f"v_add_u32 v{V_T0}, v{V_T0}, v{T+1}")
A(f"v_mov_b32 v{V_MSK}, 0xffff0000")
A(f"v_mov_b32 v{V_ONE}, 0x3f803f80")
A(f"s_cmp_lg_u32 s{S_WV}, 0")
A("s_cbranch_scc1 L_nogb2")
A(f"v_lshlrev_b32 v{T}, 5, v0")
A(f"v_add_u32 v{T}, {SCR}, v{T}")
A(f"s_waitcnt vmcnt(7)")
U = Bv + 40
for j in range(8):
    A(f"v_lshlrev_b32 v{U+2*j}, 16, v{GRAW+j}")
    A(f"v_and_b32 v{U+2*j+1}, v{V_MSK}, v{GRAW+j}")
A(f"ds_write_b128 v{T}, {v(U,4)}")
A(f"ds_write_b128 v{T}, {v(U+4,4)} offset:16")
A(f"ds_write_b128 v{T}, {v(U+8,4)} offset:2048")
A(f"ds_write_b128 v{T}, {v(U+12,4)} offset:2064")
A("s_waitcnt lgkmcnt(0)")
A("L_nogb2:")
for i in range(XF): emit(x2load(i))
RS = T + 4
def layernorm(X, tag, first, yoff, hook):
    SUM, SQ = T, T + 1
    for r in range(4): A(f"v_mov_b32 v{T+r}, 0")
    GP = opt("--gpos", 0, int)
    for i in range(7):
        if first and i == GP:
            A("s_barrier")
            stamp(2)
        if first and i >= GP:
            for c in range(7):
                if (GP + c * (7 - GP) // 7 if not flag("--gball") else GP) == i:
                    A(f"ds_read_b128 {v(G+8*c,4)}, v{V_SR} offset:{256*c}")
                    A(f"ds_read_b128 {v(G+8*c+4,4)}, v{V_SR} offset:{256*c+16}")
                    A(f"ds_read_b128 {v(Bv+8*c,4)}, v{V_SR} offset:{2048+256*c}")
                    A(f"ds_read_b128 {v(Bv+8*c+4,4)}, v{V_SR} offset:{2048+256*c+16}")
        emit(("vmwait", f"{tag}_{i}"))
        hook(i)
        for j in range(4):
            r = X + 4 * i + j
            A(f"v_dot2c_f32_bf16 v{SUM + 2*(j&1)}, v{V_ONE}, v{r}")
            A(f"v_dot2c_f32_bf16 v{SQ + 2*(j&1)}, v{r}, v{r}")
        if i < 6:
            for j in range(4):
                A(f"v_lshlrev_b32 v{F+8*i+2*j}, 16, v{X+4*i+j}")
                A(f"v_and_b32 v{F+8*i+2*j+1}, v{V_MSK}, v{X+4*i+j}")
    up = []
    for j in range(4):
        up.append(f"v_lshlrev_b32 v{F+48+2*j}, 16, v{X+24+j}")
        up.append(f"v_and_b32 v{F+48+2*j+1}, v{V_MSK}, v{X+24+j}")
    A(up[0]); A(up[1]); A(up[2])
    A(f"v_add_f32 v{SUM}, v{SUM}, v{SUM+2}")
    A(f"v_add_f32 v{SQ}, v{SQ}, v{SQ+2}")
    for n, dpp in enumerate(("quad_perm:[1,0,3,2]", "quad_perm:[2,3,0,1]", "row_half_mirror")):
        A(up[3 + n])
        A(f"v_add_f32_dpp v{SUM}, v{SUM}, v{SUM} {dpp} row_mask:0xf bank_mask:0xf")
        A(f"v_add_f32_dpp v{SQ}, v{SQ}, v{SQ} {dpp} row_mask:0xf bank_mask:0xf")
    MEAN = T + 2
    A(f"v_mul_f32 v{MEAN}, {f2u(1/448):#x}, v{SUM}")
    A(f"v_mul_f32 v{SQ}, {f2u(1/448):#x}, v{SQ}")
    A(f"v_fma_f32 v{SQ}, -v{MEAN}, v{MEAN}, v{SQ}")
    A(f"v_max_f32 v{SQ}, 0, v{SQ}")
    A(f"v_add_f32 v{SQ}, {f2u(1e-5):#x}, v{SQ}")
    A(f"v_rsq_f32 v{RS}, v{SQ}")
    A(up[6]); A(up[7])
    A(f"v_mul_f32 v{RS+1}, -v{MEAN}, v{RS}")
    stamp(3 if first else 5)
    if first: A("s_waitcnt lgkmcnt(0)")
    def s1(i): return [f"v_pk_fma_f32 {v(F+8*i+2*j,2)}, {v(F+8*i+2*j,2)}, {v(RS,2)}, {v(RS,2)} op_sel:[0,0,1] op_sel_hi:[1,0,1]" for j in range(4)]
    def s2(i): return [f"v_pk_fma_f32 {v(F+8*i+2*j,2)}, {v(F+8*i+2*j,2)}, {v(G+8*i+2*j,2)}, {v(Bv+8*i+2*j,2)}" for j in range(4)]
    def s3(i): return [f"v_cvt_pk_bf16_f32 v{X+4*i+j}, v{F+8*i+2*j}, v{F+8*i+2*j+1}" for j in range(4)] + \
                      [f"ds_write_b128 v{V_LW}, {v(X+4*i,4)} offset:{yoff + 128*i}"]
    for step in range(9):
        if step < 7:
            for l_ in s1(step): A(l_)
        if 0 <= step - 1 < 7:
            for l_ in s2(step - 1): A(l_)
        if 0 <= step - 2 < 7:
            for l_ in s3(step - 2): A(l_)
def pfissue():
    emit(("vm", "pf", f"buffer_load_dwordx4 {v(240,4)}, v{V_L16}, s[{R_W}:{R_W+3}], s{S_PF} offen"))
    A("s_mov_b32 exec_hi, 3")
    emit(("vm", "pf", f"buffer_load_dwordx4 {v(244,4)}, v{V_L16}, s[{R_W}:{R_W+3}], s{S_PF} offen offset:1024"))
    A("s_mov_b32 exec_hi, -1")
    if TLB: emit(("vm", "pf", f"buffer_load_dword v248, off, s[{R_O}:{R_O+3}], s{S_OO}"))
def hook1(i):
    if i + XF < 7: emit(x2load(i + XF))
    if PF and PFP < 0 and i == 6: pfissue()
def hook2(i):
    if PF and i == PFP: pfissue()
layernorm(X1, "x1", True, 0, hook1)
stamp(4)
layernorm(X2, "x2", False, 64 * P, hook2)
A(f"s_cmp_eq_u32 s{S_WV}, {SW}")
A("s_cbranch_scc1 L_w7")

hq = Q(); hq.vm = list(q.vm); q = Q()
WR = 16; ACC1 = 128; ACC2 = 160; AF = 176
def wreg(k, t): return WR + 8 * k + 4 * t
def trread(k):
    return [("lg", f"B{k}", f"ds_read_b64_tr_b16 {v(wreg(k,t)+2*hf,2)}, v{V_T1 if t else V_T0} offset:{SLOT*(k%3) + 16*448*hf}")
            for t in range(2) for hf in range(2)]
def aread(tag, buf, mt, k):
    return ("lg", tag, f"ds_read_b128 {v(AF+4*buf,4)}, v{V_AR if mt < 4 else V_AR2} offset:{(mt&3)*16*P + 64*k}")
def epi(areg, mt):
    out = []
    for t in range(2):
        d = areg + 4 * t
        out.append(f"v_cvt_pk_bf16_f32 v{d}, v{d}, v{d+1}")
        out.append(f"v_cvt_pk_bf16_f32 v{d+1}, v{d+2}, v{d+3}")
        out.append(("lg", f"OW{mt}", f"ds_write_b64 v{V_OW}, {v(d,2)} offset:{(mt&3)*16*PS + 32*t}"))
    return out
def epi_b(areg, mt): return [("lgwait", f"OW{mt}"), ("lg", f"OR{mt}", f"ds_read_b128 {v(areg+4,4)}, v{V_OR} offset:{(mt&3)*16*PS}")]
def epi_c(areg, mt):
    fl = STFL if mt < opt("--plainfrom", 8, int) else opt("--lastfl", "", str)
    return [f"s_add_u32 s{S_T}, s{S_OO}, {16*896*mt}", ("lgwait", f"OR{mt}"), f"buffer_store_dwordx4 {v(areg+4,4)}, v{V_OG}, s[{R_O}:{R_O+3}], s{S_T} offen {fl}"]
A("s_waitcnt lgkmcnt(0)")
stamp(6)
if PRIO: A("s_setprio 0")
A("s_barrier")
for mt in range(4): emit(aread(f"A0_{mt}", mt, mt, 0))
if not EARLYW: A("s_barrier")
stamp(7)
for it in trread(0): emit(it)
BPOS = opt("--bpos", 3, int)
for k in range(14):
    if k % 2 == 0: stamp(1 + k // 2, True)
    fill = {g_: [] for g_ in range(8)}
    for mt in range(4):
        fill[mt].append(aread(f"A{k+1}_{mt}", 4 * ((k + 1) & 1) + mt, mt, k + 1) if k + 1 < 14 else aread(f"P4_{mt}", mt, 4, mt))
    fill[BPOS].append("s_barrier")
    if k + 1 < 14:
        for i_, it in enumerate(trread(k + 1)): fill[min(BPOS + 1 + i_ // TRP, 7)].append(it)
    if ALT:
        fill[0].append(f"s_setprio {2 if (k & 1) == 0 else 0}" if ALT == 2 else "s_setprio 2")
        if ALT == 1: fill[4].append("s_setprio 0")
    emit(("lgwait", f"B{k}")); emit(("lgwait", f"A{k}_3"))
    for mt in range(4):
        for t in range(2):
            d = ACC1 + 8 * mt + 4 * t
            A(f"v_mfma_f32_16x16x32_bf16 {v(d,4)}, {v(wreg(k,t),4)}, {v(AF+4*(4*(k&1)+mt),4)}, {'0' if k == 0 else v(d,4)}")
            for it in fill[2 * mt + t]: emit(it)
stamp(8, True)
stamp(8)
seq = [(mt, k) for mt in range(4, 8) for k in range(14)]
PFD = opt("--pfd", 4, int)
def areg(mt): return ACC1 + 8 * mt if mt < 6 else 208 + 8 * (mt - 6)
eq = []
def sched(g0, mt):
    e = epi(areg(mt), mt)
    for it in e: eq.append([g0, [it]])
    eq.append(["lag", LAG1, epi_b(areg(mt), mt)])
    c = epi_c(areg(mt), mt)
    eq.append([0, c[:1]]); eq.append(["lag", LAG2, c[1:]])
LAG1 = opt("--lag1", 5, int); LAG2 = opt("--lag2", 5, int); WE = opt("--we", 1, int)
if flag("--pipe"):
    for mt in range(4):
        for it in epi(areg(mt), mt): eq.append([3, [it]])
        if mt >= 1: eq.append([0, epi_b(areg(mt - 1), mt - 1)])
        if mt >= 2:
            c = epi_c(areg(mt - 2), mt - 2); eq.append([0, c[:1]]); eq.append([0, c[1:]])
    c = epi_c(areg(2), 2); eq.append([0, c[:1]]); eq.append([0, epi_b(areg(3), 3)]); eq.append(["lag", 3, c[1:]])
    c = epi_c(areg(3), 3); eq.append([0, c[:1]]); eq.append(["lag", 3, c[1:]])
else:
    for mt in range(4): sched(3, mt)
for mt in range(4, 7): sched(28 * (mt - 3) + 6, mt)
for d_ in range(4, PFD): emit(aread(f"P4_{d_}", d_, 4, d_))
g = 0; lastg = 0
for n, (mt, k) in enumerate(seq):
    if k == 0: stamp(5 + mt, True)
    if n % WE == 0:
        m2, k2 = seq[min(n + WE - 1, len(seq) - 1)]
        emit(("lgwait", f"P{m2}_{k2}"))
    for t in range(2):
        d = areg(mt) + 4 * t
        A(f"v_mfma_f32_16x16x32_bf16 {v(d,4)}, {v(wreg(k,t),4)}, {v(AF+4*(n&7),4)}, {'0' if k == 0 else v(d,4)}")
        if t == 0 and n + PFD < len(seq): emit(aread(f"P{seq[n+PFD][0]}_{seq[n+PFD][1]}", (n + PFD) & 7, *seq[n + PFD]))
        if eq and ((eq[0][0] == "lag" and g >= lastg + eq[0][1]) or (eq[0][0] != "lag" and g >= eq[0][0])):
            for it in eq.pop(0)[-1]: emit(it)
            lastg = g
        g += 1
assert not eq, eq
stamp(13, True)
stamp(9)
A("s_nop 7")
for it in epi(areg(7), 7) + epi_b(areg(7), 7) + epi_c(areg(7), 7): emit(it)
stamp(10)
A("s_branch L_fin")

A("L_w7:")
q = hq
VW = 16; VO = 24; VR = 32; OB = 40
A(f"s_movk_i32 s{S_T}, {896-448}")
A(f"v_mul_u32_u24 v{T+2}, 2341, v0")
for i in range(7):
    if i: A(f"v_add_u32 v{T}, {64*i*2341}, v{T+2}")
    A(f"v_lshrrev_b32 v{T}, 16, v{T if i else T+2}")
    A(f"v_add_u32 v{T+1}, {1024*i}, v{V_L16}")
    A(f"v_mad_u32_u24 v{VO+i}, v{T}, s{S_T}, v{T+1}")
    A(f"v_lshrrev_b32 v{T+1}, 2, v{T}")
    A(f"v_mul_u32_u24 v{T+1}, {4*896}, v{T+1}")
    A(f"v_and_b32 v{T}, 4, v{T}")
    A(f"v_lshlrev_b32 v{T}, 3, v{T}")
    A(f"v_xor_b32 v{T}, v{T}, v{VO+i}")
    A(f"v_add_u32 v{VW+i}, v{T}, v{T+1}")
    if i & 3: A(f"v_subrev_u32 v{VW+i}, {1024*(i&3)}, v{VW+i}")
def dma(k):
    out = []
    for hf in range(2):
        for i in range(7):
            if (i & 3) == 0:
                out.append(f"s_add_u32 m0, {RING + SLOT*(k%3) + 7168*hf + 1024*i}, 0")
                out.append(f"s_add_u32 s{S_T}, s{S_WO}, {(32*k + 4*hf)*896}")
            out.append(("vm", f"W{k}", f"buffer_load_dwordx4 v{VW+i}, s[{R_W}:{R_W+3}], s{S_T} offen offset:{1024*(i&3)} lds"))
    return out
def issue(l):
    for it in l: emit(it)
A("s_waitcnt lgkmcnt(0)")
stamp(6)
if not EARLYW: A("s_barrier")
issue(dma(0)); issue(dma(1))
if not EARLYW: issue(dma(2))
for k in range(14):
    emit(("vmwait", f"W{k}"))
    if k == 0 or not flag("--nobar"): A("s_barrier")
    if (k >= 1 or EARLYW) and k + 2 < 14: issue(dma(k + 2))
stamp(8)
A("s_barrier")
A("L_fin:")
if flag("--dbgskew"):
    A("s_waitcnt vmcnt(0)")
    A("s_memrealtime s[100:101]") if False else None
    A("s_memrealtime s[58:59]")
    A("s_load_dwordx2 s[14:15], s[0:1], 40")
    A("s_getreg_b32 s60, hwreg(HW_REG_XCC_ID)")
    A("s_waitcnt lgkmcnt(0)")
    srd(A, R_WS, S_WS, 256)
    A("s_and_b32 s60, s60, 7")
    A("s_lshl_b32 s60, s60, 3")
    A("v_mov_b32 v12, s62")
    A("v_mov_b32 v13, s58")
    A("v_cmp_eq_u32 vcc, 0, v0")
    A("s_and_saveexec_b64 s[4:5], vcc")
    A(f"buffer_atomic_umax v12, off, s[{R_WS}:{R_WS+3}], s60")
    A(f"buffer_atomic_umax v13, off, s[{R_WS}:{R_WS+3}], s60 offset:4")
    A("s_waitcnt vmcnt(0)")
if STAMPS:
    A("s_waitcnt vmcnt(0)")
    stamp(11)
    A("s_waitcnt lgkmcnt(0)")
    if PROBE is not None:
        A(f"s_cmp_lg_u32 s{S_WV}, {PROBE[0]}")
        A("s_cbranch_scc1 L_nospin")
        if PROBE[1] == "f":
            A(f"s_mov_b32 s{S_T}, {int(PROBE[2:])}")
        else:
            pi, pj = int(PROBE[1], 16), int(PROBE[2], 16)
            A(f"s_sub_u32 s{S_T}, s{S_ST+2*pi}, s{S_ST+2*pj}")
            A(f"s_lshl_b32 s{S_T}, s{S_T}, 1")
            A(f"s_add_u32 s{S_T}, s{S_T}, 1500")
        A(f"s_add_u32 s{S_T}, s{S_T}, s{S_ST}")
        A("L_spin:")
        A(f"s_memrealtime s[{S_ST+30}:{S_ST+31}]")
        A("s_waitcnt lgkmcnt(0)")
        A(f"s_sub_u32 s{S_T2}, s{S_ST+30}, s{S_T}")
        A(f"s_cmp_lt_i32 s{S_T2}, 0")
        A("s_cbranch_scc1 L_spin")
        A("L_nospin:")
    A(f"s_lshl_b32 s{S_T}, s2, 11")
    A(f"s_lshl_b32 s{S_T2}, s{S_WV}, 7")
    A(f"s_add_u32 s{S_T}, s{S_T}, s{S_T2}")
    A("v_mov_b32 v14, 0")
    A("v_cmp_eq_u32 vcc, 0, v0")
    A("s_and_saveexec_b64 s[4:5], vcc")
    for i in range(NSTAMP):
        A(f"v_mov_b32 v12, s{S_ST+2*i}")
        A(f"v_mov_b32 v13, s{S_ST+2*i+1}")
        A(f"buffer_store_dwordx2 v[12:13], v14, s[{R_WS}:{R_WS+3}], s{S_T} offen offset:{8*i}")
        A("s_waitcnt vmcnt(0)")
A("L_end:")
A("s_endpgm")
out = wrap(A.text(), 256, 512, LDS_TOTAL, 256, 100 if STAMPS else 64, 256, notes="TJ: 128x224 tile per workgroup")
open(sys.argv[1], "w").write(out)
```

```python
import sys, struct
from asmgen import *
def flag(n): return n in sys.argv
def opt(n, d, t=str): return t(sys.argv[sys.argv.index(n)+1]) if n in sys.argv else d
STAMPS = flag("--stamps"); PROBE = opt("--probe", None)
PF = not flag("--nopf"); TLB = flag("--tlb")
CYC = flag("--cyc"); FINE = flag("--fine")
CPF = opt("--cpf", 512, int)
STFL = opt("--st", "sc1", str); XFL = opt("--xfl", "", str)
if STFL == "plain": STFL = ""
TRP = opt('--trp', 2, int)
ALT = opt('--alt', 0, int)
PFP = opt("--pfp", 3, int)
XG = opt('--xg', 0, int); XS = opt('--xs', 1, int)
MIDW = not flag('--nomid')
XF = opt("--xfirst", 0, int)
def f2u(f): return struct.unpack("<I", struct.pack("<f", f))[0]
A = Asm()
P = 928; PS = 80
XB = 16384 * 896
RING = 128 * P
SLOT = 14336
SCR = RING + 2 * SLOT
LDS_TOTAL = 163840
OST = RING
assert RING + 3 * SLOT <= LDS_TOTAL
S_X, S_G, S_B, S_W, S_O, S_WS = 4, 6, 8, 10, 12, 14
R_X, R_W, R_O, R_G, R_B, R_WS = 16, 20, 24, 28, 32, 36
S_WV, S_XO, S_WO, S_OO, S_ONE, S_T, S_RB, S_T2, S_MSK, S_PF, S_X2 = 40, 41, 42, 43, 44, 45, 46, 47, 48, 49, 50
S_EPS = 44
S_ST = 66; NSTAMP = 16
def stamp(i, fine=False):
    if STAMPS and (fine == FINE or i == 0):
        A(f"{'s_memtime' if CYC else 's_memrealtime'} s[{S_ST+2*i}:{S_ST+2*i+1}]")
def srd2(d, b):
    A(f"s_mov_b32 s{d}, s{b}"); A(f"s_and_b32 s{d+1}, s{b+1}, 0xffff")
class Q:
    def __init__(s): s.vm = []; s.lg = []
q = Q()
def qwait(l, tag, name, cap):
    if tag not in l: return None
    idx = max(i for i, t in enumerate(l) if t == tag)
    n = len(l) - 1 - idx
    del l[:idx + 1]
    return f"s_waitcnt {name}({min(n,cap)})"
def emit(item):
    if isinstance(item, str): A(item); return
    if item[0] == "vm": q.vm.append(item[1]); A(item[2])
    elif item[0] == "lg": q.lg.append(item[1]); A(item[2])
    else:
        w = qwait(q.vm, item[1], "vmcnt", 63) if item[0] == "vmwait" else qwait(q.lg, item[1], "lgkmcnt", 15)
        if w: A(w)

V_XOFF, V_L16, V_LW, V_SR, V_T0, V_T1, V_AR, V_AR2, V_OW = 1, 2, 3, 4, 5, 6, 7, 8, 9
V_MSK, V_ONE, V_OR, V_OG = 250, 251, 252, 253
T = 10
X1, X2, G, Bv, F, GRAW = 16, 44, 72, 128, 184, 240
SW = opt('--sw', 3, int)
EARLYW = not flag('--latew')
A("s_cmp_ge_u32 s2, 256")
A("s_cbranch_scc1 L_end")
stamp(0)
if flag("--dbgskew"): A("s_memrealtime s[62:63]")
A("s_load_dwordx8 s[4:11], s[0:1], 0")
A("s_load_dwordx2 s[12:13], s[0:1], 32")
if STAMPS: A("s_load_dwordx2 s[14:15], s[0:1], 48")
if CPF:
    A("s_getpc_b64 s[54:55]")
    A("L_pc:")
    if flag("--cpfb"):
        A("s_lshr_b32 s3, s2, 3")
        A(f"s_mul_i32 s3, s3, {CPF}")
        A("v_lshl_add_u32 v2, v0, 2, s3")
        A(f"v_cmp_gt_u32 vcc, {CPF//4}, v0")
        A("s_and_saveexec_b64 s[56:57], vcc")
        A("v_cmp_gt_u32 vcc, L_end-L_pc, v2")
        A("s_and_b64 exec, exec, vcc")
        A("s_cbranch_execz L_nocpf")
        A("global_load_dword v255, v2, s[54:55]")
        A("L_nocpf:")
        A("s_mov_b64 exec, s[56:57]")
    else:
        A("s_and_b32 s3, s2, 0xf8")
        A("s_lshl_b32 s3, s3, 6")
        A("v_and_b32 v2, 0x1c0, v0")
        A("v_add_u32 v2, s3, v2")
        A("v_min_u32 v2, L_end-L_pc, v2")
        A("global_load_dword v255, v2, s[54:55]")
A("v_lshrrev_b32 v1, 6, v0")
A("v_and_b32 v0, 63, v0")
A(f"v_readfirstlane_b32 s{S_WV}, v1")
A(f"v_lshrrev_b32 v{T}, 3, v0")
A(f"v_and_b32 v{T+1}, 7, v0")
A(f"v_lshlrev_b32 v{T+1}, 4, v{T+1}")
A(f"v_mul_u32_u24 v{V_XOFF}, 896, v{T}")
A(f"v_add_u32 v{V_XOFF}, v{V_XOFF}, v{T+1}")
A(f"v_lshlrev_b32 v{V_L16}, 4, v0")
A(f"s_lshr_b32 s{S_T}, s2, 4")
A(f"s_lshl_b32 s{S_T}, s{S_T}, 3")
A(f"s_and_b32 s{S_T2}, s2, 7")
A(f"s_add_u32 s{S_T}, s{S_T}, s{S_T2}")
A(f"s_mul_i32 s{S_OO}, s{S_T}, {128*896}")
A(f"s_mul_i32 s{S_T}, s{S_WV}, {8*896}")
A(f"s_add_u32 s{S_XO}, s{S_OO}, s{S_T}")
A(f"s_add_u32 s{S_X2}, s{S_XO}, {64*896}")
for r, n in ((R_G, 896), (R_B, 896), (R_X, XB), (R_W, 448 * 896)):
    A(f"s_mov_b32 s{r+2}, {n}"); A(f"s_mov_b32 s{r+3}, 0x20000")
A(f"s_cmp_lg_u32 s{S_WV}, 0")
A("s_waitcnt lgkmcnt(0)")
A("s_cbranch_scc1 L_nogb")
srd2(R_G, S_G); srd2(R_B, S_B)
A(f"buffer_load_dwordx4 {v(GRAW,4)}, v{V_L16}, s[{R_G}:{R_G+3}], 0 offen")
A(f"buffer_load_dwordx4 {v(GRAW+4,4)}, v{V_L16}, s[{R_B}:{R_B+3}], 0 offen")
A("L_nogb:")
srd2(R_X, S_X)
for i in range(7):
    emit(("vm", f"x1_{i}", f"buffer_load_dwordx4 {v(X1+4*i,4)}, v{V_XOFF}, s[{R_X}:{R_X+3}], s{S_XO} offen offset:{128*i} {XFL}"))
def x2load(i): return ("vm", f"x2_{i}", f"buffer_load_dwordx4 {v(X2+4*i,4)}, v{V_XOFF}, s[{R_X}:{R_X+3}], s{S_X2} offen offset:{128*i} {XFL}")
stamp(1)
PRIO = opt("--prio", 1, int)
if PRIO:
    A("s_setprio 1")
    A(f"s_cmp_ge_u32 s{S_WV}, 4")
    A("s_cbranch_scc1 L_p0")
    A("s_setprio 2")
    A("L_p0:")
srd2(R_W, S_W)
srd(A, R_O, S_O, XB)
if STAMPS: srd(A, R_WS, S_WS, 1 << 22)
A(f"s_bfe_u32 s{S_WO}, s2, 0x10003")
A(f"s_mul_i32 s{S_WO}, s{S_WO}, 448")
A(f"s_add_u32 s{S_OO}, s{S_OO}, s{S_WO}")
A(f"s_and_b32 s{S_PF}, s2, 0xf8")
A(f"s_add_u32 s{S_PF}, s{S_PF}, s{S_WV}")
A(f"s_mul_i32 s{S_PF}, s{S_PF}, 1568")
A(f"v_mul_u32_u24 v{V_LW}, {P}, v{T}")
A(f"v_add_u32 v{V_LW}, v{V_LW}, v{T+1}")
A(f"s_mul_i32 s{S_T}, s{S_WV}, {8*P}")
A(f"v_add_u32 v{V_LW}, s{S_T}, v{V_LW}")
A(f"v_lshlrev_b32 v{V_SR}, 1, v{T+1}")
A(f"v_add_u32 v{V_SR}, {SCR}, v{V_SR}")
A(f"v_and_b32 v{T}, 15, v0")
A(f"v_lshrrev_b32 v{T+1}, 4, v0")
A(f"v_mul_u32_u24 v{V_AR}, {P}, v{T}")
A(f"v_lshl_add_u32 v{V_AR}, v{T+1}, 4, v{V_AR}")
A(f"v_add_u32 v{V_AR2}, {64*P}, v{V_AR}")
A(f"s_cmp_gt_u32 s{S_WV}, {SW}")
A(f"s_subb_u32 s{S_T}, s{S_WV}, 0")
A(f"s_lshl_b32 s{S_T}, s{S_T}, 6")
A(f"s_add_u32 s{S_T}, s{S_T}, {RING}")
A(f"s_sub_u32 s{S_T2}, s{S_T}, {RING}")
A(f"s_add_u32 s{S_OO}, s{S_OO}, s{S_T2}")
A(f"s_mul_i32 s{S_RB}, s{S_WV}, {4*16*PS}")
A(f"s_add_u32 s{S_RB}, s{S_RB}, {OST}")
A(f"v_mul_u32_u24 v{V_OW}, {PS}, v{T}")
A(f"v_lshl_add_u32 v{V_OW}, v{T+1}, 3, v{V_OW}")
A(f"v_add_u32 v{V_OW}, s{S_RB}, v{V_OW}")
A(f"v_lshrrev_b32 v{T+2}, 2, v0")
A(f"v_and_b32 v{T+3}, 3, v0")
A(f"v_mul_u32_u24 v{V_OR}, {PS}, v{T+2}")
A(f"v_lshl_add_u32 v{V_OR}, v{T+3}, 4, v{V_OR}")
A(f"v_add_u32 v{V_OR}, s{S_RB}, v{V_OR}")
A(f"v_mul_u32_u24 v{V_OG}, 896, v{T+2}")
A(f"v_lshl_add_u32 v{V_OG}, v{T+3}, 4, v{V_OG}")
A(f"v_lshrrev_b32 v{T+2}, 2, v0")
A(f"v_mul_u32_u24 v{V_T0}, 448, v{T+2}")
A(f"v_and_b32 v{T+2}, 3, v0")
A(f"v_lshl_add_u32 v{V_T0}, v{T+2}, 3, v{V_T0}")
A(f"v_add_u32 v{V_T0}, s{S_T}, v{V_T0}")
A(f"v_and_b32 v{T+1}, 1, v{T+1}")
A(f"v_lshlrev_b32 v{T+1}, 5, v{T+1}")
A(f"v_sub_u32 v{V_T1}, v{V_T0}, v{T+1}")
A(f"v_add_u32 v{V_T1}, 32, v{V_T1}")
A(f"v_add_u32 v{V_T0}, v{V_T0}, v{T+1}")
A(f"s_cmp_lg_u32 s{S_WV}, {SW}")
A("s_cbranch_scc1 L_nosw")
VWL = [V_T0, V_T1, V_AR, V_AR2, V_OW, V_OR, V_OG]
A(f"s_movk_i32 s{S_T}, {896-448}")
A(f"v_mul_u32_u24 v{T+2}, 2341, v0")
for i in range(7):
    if i: A(f"v_add_u32 v{T}, {64*i*2341}, v{T+2}")
    A(f"v_lshrrev_b32 v{T}, 16, v{T if i else T+2}")
    A(f"v_add_u32 v{T+1}, {1024*i}, v{V_L16}")
    A(f"v_mad_u32_u24 v{T+3}, v{T}, s{S_T}, v{T+1}")
    A(f"v_lshrrev_b32 v{T+1}, 2, v{T}")
    A(f"v_mul_u32_u24 v{T+1}, {4*896}, v{T+1}")
    A(f"v_and_b32 v{T}, 4, v{T}")
    A(f"v_lshlrev_b32 v{T}, 3, v{T}")
    A(f"v_xor_b32 v{T}, v{T}, v{T+3}")
    A(f"v_add_u32 v{VWL[i]}, v{T}, v{T+1}")
    if i & 3: A(f"v_subrev_u32 v{VWL[i]}, {1024*(i&3)}, v{VWL[i]}")
A("L_nosw:")
A(f"v_mov_b32 v{V_MSK}, 0xffff0000")
A(f"v_mov_b32 v{V_ONE}, 0x3f803f80")
A(f"s_mov_b32 s{S_EPS}, {f2u(1e-5):#x}")
A(f"s_cmp_lg_u32 s{S_WV}, 0")
A("s_cbranch_scc1 L_nogb2")
A(f"v_lshlrev_b32 v{T}, 5, v0")
A(f"v_add_u32 v{T}, {SCR}, v{T}")
A(f"s_waitcnt vmcnt(7)")
U = Bv + 40
for j in range(8):
    A(f"v_lshlrev_b32 v{U+2*j}, 16, v{GRAW+j}")
    A(f"v_and_b32 v{U+2*j+1}, v{V_MSK}, v{GRAW+j}")
A(f"ds_write_b128 v{T}, {v(U,4)}")
A(f"ds_write_b128 v{T}, {v(U+4,4)} offset:16")
A(f"ds_write_b128 v{T}, {v(U+8,4)} offset:2048")
A(f"ds_write_b128 v{T}, {v(U+12,4)} offset:2064")
A("s_waitcnt lgkmcnt(0)")
A("L_nogb2:")
for i in range(XF): emit(x2load(i))
RS = T + 4
def layernorm(X, tag, first, yoff, hook):
    SUM, SQ = T, T + 1
    GP = opt("--gpos", 0, int)
    for i in range(7):
        if first and GP and flag("--gsplit") and i in (0, GP):
            A(f"s_cmp_{'lt' if i == 0 else 'ge'}_u32 s{S_WV}, 4")
            A(f"s_cbranch_scc1 L_g{i}")
            A("s_barrier")
            A(f"L_g{i}:")
            if i == GP: stamp(2)
        elif first and i == GP:
            A("s_barrier")
            stamp(2)
            for c in range(XF, XF + XG): emit(x2load(c))
        if first and i >= GP:
            for c in range(7):
                if (GP + c * (7 - GP) // 7 if not flag("--gball") else GP) == i:
                    A(f"ds_read_b128 {v(G+8*c,4)}, v{V_SR} offset:{256*c}")
                    A(f"ds_read_b128 {v(G+8*c+4,4)}, v{V_SR} offset:{256*c+16}")
                    A(f"ds_read_b128 {v(Bv+8*c,4)}, v{V_SR} offset:{2048+256*c}")
                    A(f"ds_read_b128 {v(Bv+8*c+4,4)}, v{V_SR} offset:{2048+256*c+16}")
        emit(("vmwait", f"{tag}_{i}"))
        hook(i)
        for j in range(4):
            r = X + 4 * i + j
            if i == 0 and j < 2:
                A(f"v_dot2_f32_bf16 v{SUM + 2*(j&1)}, v{V_ONE}, v{r}, 0")
                A(f"v_dot2_f32_bf16 v{SQ + 2*(j&1)}, v{r}, v{r}, 0")
                continue
            A(f"v_dot2c_f32_bf16 v{SUM + 2*(j&1)}, v{V_ONE}, v{r}")
            A(f"v_dot2c_f32_bf16 v{SQ + 2*(j&1)}, v{r}, v{r}")
        if i < 6:
            for j in range(4):
                A(f"v_lshlrev_b32 v{F+8*i+2*j}, 16, v{X+4*i+j}")
                A(f"v_and_b32 v{F+8*i+2*j+1}, v{V_MSK}, v{X+4*i+j}")
    up = []
    for j in range(4):
        up.append(f"v_lshlrev_b32 v{F+48+2*j}, 16, v{X+24+j}")
        up.append(f"v_and_b32 v{F+48+2*j+1}, v{V_MSK}, v{X+24+j}")
    A(up[0]); A(up[1]); A(up[2])
    A(f"v_add_f32 v{SUM}, v{SUM}, v{SUM+2}")
    A(f"v_add_f32 v{SQ}, v{SQ}, v{SQ+2}")
    for n, dpp in enumerate(("quad_perm:[1,0,3,2]", "quad_perm:[2,3,0,1]", "row_half_mirror")):
        A(up[3 + n])
        A(f"v_add_f32_dpp v{SUM}, v{SUM}, v{SUM} {dpp} row_mask:0xf bank_mask:0xf")
        A(f"v_add_f32_dpp v{SQ}, v{SQ}, v{SQ} {dpp} row_mask:0xf bank_mask:0xf")
    MEAN = T + 2
    A(f"v_mul_f32 v{MEAN}, {f2u(1/448):#x}, v{SUM}")
    A(f"v_fma_f32 v{SUM}, -v{MEAN}, v{MEAN}, s{S_EPS}")
    A(f"v_fmac_f32 v{SUM}, {f2u(1/448):#x}, v{SQ}")
    A(f"v_max_f32 v{SQ}, s{S_EPS}, v{SUM}")
    A(f"v_rsq_f32 v{RS}, v{SQ}")
    A(up[6]); A(up[7])
    A(f"v_mul_f32 v{RS+1}, -v{MEAN}, v{RS}")
    stamp(3 if first else 5)
    if first: A("s_waitcnt lgkmcnt(0)")
    if not first and MIDW:
        A(f"s_cmp_lg_u32 s{S_WV}, {SW}")
        A("s_cbranch_scc1 L_nomid")
        for it in dma(0) + dma(1): A(it if isinstance(it, str) else it[2])
        if flag('--swhi'): A("s_setprio 0")
        A("L_nomid:")
    def s1(i): return [f"v_pk_fma_f32 {v(F+8*i+2*j,2)}, {v(F+8*i+2*j,2)}, {v(RS,2)}, {v(RS,2)} op_sel:[0,0,1] op_sel_hi:[1,0,1]" for j in range(4)]
    def s2(i): return [f"v_pk_fma_f32 {v(F+8*i+2*j,2)}, {v(F+8*i+2*j,2)}, {v(G+8*i+2*j,2)}, {v(Bv+8*i+2*j,2)}" for j in range(4)]
    def s3(i): return [f"v_cvt_pk_bf16_f32 v{X+4*i+j}, v{F+8*i+2*j}, v{F+8*i+2*j+1}" for j in range(4)] + \
                      [f"ds_write_b128 v{V_LW}, {v(X+4*i,4)} offset:{yoff + 128*i}"]
    for step in range(9):
        if step < 7:
            for l_ in s1(step): A(l_)
        if 0 <= step - 1 < 7:
            for l_ in s2(step - 1): A(l_)
        if 0 <= step - 2 < 7:
            for l_ in s3(step - 2): A(l_)
def dma(k):
    out = []
    for hf in range(2):
        for i in range(7):
            if (i & 3) == 0:
                out.append(f"s_add_u32 m0, {RING + SLOT*(k%3) + 7168*hf + 1024*i}, 0")
                out.append(f"s_add_u32 s{S_T}, s{S_WO}, {(32*k + 4*hf)*896}")
            out.append(("vm", f"W{k}", f"buffer_load_dwordx4 v{VWL[i]}, s[{R_W}:{R_W+3}], s{S_T} offen offset:{1024*(i&3)} lds"))
    return out
def pfissue():
    emit(("vm", "pf", f"buffer_load_dwordx4 {v(240,4)}, v{V_L16}, s[{R_W}:{R_W+3}], s{S_PF} offen"))
    A("s_mov_b32 exec_hi, 3")
    emit(("vm", "pf", f"buffer_load_dwordx4 {v(244,4)}, v{V_L16}, s[{R_W}:{R_W+3}], s{S_PF} offen offset:1024"))
    A("s_mov_b32 exec_hi, -1")
    if TLB: emit(("vm", "pf", f"buffer_load_dword v248, off, s[{R_O}:{R_O+3}], s{S_OO}"))
def hook1(i):
    for c in range(XS):
        if XS * i + c + XF + XG < 7: emit(x2load(XS * i + c + XF + XG))
    if PF and PFP < 0 and i == 6: pfissue()
def hook2(i):
    if PF and i == PFP: pfissue()
layernorm(X1, "x1", True, 0, hook1)
stamp(4)
if PRIO:
    A(f"s_cmp_ge_u32 s{S_WV}, {3 if flag('--swhi') else 4}")
    A("s_cbranch_scc1 L_p1")
    A("s_setprio 0")
    A("L_p1:")
layernorm(X2, "x2", False, 64 * P, hook2)
A(f"s_cmp_eq_u32 s{S_WV}, {SW}")
A("s_cbranch_scc1 L_w7")

hq = Q(); hq.vm = list(q.vm); q = Q()
WR = 16; ACC1 = 128; ACC2 = 160; AF = 176
def wreg(k, t): return WR + 8 * k + 4 * t
def trread(k):
    return [("lg", f"B{k}", f"ds_read_b64_tr_b16 {v(wreg(k,t)+2*hf,2)}, v{V_T1 if t else V_T0} offset:{SLOT*(k%3) + 16*448*hf}")
            for t in range(2) for hf in range(2)]
def aread(tag, buf, mt, k):
    return ("lg", tag, f"ds_read_b128 {v(AF+4*buf,4)}, v{V_AR if mt < 4 else V_AR2} offset:{(mt&3)*16*P + 64*k}")
def epi(areg, mt):
    out = []
    for t in range(2):
        d = areg + 4 * t
        out.append(f"v_cvt_pk_bf16_f32 v{d}, v{d}, v{d+1}")
        out.append(f"v_cvt_pk_bf16_f32 v{d+1}, v{d+2}, v{d+3}")
        out.append(("lg", f"OW{mt}", f"ds_write_b64 v{V_OW}, {v(d,2)} offset:{(mt&3)*16*PS + 32*t}"))
    return out
def epi_b(areg, mt): return [("lgwait", f"OW{mt}"), ("lg", f"OR{mt}", f"ds_read_b128 {v(areg+4,4)}, v{V_OR} offset:{(mt&3)*16*PS}")]
def epi_c(areg, mt):
    fl = STFL if mt < opt("--plainfrom", 8, int) else opt("--lastfl", "", str)
    return [f"s_add_u32 s{S_T}, s{S_OO}, {16*896*mt}", ("lgwait", f"OR{mt}"), f"buffer_store_dwordx4 {v(areg+4,4)}, v{V_OG}, s[{R_O}:{R_O+3}], s{S_T} offen {fl}"]
A("s_waitcnt lgkmcnt(0)")
stamp(6)
if PRIO: A("s_setprio 0")
A("s_barrier")
for mt in range(4): emit(aread(f"A0_{mt}", mt, mt, 0))
if not EARLYW: A("s_barrier")
stamp(7)
for it in trread(0): emit(it)
BPOS = opt("--bpos", 3, int)
for k in range(14):
    if k % 2 == 0: stamp(1 + k // 2, True)
    fill = {g_: [] for g_ in range(8)}
    for mt in range(4):
        fill[mt].append(aread(f"A{k+1}_{mt}", 4 * ((k + 1) & 1) + mt, mt, k + 1) if k + 1 < 14 else aread(f"P4_{mt}", mt, 4, mt))
    fill[BPOS].append("s_barrier")
    if k + 1 < 14:
        for i_, it in enumerate(trread(k + 1)): fill[min(BPOS + 1 + i_ // TRP, 7)].append(it)
    if ALT:
        fill[0].append(f"s_setprio {2 if (k & 1) == 0 else 0}" if ALT == 2 else "s_setprio 2")
        if ALT == 1: fill[4].append("s_setprio 0")
    emit(("lgwait", f"B{k}")); emit(("lgwait", f"A{k}_3"))
    for mt in range(4):
        for t in range(2):
            d = ACC1 + 8 * mt + 4 * t
            A(f"v_mfma_f32_16x16x32_bf16 {v(d,4)}, {v(wreg(k,t),4)}, {v(AF+4*(4*(k&1)+mt),4)}, {'0' if k == 0 else v(d,4)}")
            for it in fill[2 * mt + t]: emit(it)
stamp(8, True)
stamp(8)
seq = [(mt, k) for mt in range(4, 8) for k in range(14)]
PFD = opt("--pfd", 4, int)
def areg(mt): return ACC1 + 8 * mt if mt < 6 else 208 + 8 * (mt - 6)
eq = []
def sched(g0, mt):
    e = epi(areg(mt), mt)
    for it in e: eq.append([g0, [it]])
    eq.append(["lag", LAG1, epi_b(areg(mt), mt)])
    c = epi_c(areg(mt), mt)
    eq.append([0, c[:1]]); eq.append(["lag", LAG2, c[1:]])
LAG1 = opt("--lag1", 5, int); LAG2 = opt("--lag2", 5, int); WE = opt("--we", 1, int)
if flag("--pipe"):
    for mt in range(4):
        for it in epi(areg(mt), mt): eq.append([3, [it]])
        if mt >= 1: eq.append([0, epi_b(areg(mt - 1), mt - 1)])
        if mt >= 2:
            c = epi_c(areg(mt - 2), mt - 2); eq.append([0, c[:1]]); eq.append([0, c[1:]])
    c = epi_c(areg(2), 2); eq.append([0, c[:1]]); eq.append([0, epi_b(areg(3), 3)]); eq.append(["lag", 3, c[1:]])
    c = epi_c(areg(3), 3); eq.append([0, c[:1]]); eq.append(["lag", 3, c[1:]])
else:
    for mt in range(4): sched(3, mt)
for mt in range(4, 7): sched(28 * (mt - 3) + 6, mt)
for d_ in range(4, PFD): emit(aread(f"P4_{d_}", d_, 4, d_))
g = 0; lastg = 0
for n, (mt, k) in enumerate(seq):
    if k == 0: stamp(5 + mt, True)
    TG_ = opt("--tog", 0, int)
    if TG_ and n % TG_ == 0:
        if n == 0:
            A("s_setprio 1")
        A(f"s_cmp_ge_u32 s{S_WV}, 4")
        A(f"s_cbranch_scc1 L_tg{n}")
        A(f"s_setprio {2 if (n // TG_) % 2 == 0 else 0}")
        A(f"L_tg{n}:")
    if n % WE == 0:
        m2, k2 = seq[min(n + WE - 1, len(seq) - 1)]
        emit(("lgwait", f"P{m2}_{k2}"))
    for t in range(2):
        d = areg(mt) + 4 * t
        A(f"v_mfma_f32_16x16x32_bf16 {v(d,4)}, {v(wreg(k,t),4)}, {v(AF+4*(n&7),4)}, {'0' if k == 0 else v(d,4)}")
        if t == 0 and n + PFD < len(seq): emit(aread(f"P{seq[n+PFD][0]}_{seq[n+PFD][1]}", (n + PFD) & 7, *seq[n + PFD]))
        if eq and ((eq[0][0] == "lag" and g >= lastg + eq[0][1]) or (eq[0][0] != "lag" and g >= eq[0][0])):
            for it in eq.pop(0)[-1]: emit(it)
            lastg = g
        g += 1
assert not eq, eq
stamp(13, True)
stamp(9)
A("s_nop 7")
for it in epi(areg(7), 7) + epi_b(areg(7), 7) + epi_c(areg(7), 7): emit(it)
stamp(10)
A("s_branch L_fin")

A("L_w7:")
q = hq
def issue(l):
    for it in l: emit(it)
A("s_waitcnt lgkmcnt(0)")
stamp(6)
if not EARLYW: A("s_barrier")
if MIDW: q.vm += ['W0'] * 14 + ['W1'] * 14
else: issue(dma(0)); issue(dma(1))
if not EARLYW: issue(dma(2))
for k in range(14):
    emit(("vmwait", f"W{k}"))
    if k == 0 or not flag("--nobar"): A("s_barrier")
    if (k >= 1 or EARLYW) and k + 2 < 14: issue(dma(k + 2))
stamp(8)
A("s_barrier")
A("L_fin:")
if flag("--dbgskew"):
    A("s_waitcnt vmcnt(0)")
    A("s_memrealtime s[100:101]") if False else None
    A("s_memrealtime s[58:59]")
    A("s_load_dwordx2 s[14:15], s[0:1], 40")
    A("s_getreg_b32 s60, hwreg(HW_REG_XCC_ID)")
    A("s_waitcnt lgkmcnt(0)")
    srd(A, R_WS, S_WS, 256)
    A("s_and_b32 s60, s60, 7")
    A("s_lshl_b32 s60, s60, 3")
    A("v_mov_b32 v12, s62")
    A("v_mov_b32 v13, s58")
    A("v_cmp_eq_u32 vcc, 0, v0")
    A("s_and_saveexec_b64 s[4:5], vcc")
    A(f"buffer_atomic_umax v12, off, s[{R_WS}:{R_WS+3}], s60")
    A(f"buffer_atomic_umax v13, off, s[{R_WS}:{R_WS+3}], s60 offset:4")
    A("s_waitcnt vmcnt(0)")
if STAMPS:
    A("s_waitcnt vmcnt(0)")
    stamp(11)
    A("s_waitcnt lgkmcnt(0)")
    if PROBE is not None:
        A(f"s_cmp_lg_u32 s{S_WV}, {PROBE[0]}")
        A("s_cbranch_scc1 L_nospin")
        if PROBE[1] == "f":
            A(f"s_mov_b32 s{S_T}, {int(PROBE[2:])}")
        else:
            pi, pj = int(PROBE[1], 16), int(PROBE[2], 16)
            A(f"s_sub_u32 s{S_T}, s{S_ST+2*pi}, s{S_ST+2*pj}")
            A(f"s_lshl_b32 s{S_T}, s{S_T}, 1")
            A(f"s_add_u32 s{S_T}, s{S_T}, 1500")
        A(f"s_add_u32 s{S_T}, s{S_T}, s{S_ST}")
        A("L_spin:")
        A(f"s_memrealtime s[{S_ST+30}:{S_ST+31}]")
        A("s_waitcnt lgkmcnt(0)")
        A(f"s_sub_u32 s{S_T2}, s{S_ST+30}, s{S_T}")
        A(f"s_cmp_lt_i32 s{S_T2}, 0")
        A("s_cbranch_scc1 L_spin")
        A("L_nospin:")
    A(f"s_lshl_b32 s{S_T}, s2, 11")
    A(f"s_lshl_b32 s{S_T2}, s{S_WV}, 7")
    A(f"s_add_u32 s{S_T}, s{S_T}, s{S_T2}")
    A("v_mov_b32 v14, 0")
    A("v_cmp_eq_u32 vcc, 0, v0")
    A("s_and_saveexec_b64 s[4:5], vcc")
    for i in range(NSTAMP):
        A(f"v_mov_b32 v12, s{S_ST+2*i}")
        A(f"v_mov_b32 v13, s{S_ST+2*i+1}")
        A(f"buffer_store_dwordx2 v[12:13], v14, s[{R_WS}:{R_WS+3}], s{S_T} offen offset:{8*i}")
        A("s_waitcnt vmcnt(0)")
A("L_end:")
A("s_endpgm")
out = wrap(A.text(), 256, 512, LDS_TOTAL, 256, 100 if STAMPS else 64, 256, notes="TM: 128x224 tile per workgroup")
open(sys.argv[1], "w").write(out)
```

```python
import sys, struct
from asmgen import *
def flag(n): return n in sys.argv
def opt(n, d, t=str): return t(sys.argv[sys.argv.index(n)+1]) if n in sys.argv else d
STAMPS = flag("--stamps"); PROBE = opt("--probe", None)
PF = not flag("--nopf"); TLB = flag("--tlb")
CYC = flag("--cyc"); FINE = flag("--fine")
CPF = opt("--cpf", 512, int)
STFL = opt("--st", "sc1", str); XFL = opt("--xfl", "", str)
if STFL == "plain": STFL = ""
TRP = opt('--trp', 2, int)
ALT = opt('--alt', 0, int)
PFP = opt("--pfp", 3, int)
XG = opt('--xg', 0, int); XS = opt('--xs', 1, int)
MIDW = not flag('--nomid')
XF = opt("--xfirst", 0, int)
def f2u(f): return struct.unpack("<I", struct.pack("<f", f))[0]
A = Asm()
P = 928; PS = 80
XB = 16384 * 896
RING = 128 * P
SLOT = 14336
SCR = RING + 2 * SLOT
LDS_TOTAL = 163840
OST = RING
assert RING + 3 * SLOT <= LDS_TOTAL
S_X, S_G, S_B, S_W, S_O, S_WS = 4, 6, 8, 10, 12, 14
R_X, R_W, R_O, R_G, R_B, R_WS = 16, 20, 24, 28, 32, 36
S_WV, S_XO, S_WO, S_OO, S_ONE, S_T, S_RB, S_T2, S_MSK, S_PF, S_X2 = 40, 41, 42, 43, 44, 45, 46, 47, 48, 49, 50
S_EPS = 44
S_ST = 66; NSTAMP = 16
def stamp(i, fine=False):
    if STAMPS and (fine == FINE or i == 0):
        A(f"{'s_memtime' if CYC else 's_memrealtime'} s[{S_ST+2*i}:{S_ST+2*i+1}]")
def srd2(d, b):
    A(f"s_mov_b32 s{d}, s{b}"); A(f"s_and_b32 s{d+1}, s{b+1}, 0xffff")
class Q:
    def __init__(s): s.vm = []; s.lg = []
q = Q()
def qwait(l, tag, name, cap):
    if tag not in l: return None
    idx = max(i for i, t in enumerate(l) if t == tag)
    n = len(l) - 1 - idx
    del l[:idx + 1]
    return f"s_waitcnt {name}({min(n,cap)})"
def emit(item):
    if isinstance(item, str): A(item); return
    if item[0] == "vm": q.vm.append(item[1]); A(item[2])
    elif item[0] == "lg": q.lg.append(item[1]); A(item[2])
    else:
        w = qwait(q.vm, item[1], "vmcnt", 63) if item[0] == "vmwait" else qwait(q.lg, item[1], "lgkmcnt", 15)
        if w: A(w)

V_XOFF, V_L16, V_LW, V_SR, V_T0, V_T1, V_AR, V_AR2, V_OW = 1, 2, 3, 4, 5, 6, 7, 8, 9
V_MSK, V_ONE, V_OR, V_OG = 250, 251, 252, 253
T = 10
X1, X2, G, Bv, F, GRAW = 16, 44, 72, 128, 184, 240
SW = opt('--sw', 3, int)
EARLYW = not flag('--latew')
A("s_cmp_ge_u32 s2, 256")
A("s_cbranch_scc1 L_end")
stamp(0)
if flag("--dbgskew"): A("s_memrealtime s[62:63]")
A("s_load_dwordx8 s[4:11], s[0:1], 0")
A("s_load_dwordx2 s[12:13], s[0:1], 32")
if STAMPS: A("s_load_dwordx2 s[14:15], s[0:1], 48")
if CPF:
    A("s_getpc_b64 s[54:55]")
    A("L_pc:")
    if flag("--cpfb"):
        A("s_lshr_b32 s3, s2, 3")
        A(f"s_mul_i32 s3, s3, {CPF}")
        A("v_lshl_add_u32 v2, v0, 2, s3")
        A(f"v_cmp_gt_u32 vcc, {CPF//4}, v0")
        A("s_and_saveexec_b64 s[56:57], vcc")
        A("v_cmp_gt_u32 vcc, L_end-L_pc, v2")
        A("s_and_b64 exec, exec, vcc")
        A("s_cbranch_execz L_nocpf")
        A("global_load_dword v255, v2, s[54:55]")
        A("L_nocpf:")
        A("s_mov_b64 exec, s[56:57]")
    else:
        A("s_and_b32 s3, s2, 0xf8")
        A("s_lshl_b32 s3, s3, 6")
        A("v_and_b32 v2, 0x1c0, v0")
        A("v_add_u32 v2, s3, v2")
        A("v_min_u32 v2, L_end-L_pc, v2")
        A("global_load_dword v255, v2, s[54:55]")
A("v_lshrrev_b32 v1, 6, v0")
A("v_and_b32 v0, 63, v0")
A(f"v_readfirstlane_b32 s{S_WV}, v1")
A(f"v_lshrrev_b32 v{T}, 3, v0")
A(f"v_and_b32 v{T+1}, 7, v0")
A(f"v_lshlrev_b32 v{T+1}, 4, v{T+1}")
A(f"v_mul_u32_u24 v{V_XOFF}, 896, v{T}")
A(f"v_add_u32 v{V_XOFF}, v{V_XOFF}, v{T+1}")
A(f"v_lshlrev_b32 v{V_L16}, 4, v0")
A(f"s_lshr_b32 s{S_T}, s2, 4")
A(f"s_lshl_b32 s{S_T}, s{S_T}, 3")
A(f"s_and_b32 s{S_T2}, s2, 7")
A(f"s_add_u32 s{S_T}, s{S_T}, s{S_T2}")
A(f"s_mul_i32 s{S_OO}, s{S_T}, {128*896}")
A(f"s_mul_i32 s{S_T}, s{S_WV}, {8*896}")
A(f"s_add_u32 s{S_XO}, s{S_OO}, s{S_T}")
A(f"s_add_u32 s{S_X2}, s{S_XO}, {64*896}")
for r, n in ((R_G, 896), (R_B, 896), (R_X, XB), (R_W, 448 * 896)):
    A(f"s_mov_b32 s{r+2}, {n}"); A(f"s_mov_b32 s{r+3}, 0x20000")
A(f"s_cmp_lg_u32 s{S_WV}, 0")
A("s_waitcnt lgkmcnt(0)")
A("s_cbranch_scc1 L_nogb")
srd2(R_G, S_G); srd2(R_B, S_B)
A(f"buffer_load_dwordx4 {v(GRAW,4)}, v{V_L16}, s[{R_G}:{R_G+3}], 0 offen")
A(f"buffer_load_dwordx4 {v(GRAW+4,4)}, v{V_L16}, s[{R_B}:{R_B+3}], 0 offen")
A("L_nogb:")
srd2(R_X, S_X)
for i in range(7):
    emit(("vm", f"x1_{i}", f"buffer_load_dwordx4 {v(X1+4*i,4)}, v{V_XOFF}, s[{R_X}:{R_X+3}], s{S_XO} offen offset:{128*i} {XFL}"))
def x2load(i): return ("vm", f"x2_{i}", f"buffer_load_dwordx4 {v(X2+4*i,4)}, v{V_XOFF}, s[{R_X}:{R_X+3}], s{S_X2} offen offset:{128*i} {XFL}")
stamp(1)
PRIO = opt("--prio", 1, int)
if PRIO:
    A("s_setprio 1")
    A(f"s_cmp_ge_u32 s{S_WV}, 4")
    A("s_cbranch_scc1 L_p0")
    A("s_setprio 2")
    A("L_p0:")
srd2(R_W, S_W)
srd(A, R_O, S_O, XB)
if STAMPS: srd(A, R_WS, S_WS, 1 << 22)
A(f"s_bfe_u32 s{S_WO}, s2, 0x10003")
A(f"s_mul_i32 s{S_WO}, s{S_WO}, 448")
A(f"s_add_u32 s{S_OO}, s{S_OO}, s{S_WO}")
A(f"s_and_b32 s{S_PF}, s2, 0xf8")
A(f"s_add_u32 s{S_PF}, s{S_PF}, s{S_WV}")
A(f"s_mul_i32 s{S_PF}, s{S_PF}, 1568")
A(f"v_mul_u32_u24 v{V_LW}, {P}, v{T}")
A(f"v_add_u32 v{V_LW}, v{V_LW}, v{T+1}")
A(f"s_mul_i32 s{S_T}, s{S_WV}, {8*P}")
A(f"v_add_u32 v{V_LW}, s{S_T}, v{V_LW}")
A(f"v_lshlrev_b32 v{V_SR}, 1, v{T+1}")
A(f"v_add_u32 v{V_SR}, {SCR}, v{V_SR}")
A(f"v_and_b32 v{T}, 15, v0")
A(f"v_lshrrev_b32 v{T+1}, 4, v0")
A(f"v_mul_u32_u24 v{V_AR}, {P}, v{T}")
A(f"v_lshl_add_u32 v{V_AR}, v{T+1}, 4, v{V_AR}")
A(f"v_add_u32 v{V_AR2}, {64*P}, v{V_AR}")
A(f"s_cmp_gt_u32 s{S_WV}, {SW}")
A(f"s_subb_u32 s{S_T}, s{S_WV}, 0")
A(f"s_lshl_b32 s{S_T}, s{S_T}, 6")
A(f"s_add_u32 s{S_T}, s{S_T}, {RING}")
A(f"s_sub_u32 s{S_T2}, s{S_T}, {RING}")
A(f"s_add_u32 s{S_OO}, s{S_OO}, s{S_T2}")
A(f"s_mul_i32 s{S_RB}, s{S_WV}, {4*16*PS}")
A(f"s_add_u32 s{S_RB}, s{S_RB}, {OST}")
A(f"v_mul_u32_u24 v{V_OW}, {PS}, v{T}")
A(f"v_lshl_add_u32 v{V_OW}, v{T+1}, 3, v{V_OW}")
A(f"v_add_u32 v{V_OW}, s{S_RB}, v{V_OW}")
A(f"v_lshrrev_b32 v{T+2}, 2, v0")
A(f"v_and_b32 v{T+3}, 3, v0")
A(f"v_mul_u32_u24 v{V_OR}, {PS}, v{T+2}")
A(f"v_lshl_add_u32 v{V_OR}, v{T+3}, 4, v{V_OR}")
A(f"v_add_u32 v{V_OR}, s{S_RB}, v{V_OR}")
A(f"v_mul_u32_u24 v{V_OG}, 896, v{T+2}")
A(f"v_lshl_add_u32 v{V_OG}, v{T+3}, 4, v{V_OG}")
A(f"v_lshrrev_b32 v{T+2}, 2, v0")
A(f"v_mul_u32_u24 v{V_T0}, 448, v{T+2}")
A(f"v_and_b32 v{T+2}, 3, v0")
A(f"v_lshl_add_u32 v{V_T0}, v{T+2}, 3, v{V_T0}")
A(f"v_add_u32 v{V_T0}, s{S_T}, v{V_T0}")
A(f"v_and_b32 v{T+1}, 1, v{T+1}")
A(f"v_lshlrev_b32 v{T+1}, 5, v{T+1}")
A(f"v_sub_u32 v{V_T1}, v{V_T0}, v{T+1}")
A(f"v_add_u32 v{V_T1}, 32, v{V_T1}")
A(f"v_add_u32 v{V_T0}, v{V_T0}, v{T+1}")
A(f"s_cmp_lg_u32 s{S_WV}, {SW}")
A("s_cbranch_scc1 L_nosw")
VWL = [V_T0, V_T1, V_AR, V_AR2, V_OW, V_OR, V_OG]
A(f"s_movk_i32 s{S_T}, {896-448}")
A(f"v_mul_u32_u24 v{T+2}, 2341, v0")
for i in range(7):
    if i: A(f"v_add_u32 v{T}, {64*i*2341}, v{T+2}")
    A(f"v_lshrrev_b32 v{T}, 16, v{T if i else T+2}")
    A(f"v_add_u32 v{T+1}, {1024*i}, v{V_L16}")
    A(f"v_mad_u32_u24 v{T+3}, v{T}, s{S_T}, v{T+1}")
    A(f"v_lshrrev_b32 v{T+1}, 2, v{T}")
    A(f"v_mul_u32_u24 v{T+1}, {4*896}, v{T+1}")
    A(f"v_and_b32 v{T}, 4, v{T}")
    A(f"v_lshlrev_b32 v{T}, 3, v{T}")
    A(f"v_xor_b32 v{T}, v{T}, v{T+3}")
    A(f"v_add_u32 v{VWL[i]}, v{T}, v{T+1}")
    if i & 3: A(f"v_subrev_u32 v{VWL[i]}, {1024*(i&3)}, v{VWL[i]}")
A("L_nosw:")
A(f"v_mov_b32 v{V_MSK}, 0xffff0000")
A(f"v_mov_b32 v{V_ONE}, 0x3f803f80")
A(f"s_mov_b32 s{S_EPS}, {f2u(1e-5):#x}")
A(f"s_cmp_lg_u32 s{S_WV}, 0")
A("s_cbranch_scc1 L_nogb2")
A(f"v_lshlrev_b32 v{T}, 5, v0")
A(f"v_add_u32 v{T}, {SCR}, v{T}")
A(f"s_waitcnt vmcnt(7)")
U = Bv + 40
for j in range(8):
    A(f"v_lshlrev_b32 v{U+2*j}, 16, v{GRAW+j}")
    A(f"v_and_b32 v{U+2*j+1}, v{V_MSK}, v{GRAW+j}")
A(f"ds_write_b128 v{T}, {v(U,4)}")
A(f"ds_write_b128 v{T}, {v(U+4,4)} offset:16")
A(f"ds_write_b128 v{T}, {v(U+8,4)} offset:2048")
A(f"ds_write_b128 v{T}, {v(U+12,4)} offset:2064")
A("s_waitcnt lgkmcnt(0)")
A("L_nogb2:")
for i in range(XF): emit(x2load(i))
RS = T + 4
def layernorm(X, tag, first, yoff, hook):
    SUM, SQ = T, T + 1
    GP = opt("--gpos", 0, int)
    for i in range(7):
        if first and GP and flag("--gsplit") and i in (0, GP):
            A(f"s_cmp_{'lt' if i == 0 else 'ge'}_u32 s{S_WV}, 4")
            A(f"s_cbranch_scc1 L_g{i}")
            A("s_barrier")
            A(f"L_g{i}:")
            if i == GP: stamp(2)
        elif first and i == GP:
            A("s_barrier")
            stamp(2)
            for c in range(XF, XF + XG): emit(x2load(c))
        if first and i >= GP:
            for c in range(7):
                if (GP + c * (7 - GP) // 7 if not flag("--gball") else GP) == i:
                    A(f"ds_read_b128 {v(G+8*c,4)}, v{V_SR} offset:{256*c}")
                    A(f"ds_read_b128 {v(G+8*c+4,4)}, v{V_SR} offset:{256*c+16}")
                    A(f"ds_read_b128 {v(Bv+8*c,4)}, v{V_SR} offset:{2048+256*c}")
                    A(f"ds_read_b128 {v(Bv+8*c+4,4)}, v{V_SR} offset:{2048+256*c+16}")
        emit(("vmwait", f"{tag}_{i}"))
        hook(i)
        for j in range(4):
            r = X + 4 * i + j
            if i == 0 and j < 2:
                A(f"v_dot2_f32_bf16 v{SUM + 2*(j&1)}, v{V_ONE}, v{r}, 0")
                A(f"v_dot2_f32_bf16 v{SQ + 2*(j&1)}, v{r}, v{r}, 0")
                continue
            A(f"v_dot2c_f32_bf16 v{SUM + 2*(j&1)}, v{V_ONE}, v{r}")
            A(f"v_dot2c_f32_bf16 v{SQ + 2*(j&1)}, v{r}, v{r}")
        if i < 6:
            for j in range(4):
                A(f"v_lshlrev_b32 v{F+8*i+2*j}, 16, v{X+4*i+j}")
                A(f"v_and_b32 v{F+8*i+2*j+1}, v{V_MSK}, v{X+4*i+j}")
    up = []
    for j in range(4):
        up.append(f"v_lshlrev_b32 v{F+48+2*j}, 16, v{X+24+j}")
        up.append(f"v_and_b32 v{F+48+2*j+1}, v{V_MSK}, v{X+24+j}")
    A(up[0]); A(up[1]); A(up[2])
    A(f"v_add_f32 v{SUM}, v{SUM}, v{SUM+2}")
    A(f"v_add_f32 v{SQ}, v{SQ}, v{SQ+2}")
    for n, dpp in enumerate(("quad_perm:[1,0,3,2]", "quad_perm:[2,3,0,1]", "row_half_mirror")):
        A(up[3 + n])
        A(f"v_add_f32_dpp v{SUM}, v{SUM}, v{SUM} {dpp} row_mask:0xf bank_mask:0xf")
        A(f"v_add_f32_dpp v{SQ}, v{SQ}, v{SQ} {dpp} row_mask:0xf bank_mask:0xf")
    MEAN = T + 2
    A(f"v_mul_f32 v{MEAN}, {f2u(1/448):#x}, v{SUM}")
    A(f"v_fma_f32 v{SUM}, -v{MEAN}, v{MEAN}, s{S_EPS}")
    A(f"v_fmac_f32 v{SUM}, {f2u(1/448):#x}, v{SQ}")
    A(f"v_max_f32 v{SQ}, s{S_EPS}, v{SUM}")
    A(f"v_rsq_f32 v{RS}, v{SQ}")
    A(up[6]); A(up[7])
    A(f"v_mul_f32 v{RS+1}, -v{MEAN}, v{RS}")
    stamp(3 if first else 5)
    if first: A("s_waitcnt lgkmcnt(0)")
    if not first and MIDW:
        A(f"s_cmp_lg_u32 s{S_WV}, {SW}")
        A("s_cbranch_scc1 L_nomid")
        for it in dma(0) + dma(1): A(it if isinstance(it, str) else it[2])
        if flag('--swhi'): A("s_setprio 0")
        A("L_nomid:")
    def s1(i): return [f"v_pk_fma_f32 {v(F+8*i+2*j,2)}, {v(F+8*i+2*j,2)}, {v(RS,2)}, {v(RS,2)} op_sel:[0,0,1] op_sel_hi:[1,0,1]" for j in range(4)]
    def s2(i): return [f"v_pk_fma_f32 {v(F+8*i+2*j,2)}, {v(F+8*i+2*j,2)}, {v(G+8*i+2*j,2)}, {v(Bv+8*i+2*j,2)}" for j in range(4)]
    def s3(i): return [f"v_cvt_pk_bf16_f32 v{X+4*i+j}, v{F+8*i+2*j}, v{F+8*i+2*j+1}" for j in range(4)] + \
                      [f"ds_write_b128 v{V_LW}, {v(X+4*i,4)} offset:{yoff + 128*i}"]
    for step in range(9):
        if step < 7:
            for l_ in s1(step): A(l_)
        if 0 <= step - 1 < 7:
            for l_ in s2(step - 1): A(l_)
        if 0 <= step - 2 < 7:
            for l_ in s3(step - 2): A(l_)
def dma(k):
    out = []
    for hf in range(2):
        for i in range(7):
            if (i & 3) == 0:
                out.append(f"s_add_u32 m0, {RING + SLOT*(k%3) + 7168*hf + 1024*i}, 0")
                out.append(f"s_add_u32 s{S_T}, s{S_WO}, {(32*k + 4*hf)*896}")
            out.append(("vm", f"W{k}", f"buffer_load_dwordx4 v{VWL[i]}, s[{R_W}:{R_W+3}], s{S_T} offen offset:{1024*(i&3)} lds"))
    return out
def pfissue():
    emit(("vm", "pf", f"buffer_load_dwordx4 {v(240,4)}, v{V_L16}, s[{R_W}:{R_W+3}], s{S_PF} offen"))
    A("s_mov_b32 exec_hi, 3")
    emit(("vm", "pf", f"buffer_load_dwordx4 {v(244,4)}, v{V_L16}, s[{R_W}:{R_W+3}], s{S_PF} offen offset:1024"))
    A("s_mov_b32 exec_hi, -1")
    if TLB: emit(("vm", "pf", f"buffer_load_dword v248, off, s[{R_O}:{R_O+3}], s{S_OO}"))
def hook1(i):
    for c in range(XS):
        if XS * i + c + XF + XG < 7: emit(x2load(XS * i + c + XF + XG))
    if PF and PFP < 0 and i == 6: pfissue()
def hook2(i):
    if PF and i == PFP: pfissue()
layernorm(X1, "x1", True, 0, hook1)
stamp(4)
if PRIO:
    A(f"s_cmp_ge_u32 s{S_WV}, {3 if flag('--swhi') else 4}")
    A("s_cbranch_scc1 L_p1")
    A("s_setprio 0")
    A("L_p1:")
layernorm(X2, "x2", False, 64 * P, hook2)
A(f"s_cmp_eq_u32 s{S_WV}, {SW}")
A("s_cbranch_scc1 L_w7")

hq = Q(); hq.vm = list(q.vm); q = Q()
WR = 16; ACC1 = 128; ACC2 = 160; AF = 176
def wreg(k, t): return WR + 8 * k + 4 * t
def trread(k):
    return [("lg", f"B{k}", f"ds_read_b64_tr_b16 {v(wreg(k,t)+2*hf,2)}, v{V_T1 if t else V_T0} offset:{SLOT*(k%3) + 16*448*hf}")
            for t in range(2) for hf in range(2)]
def aread(tag, buf, mt, k):
    return ("lg", tag, f"ds_read_b128 {v(AF+4*buf,4)}, v{V_AR if mt < 4 else V_AR2} offset:{(mt&3)*16*P + 64*k}")
def epi(areg, mt):
    out = []
    for t in range(2):
        d = areg + 4 * t
        out.append(f"v_cvt_pk_bf16_f32 v{d}, v{d}, v{d+1}")
        out.append(f"v_cvt_pk_bf16_f32 v{d+1}, v{d+2}, v{d+3}")
        out.append(("lg", f"OW{mt}", f"ds_write_b64 v{V_OW}, {v(d,2)} offset:{(mt&3)*16*PS + 32*t}"))
    return out
def epi_b(areg, mt): return [("lgwait", f"OW{mt}"), ("lg", f"OR{mt}", f"ds_read_b128 {v(areg+4,4)}, v{V_OR} offset:{(mt&3)*16*PS}")]
def epi_c(areg, mt):
    fl = STFL if mt < opt("--plainfrom", 8, int) else opt("--lastfl", "", str)
    return [f"s_add_u32 s{S_T}, s{S_OO}, {16*896*mt}", ("lgwait", f"OR{mt}"), f"buffer_store_dwordx4 {v(areg+4,4)}, v{V_OG}, s[{R_O}:{R_O+3}], s{S_T} offen {fl}"]
A("s_waitcnt lgkmcnt(0)")
stamp(6)
if PRIO: A("s_setprio 0")
A("s_barrier")
for mt in range(4): emit(aread(f"A0_{mt}", mt, mt, 0))
if not EARLYW: A("s_barrier")
stamp(7)
for it in trread(0): emit(it)
BPOS = opt("--bpos", 3, int)
for k in range(14):
    if k % 2 == 0: stamp(1 + k // 2, True)
    fill = {g_: [] for g_ in range(8)}
    for mt in range(4):
        fill[mt].append(aread(f"A{k+1}_{mt}", 4 * ((k + 1) & 1) + mt, mt, k + 1) if k + 1 < 14 else aread(f"P4_{mt}", mt, 4, mt))
    fill[BPOS].append("s_barrier")
    if k + 1 < 14:
        for i_, it in enumerate(trread(k + 1)): fill[min(BPOS + 1 + i_ // TRP, 7)].append(it)
    if ALT:
        fill[0].append(f"s_setprio {2 if (k & 1) == 0 else 0}" if ALT == 2 else "s_setprio 2")
        if ALT == 1: fill[4].append("s_setprio 0")
    emit(("lgwait", f"B{k}")); emit(("lgwait", f"A{k}_3"))
    for mt in range(4):
        for t in range(2):
            d = ACC1 + 8 * mt + 4 * t
            A(f"v_mfma_f32_16x16x32_bf16 {v(d,4)}, {v(wreg(k,t),4)}, {v(AF+4*(4*(k&1)+mt),4)}, {'0' if k == 0 else v(d,4)}")
            for it in fill[2 * mt + t]: emit(it)
stamp(8, True)
stamp(8)
seq = [(mt, k) for mt in range(4, 8) for k in range(14)]
PFD = opt("--pfd", 4, int)
def areg(mt): return ACC1 + 8 * mt if mt < 6 else 208 + 8 * (mt - 6)
eq = []
def sched(g0, mt):
    e = epi(areg(mt), mt)
    for it in e: eq.append([g0, [it]])
    eq.append(["lag", LAG1, epi_b(areg(mt), mt)])
    c = epi_c(areg(mt), mt)
    eq.append([0, c[:1]]); eq.append(["lag", LAG2, c[1:]])
LAG1 = opt("--lag1", 5, int); LAG2 = opt("--lag2", 5, int); WE = opt("--we", 1, int)
if flag("--pipe"):
    for mt in range(4):
        for it in epi(areg(mt), mt): eq.append([3, [it]])
        if mt >= 1: eq.append([0, epi_b(areg(mt - 1), mt - 1)])
        if mt >= 2:
            c = epi_c(areg(mt - 2), mt - 2); eq.append([0, c[:1]]); eq.append([0, c[1:]])
    c = epi_c(areg(2), 2); eq.append([0, c[:1]]); eq.append([0, epi_b(areg(3), 3)]); eq.append(["lag", 3, c[1:]])
    c = epi_c(areg(3), 3); eq.append([0, c[:1]]); eq.append(["lag", 3, c[1:]])
else:
    for mt in range(4): sched(3, mt)
for mt in range(4, 7): sched(28 * (mt - 3) + 6, mt)
for d_ in range(4, PFD): emit(aread(f"P4_{d_}", d_, 4, d_))
g = 0; lastg = 0
for n, (mt, k) in enumerate(seq):
    if k == 0: stamp(5 + mt, True)
    TG_ = opt("--tog", 0, int)
    if TG_ and n % TG_ == 0:
        if n == 0:
            A("s_setprio 1")
        A(f"s_cmp_ge_u32 s{S_WV}, 4")
        A(f"s_cbranch_scc1 L_tg{n}")
        A(f"s_setprio {2 if (n // TG_) % 2 == 0 else 0}")
        A(f"L_tg{n}:")
    if n % WE == 0:
        m2, k2 = seq[min(n + WE - 1, len(seq) - 1)]
        emit(("lgwait", f"P{m2}_{k2}"))
    for t in range(2):
        d = areg(mt) + 4 * t
        A(f"v_mfma_f32_16x16x32_bf16 {v(d,4)}, {v(wreg(k,t),4)}, {v(AF+4*(n&7),4)}, {'0' if k == 0 else v(d,4)}")
        if t == 0 and n + PFD < len(seq): emit(aread(f"P{seq[n+PFD][0]}_{seq[n+PFD][1]}", (n + PFD) & 7, *seq[n + PFD]))
        if eq and ((eq[0][0] == "lag" and g >= lastg + eq[0][1]) or (eq[0][0] != "lag" and g >= eq[0][0])):
            for it in eq.pop(0)[-1]: emit(it)
            lastg = g
        g += 1
assert not eq, eq
stamp(13, True)
stamp(9)
A("s_nop 7")
for it in epi(areg(7), 7) + epi_b(areg(7), 7) + epi_c(areg(7), 7): emit(it)
stamp(10)
A("s_branch L_fin")

A("L_w7:")
q = hq
def issue(l):
    for it in l: emit(it)
A("s_waitcnt lgkmcnt(0)")
stamp(6)
if not EARLYW: A("s_barrier")
if MIDW: q.vm += ['W0'] * 14 + ['W1'] * 14
else: issue(dma(0)); issue(dma(1))
if not EARLYW: issue(dma(2))
for k in range(14):
    emit(("vmwait", f"W{k}"))
    if k == 0 or not flag("--nobar"): A("s_barrier")
    if (k >= 1 or EARLYW) and k + 2 < 14: issue(dma(k + 2))
stamp(8)
A("s_barrier")
A("L_fin:")
if flag("--dbgskew"):
    A("s_waitcnt vmcnt(0)")
    A("s_memrealtime s[100:101]") if False else None
    A("s_memrealtime s[58:59]")
    A("s_load_dwordx2 s[14:15], s[0:1], 40")
    A("s_getreg_b32 s60, hwreg(HW_REG_XCC_ID)")
    A("s_waitcnt lgkmcnt(0)")
    srd(A, R_WS, S_WS, 256)
    A("s_and_b32 s60, s60, 7")
    A("s_lshl_b32 s60, s60, 3")
    A("v_mov_b32 v12, s62")
    A("v_mov_b32 v13, s58")
    A("v_cmp_eq_u32 vcc, 0, v0")
    A("s_and_saveexec_b64 s[4:5], vcc")
    A(f"buffer_atomic_umax v12, off, s[{R_WS}:{R_WS+3}], s60")
    A(f"buffer_atomic_umax v13, off, s[{R_WS}:{R_WS+3}], s60 offset:4")
    A("s_waitcnt vmcnt(0)")
if STAMPS:
    A("s_waitcnt vmcnt(0)")
    stamp(11)
    A("s_waitcnt lgkmcnt(0)")
    if PROBE is not None:
        A(f"s_cmp_lg_u32 s{S_WV}, {PROBE[0]}")
        A("s_cbranch_scc1 L_nospin")
        if PROBE[1] == "f":
            A(f"s_mov_b32 s{S_T}, {int(PROBE[2:])}")
        else:
            pi, pj = int(PROBE[1], 16), int(PROBE[2], 16)
            A(f"s_sub_u32 s{S_T}, s{S_ST+2*pi}, s{S_ST+2*pj}")
            A(f"s_lshl_b32 s{S_T}, s{S_T}, 1")
            A(f"s_add_u32 s{S_T}, s{S_T}, 1500")
        A(f"s_add_u32 s{S_T}, s{S_T}, s{S_ST}")
        A("L_spin:")
        A(f"s_memrealtime s[{S_ST+30}:{S_ST+31}]")
        A("s_waitcnt lgkmcnt(0)")
        A(f"s_sub_u32 s{S_T2}, s{S_ST+30}, s{S_T}")
        A(f"s_cmp_lt_i32 s{S_T2}, 0")
        A("s_cbranch_scc1 L_spin")
        A("L_nospin:")
    A(f"s_lshl_b32 s{S_T}, s2, 11")
    A(f"s_lshl_b32 s{S_T2}, s{S_WV}, 7")
    A(f"s_add_u32 s{S_T}, s{S_T}, s{S_T2}")
    A("v_mov_b32 v14, 0")
    A("v_cmp_eq_u32 vcc, 0, v0")
    A("s_and_saveexec_b64 s[4:5], vcc")
    for i in range(NSTAMP):
        A(f"v_mov_b32 v12, s{S_ST+2*i}")
        A(f"v_mov_b32 v13, s{S_ST+2*i+1}")
        A(f"buffer_store_dwordx2 v[12:13], v14, s[{R_WS}:{R_WS+3}], s{S_T} offen offset:{8*i}")
        A("s_waitcnt vmcnt(0)")
A("L_end:")
A("s_endpgm")
out = wrap(A.text(), 256, 512, LDS_TOTAL, 256, 100 if STAMPS else 64, 256, notes="""
out = (LayerNorm(x)*g + b) @ w.  One workgroup (8 waves) per CU computes 128 rows x 224 columns.
 1. every wave normalises 2 x 8 rows (fp32 statistics, one rounding to bf16) into LDS;
 2. wave 3 streams this half of w through a 3-slot LDS ring (LDS-DMA); the other seven waves own 32 columns each,
    pull their MFMA fragments with transposing LDS reads and keep them in registers (rows 0..63 are multiplied meanwhile);
 3. rows 64..127 are multiplied tile by tile while finished tiles leave through write-through stores.
Generated by an own script (straight-line code, counted waits).""")
open(sys.argv[1], "w").write(out)
```

```python
import sys, struct
from asmgen import *
def flag(n): return n in sys.argv
def opt(n, d, t=str): return t(sys.argv[sys.argv.index(n)+1]) if n in sys.argv else d
STAMPS = flag("--stamps"); PROBE = opt("--probe", None)
PF = not flag("--nopf"); TLB = flag("--tlb")
CYC = flag("--cyc"); FINE = flag("--fine")
CPF = opt("--cpf", 512, int)
STFL = opt("--st", "sc1", str); XFL = opt("--xfl", "", str)
if STFL == "plain": STFL = ""
TRP = opt('--trp', 2, int)
ALT = opt('--alt', 0, int)
PFP = opt("--pfp", 3, int)
XG = opt('--xg', 0, int); XS = opt('--xs', 1, int)
MIDW = not flag('--nomid')
ND = opt('--nd', 4, int)
XF = opt("--xfirst", 0, int)
def f2u(f): return struct.unpack("<I", struct.pack("<f", f))[0]
A = Asm()
P = 928; PS = 80
XB = 16384 * 896
RING = 128 * P
SLOT = 14336
SCR = RING + 2 * SLOT
LDS_TOTAL = 163840
OST = RING
assert RING + 3 * SLOT <= LDS_TOTAL
S_X, S_G, S_B, S_W, S_O, S_WS = 4, 6, 8, 10, 12, 14
R_X, R_W, R_O, R_G, R_B, R_WS = 16, 20, 24, 28, 32, 36
S_WV, S_XO, S_WO, S_OO, S_ONE, S_T, S_RB, S_T2, S_MSK, S_PF, S_X2 = 40, 41, 42, 43, 44, 45, 46, 47, 48, 49, 50
S_EPS = 44
S_ST = 66; NSTAMP = 16
def stamp(i, fine=False):
    if STAMPS and (fine == FINE or i == 0):
        A(f"{'s_memtime' if CYC else 's_memrealtime'} s[{S_ST+2*i}:{S_ST+2*i+1}]")
def srd2(d, b):
    A(f"s_mov_b32 s{d}, s{b}"); A(f"s_and_b32 s{d+1}, s{b+1}, 0xffff")
class Q:
    def __init__(s): s.vm = []; s.lg = []
q = Q()
def qwait(l, tag, name, cap):
    if tag not in l: return None
    idx = max(i for i, t in enumerate(l) if t == tag)
    n = len(l) - 1 - idx
    del l[:idx + 1]
    return f"s_waitcnt {name}({min(n,cap)})"
def emit(item):
    if isinstance(item, str): A(item); return
    if item[0] == "vm": q.vm.append(item[1]); A(item[2])
    elif item[0] == "lg": q.lg.append(item[1]); A(item[2])
    else:
        w = qwait(q.vm, item[1], "vmcnt", 63) if item[0] == "vmwait" else qwait(q.lg, item[1], "lgkmcnt", 15)
        if w: A(w)

V_XOFF, V_L16, V_LW, V_SR, V_T0, V_T1, V_AR, V_AR2, V_OW = 1, 2, 3, 4, 5, 6, 7, 8, 9
V_MSK, V_ONE, V_OR, V_OG = 250, 251, 252, 253
T = 10
X1, X2, G, Bv, F, GRAW = 16, 44, 72, 128, 184, 240
SW = opt('--sw', 3, int)
EARLYW = not flag('--latew')
A("s_cmp_ge_u32 s2, 256")
A("s_cbranch_scc1 L_end")
stamp(0)
if flag("--dbgskew"): A("s_memrealtime s[62:63]")
A("s_load_dwordx8 s[4:11], s[0:1], 0")
A("s_load_dwordx2 s[12:13], s[0:1], 32")
if STAMPS: A("s_load_dwordx2 s[14:15], s[0:1], 48")
if CPF:
    A("s_getpc_b64 s[54:55]")
    A("L_pc:")
    if flag("--cpfb"):
        A("s_lshr_b32 s3, s2, 3")
        A(f"s_mul_i32 s3, s3, {CPF}")
        A("v_lshl_add_u32 v2, v0, 2, s3")
        A(f"v_cmp_gt_u32 vcc, {CPF//4}, v0")
        A("s_and_saveexec_b64 s[56:57], vcc")
        A("v_cmp_gt_u32 vcc, L_end-L_pc, v2")
        A("s_and_b64 exec, exec, vcc")
        A("s_cbranch_execz L_nocpf")
        A("global_load_dword v255, v2, s[54:55]")
        A("L_nocpf:")
        A("s_mov_b64 exec, s[56:57]")
    else:
        A("s_and_b32 s3, s2, 0xf8")
        A("s_lshl_b32 s3, s3, 6")
        A("v_and_b32 v2, 0x1c0, v0")
        A("v_add_u32 v2, s3, v2")
        A("v_min_u32 v2, L_end-L_pc, v2")
        A("global_load_dword v255, v2, s[54:55]")
A("v_lshrrev_b32 v1, 6, v0")
A("v_and_b32 v0, 63, v0")
A(f"v_readfirstlane_b32 s{S_WV}, v1")
A(f"v_lshrrev_b32 v{T}, 3, v0")
A(f"v_and_b32 v{T+1}, 7, v0")
A(f"v_lshlrev_b32 v{T+1}, 4, v{T+1}")
A(f"v_mul_u32_u24 v{V_XOFF}, 896, v{T}")
A(f"v_add_u32 v{V_XOFF}, v{V_XOFF}, v{T+1}")
A(f"v_lshlrev_b32 v{V_L16}, 4, v0")
A(f"s_lshr_b32 s{S_T}, s2, 4")
A(f"s_lshl_b32 s{S_T}, s{S_T}, 3")
A(f"s_and_b32 s{S_T2}, s2, 7")
A(f"s_add_u32 s{S_T}, s{S_T}, s{S_T2}")
A(f"s_mul_i32 s{S_OO}, s{S_T}, {128*896}")
A(f"s_mul_i32 s{S_T}, s{S_WV}, {8*896}")
A(f"s_add_u32 s{S_XO}, s{S_OO}, s{S_T}")
A(f"s_add_u32 s{S_X2}, s{S_XO}, {64*896}")
for r, n in ((R_G, 896), (R_B, 896), (R_X, XB), (R_W, 448 * 896)):
    A(f"s_mov_b32 s{r+2}, {n}"); A(f"s_mov_b32 s{r+3}, 0x20000")
A(f"s_cmp_lg_u32 s{S_WV}, 0")
A("s_waitcnt lgkmcnt(0)")
A("s_cbranch_scc1 L_nogb")
srd2(R_G, S_G); srd2(R_B, S_B)
A(f"buffer_load_dwordx4 {v(GRAW,4)}, v{V_L16}, s[{R_G}:{R_G+3}], 0 offen")
A(f"buffer_load_dwordx4 {v(GRAW+4,4)}, v{V_L16}, s[{R_B}:{R_B+3}], 0 offen")
A("L_nogb:")
srd2(R_X, S_X)
for i in range(7):
    emit(("vm", f"x1_{i}", f"buffer_load_dwordx4 {v(X1+4*i,4)}, v{V_XOFF}, s[{R_X}:{R_X+3}], s{S_XO} offen offset:{128*i} {XFL}"))
def x2load(i): return ("vm", f"x2_{i}", f"buffer_load_dwordx4 {v(X2+4*i,4)}, v{V_XOFF}, s[{R_X}:{R_X+3}], s{S_X2} offen offset:{128*i} {XFL}")
stamp(1)
PRIO = opt("--prio", 1, int)
if PRIO:
    A("s_setprio 1")
    A(f"s_cmp_ge_u32 s{S_WV}, 4")
    A("s_cbranch_scc1 L_p0")
    A("s_setprio 2")
    A("L_p0:")
srd2(R_W, S_W)
srd(A, R_O, S_O, XB)
if STAMPS: srd(A, R_WS, S_WS, 1 << 22)
A(f"s_bfe_u32 s{S_WO}, s2, 0x10003")
A(f"s_mul_i32 s{S_WO}, s{S_WO}, 448")
A(f"s_add_u32 s{S_OO}, s{S_OO}, s{S_WO}")
A(f"s_and_b32 s{S_PF}, s2, 0xf8")
A(f"s_add_u32 s{S_PF}, s{S_PF}, s{S_WV}")
A(f"s_mul_i32 s{S_PF}, s{S_PF}, 1568")
A(f"v_mul_u32_u24 v{V_LW}, {P}, v{T}")
A(f"v_add_u32 v{V_LW}, v{V_LW}, v{T+1}")
A(f"s_mul_i32 s{S_T}, s{S_WV}, {8*P}")
A(f"v_add_u32 v{V_LW}, s{S_T}, v{V_LW}")
A(f"v_lshlrev_b32 v{V_SR}, 1, v{T+1}")
A(f"v_add_u32 v{V_SR}, {SCR}, v{V_SR}")
A(f"v_and_b32 v{T}, 15, v0")
A(f"v_lshrrev_b32 v{T+1}, 4, v0")
A(f"v_mul_u32_u24 v{V_AR}, {P}, v{T}")
A(f"v_lshl_add_u32 v{V_AR}, v{T+1}, 4, v{V_AR}")
A(f"v_add_u32 v{V_AR2}, {64*P}, v{V_AR}")
A(f"s_cmp_gt_u32 s{S_WV}, {SW}")
A(f"s_subb_u32 s{S_T}, s{S_WV}, 0")
A(f"s_lshl_b32 s{S_T}, s{S_T}, 6")
A(f"s_add_u32 s{S_T}, s{S_T}, {RING}")
A(f"s_sub_u32 s{S_T2}, s{S_T}, {RING}")
A(f"s_add_u32 s{S_OO}, s{S_OO}, s{S_T2}")
A(f"s_mul_i32 s{S_RB}, s{S_WV}, {4*16*PS}")
A(f"s_add_u32 s{S_RB}, s{S_RB}, {OST}")
A(f"v_mul_u32_u24 v{V_OW}, {PS}, v{T}")
A(f"v_lshl_add_u32 v{V_OW}, v{T+1}, 3, v{V_OW}")
A(f"v_add_u32 v{V_OW}, s{S_RB}, v{V_OW}")
A(f"v_lshrrev_b32 v{T+2}, 2, v0")
A(f"v_and_b32 v{T+3}, 3, v0")
A(f"v_mul_u32_u24 v{V_OR}, {PS}, v{T+2}")
A(f"v_lshl_add_u32 v{V_OR}, v{T+3}, 4, v{V_OR}")
A(f"v_add_u32 v{V_OR}, s{S_RB}, v{V_OR}")
A(f"v_mul_u32_u24 v{V_OG}, 896, v{T+2}")
A(f"v_lshl_add_u32 v{V_OG}, v{T+3}, 4, v{V_OG}")
A(f"v_lshrrev_b32 v{T+2}, 2, v0")
A(f"v_mul_u32_u24 v{V_T0}, 448, v{T+2}")
A(f"v_and_b32 v{T+2}, 3, v0")
A(f"v_lshl_add_u32 v{V_T0}, v{T+2}, 3, v{V_T0}")
A(f"v_add_u32 v{V_T0}, s{S_T}, v{V_T0}")
A(f"v_and_b32 v{T+1}, 1, v{T+1}")
A(f"v_lshlrev_b32 v{T+1}, 5, v{T+1}")
A(f"v_sub_u32 v{V_T1}, v{V_T0}, v{T+1}")
A(f"v_add_u32 v{V_T1}, 32, v{V_T1}")
A(f"v_add_u32 v{V_T0}, v{V_T0}, v{T+1}")
A(f"s_cmp_lg_u32 s{S_WV}, {SW}")
A("s_cbranch_scc1 L_nosw")
VWL = [V_T0, V_T1, V_AR, V_AR2, V_OW, V_OR, V_OG]
A(f"s_movk_i32 s{S_T}, {896-448}")
A(f"v_mul_u32_u24 v{T+2}, 2341, v0")
for i in range(7):
    if i: A(f"v_add_u32 v{T}, {64*i*2341}, v{T+2}")
    A(f"v_lshrrev_b32 v{T}, 16, v{T if i else T+2}")
    A(f"v_add_u32 v{T+1}, {1024*i}, v{V_L16}")
    A(f"v_mad_u32_u24 v{T+3}, v{T}, s{S_T}, v{T+1}")
    A(f"v_lshrrev_b32 v{T+1}, 2, v{T}")
    A(f"v_mul_u32_u24 v{T+1}, {4*896}, v{T+1}")
    A(f"v_and_b32 v{T}, 4, v{T}")
    A(f"v_lshlrev_b32 v{T}, 3, v{T}")
    A(f"v_xor_b32 v{T}, v{T}, v{T+3}")
    A(f"v_add_u32 v{VWL[i]}, v{T}, v{T+1}")
    if i & 3: A(f"v_subrev_u32 v{VWL[i]}, {1024*(i&3)}, v{VWL[i]}")
A("L_nosw:")
A(f"v_mov_b32 v{V_MSK}, 0xffff0000")
A(f"v_mov_b32 v{V_ONE}, 0x3f803f80")
A(f"s_mov_b32 s{S_EPS}, {f2u(1e-5):#x}")
A(f"s_cmp_lg_u32 s{S_WV}, 0")
A("s_cbranch_scc1 L_nogb2")
A(f"v_lshlrev_b32 v{T}, 5, v0")
A(f"v_add_u32 v{T}, {SCR}, v{T}")
A(f"s_waitcnt vmcnt(7)")
U = Bv + 40
for j in range(8):
    A(f"v_lshlrev_b32 v{U+2*j}, 16, v{GRAW+j}")
    A(f"v_and_b32 v{U+2*j+1}, v{V_MSK}, v{GRAW+j}")
A(f"ds_write_b128 v{T}, {v(U,4)}")
A(f"ds_write_b128 v{T}, {v(U+4,4)} offset:16")
A(f"ds_write_b128 v{T}, {v(U+8,4)} offset:2048")
A(f"ds_write_b128 v{T}, {v(U+12,4)} offset:2064")
A("s_waitcnt lgkmcnt(0)")
A("L_nogb2:")
for i in range(XF): emit(x2load(i))
RS = T + 4
def layernorm(X, tag, first, yoff, hook):
    SUM, SQ = T, T + 1
    GP = opt("--gpos", 0, int)
    for i in range(7):
        if first and GP and flag("--gsplit") and i in (0, GP):
            A(f"s_cmp_{'lt' if i == 0 else 'ge'}_u32 s{S_WV}, 4")
            A(f"s_cbranch_scc1 L_g{i}")
            A("s_barrier")
            A(f"L_g{i}:")
            if i == GP: stamp(2)
        elif first and i == GP:
            A("s_barrier")
            stamp(2)
            for c in range(XF, XF + XG): emit(x2load(c))
        if first and i >= GP:
            for c in range(7):
                if (GP + c * (7 - GP) // 7 if not flag("--gball") else GP) == i:
                    A(f"ds_read_b128 {v(G+8*c,4)}, v{V_SR} offset:{256*c}")
                    A(f"ds_read_b128 {v(G+8*c+4,4)}, v{V_SR} offset:{256*c+16}")
                    A(f"ds_read_b128 {v(Bv+8*c,4)}, v{V_SR} offset:{2048+256*c}")
                    A(f"ds_read_b128 {v(Bv+8*c+4,4)}, v{V_SR} offset:{2048+256*c+16}")
        emit(("vmwait", f"{tag}_{i}"))
        hook(i)
        for j in range(4):
            r = X + 4 * i + j
            if i == 0 and j < 2:
                A(f"v_dot2_f32_bf16 v{SUM + 2*(j&1)}, v{V_ONE}, v{r}, 0")
                A(f"v_dot2_f32_bf16 v{SQ + 2*(j&1)}, v{r}, v{r}, 0")
                continue
            A(f"v_dot2c_f32_bf16 v{SUM + 2*(j&1)}, v{V_ONE}, v{r}")
            A(f"v_dot2c_f32_bf16 v{SQ + 2*(j&1)}, v{r}, v{r}")
        if i < ND:
            for j in range(4):
                A(f"v_lshlrev_b32 v{F+8*i+2*j}, 16, v{X+4*i+j}")
                A(f"v_and_b32 v{F+8*i+2*j+1}, v{V_MSK}, v{X+4*i+j}")
    up = []
    for i in range(ND, 7):
        for j in range(4):
            up.append(f"v_lshlrev_b32 v{F+8*i+2*j}, 16, v{X+4*i+j}")
            up.append(f"v_and_b32 v{F+8*i+2*j+1}, v{V_MSK}, v{X+4*i+j}")
    MEAN = T + 2
    chain = [3, f"v_add_f32 v{SUM}, v{SUM}, v{SUM+2}", f"v_add_f32 v{SQ}, v{SQ}, v{SQ+2}"]
    for dpp in ("quad_perm:[1,0,3,2]", "quad_perm:[2,3,0,1]", "row_half_mirror"):
        chain += [1, f"v_add_f32_dpp v{SUM}, v{SUM}, v{SUM} {dpp} row_mask:0xf bank_mask:0xf",
                  f"v_add_f32_dpp v{SQ}, v{SQ}, v{SQ} {dpp} row_mask:0xf bank_mask:0xf"]
    chain += [f"v_mul_f32 v{MEAN}, {f2u(1/448):#x}, v{SUM}", 0]
    if flag("--exactstats"):
        chain += [f"v_fma_f32 v{SUM}, -v{MEAN}, v{MEAN}, s{S_EPS}", 0, f"v_fmac_f32 v{SUM}, {f2u(1/448):#x}, v{SQ}", 0,
                  f"v_max_f32 v{SQ}, s{S_EPS}, v{SUM}", 0, f"v_rsq_f32 v{RS}, v{SQ}", 1]
    else:
        chain += [f"v_mul_f32 v{SUM}, -v{MEAN}, v{MEAN}", 0, f"v_fmac_f32 v{SUM}, {f2u(1/448):#x}, v{SQ}", 0,
                  f"v_max_f32 v{SQ}, 0, v{SUM}", 0, f"v_cvt_pk_bf16_f32 v{SUM}, v{MEAN}, v{SQ}", 0,
                  f"v_and_b32 v{SQ}, v{V_MSK}, v{SUM}", f"v_lshlrev_b32 v{MEAN}, 16, v{SUM}", f"v_add_f32 v{SQ}, s{S_EPS}, v{SQ}", 0,
                  f"v_cvt_pk_bf16_f32 v{SQ}, v{SQ}, v{SQ}", 0, f"v_and_b32 v{SQ}, v{V_MSK}, v{SQ}", 0, f"v_sqrt_f32 v{SQ}, v{SQ}", 1, 0, 0,
                  f"v_cvt_pk_bf16_f32 v{SQ}, v{SQ}, v{SQ}", 0, f"v_and_b32 v{SQ}, v{V_MSK}, v{SQ}", 0, f"v_rcp_f32 v{RS}, v{SQ}", 1]
    must = sum(c for c in chain if isinstance(c, int))
    for c in chain:
        if isinstance(c, str): A(c)
        elif c:
            for _ in range(c): A(up.pop(0))
            must -= c
        elif len(up) > must: A(up.pop(0))
    for l_ in up: A(l_)
    A(f"v_mul_f32 v{RS+1}, -v{MEAN}, v{RS}")
    stamp(3 if first else 5)
    if first: A("s_waitcnt lgkmcnt(0)")
    if not first and MIDW:
        A(f"s_cmp_lg_u32 s{S_WV}, {SW}")
        A("s_cbranch_scc1 L_nomid")
        for it in dma(0) + dma(1): A(it if isinstance(it, str) else it[2])
        if flag('--swhi'): A("s_setprio 0")
        A("L_nomid:")
    def s1(i): return [f"v_pk_fma_f32 {v(F+8*i+2*j,2)}, {v(F+8*i+2*j,2)}, {v(RS,2)}, {v(RS,2)} op_sel:[0,0,1] op_sel_hi:[1,0,1]" for j in range(4)]
    def s2(i): return [f"v_pk_fma_f32 {v(F+8*i+2*j,2)}, {v(F+8*i+2*j,2)}, {v(G+8*i+2*j,2)}, {v(Bv+8*i+2*j,2)}" for j in range(4)]
    def s3(i): return [f"v_cvt_pk_bf16_f32 v{X+4*i+j}, v{F+8*i+2*j}, v{F+8*i+2*j+1}" for j in range(4)] + \
                      [f"ds_write_b128 v{V_LW}, {v(X+4*i,4)} offset:{yoff + 128*i}"]
    for step in range(9):
        if step < 7:
            for l_ in s1(step): A(l_)
        if 0 <= step - 1 < 7:
            for l_ in s2(step - 1): A(l_)
        if 0 <= step - 2 < 7:
            for l_ in s3(step - 2): A(l_)
def dma(k):
    out = []
    for hf in range(2):
        for i in range(7):
            if (i & 3) == 0:
                out.append(f"s_add_u32 m0, {RING + SLOT*(k%3) + 7168*hf + 1024*i}, 0")
                out.append(f"s_add_u32 s{S_T}, s{S_WO}, {(32*k + 4*hf)*896}")
            out.append(("vm", f"W{k}", f"buffer_load_dwordx4 v{VWL[i]}, s[{R_W}:{R_W+3}], s{S_T} offen offset:{1024*(i&3)} lds"))
    return out
def pfissue():
    emit(("vm", "pf", f"buffer_load_dwordx4 {v(240,4)}, v{V_L16}, s[{R_W}:{R_W+3}], s{S_PF} offen"))
    A("s_mov_b32 exec_hi, 3")
    emit(("vm", "pf", f"buffer_load_dwordx4 {v(244,4)}, v{V_L16}, s[{R_W}:{R_W+3}], s{S_PF} offen offset:1024"))
    A("s_mov_b32 exec_hi, -1")
    if TLB: emit(("vm", "pf", f"buffer_load_dword v248, off, s[{R_O}:{R_O+3}], s{S_OO}"))
def hook1(i):
    for c in range(XS):
        if XS * i + c + XF + XG < 7: emit(x2load(XS * i + c + XF + XG))
    if PF and PFP < 0 and i == 6: pfissue()
def hook2(i):
    if PF and i == PFP: pfissue()
layernorm(X1, "x1", True, 0, hook1)
stamp(4)
if PRIO:
    A(f"s_cmp_ge_u32 s{S_WV}, {3 if flag('--swhi') else 4}")
    A("s_cbranch_scc1 L_p1")
    A("s_setprio 0")
    A("L_p1:")
layernorm(X2, "x2", False, 64 * P, hook2)
A(f"s_cmp_eq_u32 s{S_WV}, {SW}")
A("s_cbranch_scc1 L_w7")

hq = Q(); hq.vm = list(q.vm); q = Q()
WR = 16; ACC1 = 128; ACC2 = 160; AF = 176
def wreg(k, t): return WR + 8 * k + 4 * t
def trread(k):
    return [("lg", f"B{k}", f"ds_read_b64_tr_b16 {v(wreg(k,t)+2*hf,2)}, v{V_T1 if t else V_T0} offset:{SLOT*(k%3) + 16*448*hf}")
            for t in range(2) for hf in range(2)]
def aread(tag, buf, mt, k):
    return ("lg", tag, f"ds_read_b128 {v(AF+4*buf,4)}, v{V_AR if mt < 4 else V_AR2} offset:{(mt&3)*16*P + 64*k}")
def epi(areg, mt):
    out = []
    for t in range(2):
        d = areg + 4 * t
        out.append(f"v_cvt_pk_bf16_f32 v{d}, v{d}, v{d+1}")
        out.append(f"v_cvt_pk_bf16_f32 v{d+1}, v{d+2}, v{d+3}")
        out.append(("lg", f"OW{mt}", f"ds_write_b64 v{V_OW}, {v(d,2)} offset:{(mt&3)*16*PS + 32*t}"))
    return out
def epi_b(areg, mt): return [("lgwait", f"OW{mt}"), ("lg", f"OR{mt}", f"ds_read_b128 {v(areg+4,4)}, v{V_OR} offset:{(mt&3)*16*PS}")]
def epi_c(areg, mt):
    fl = STFL if mt < opt("--plainfrom", 8, int) else opt("--lastfl", "", str)
    return [f"s_add_u32 s{S_T}, s{S_OO}, {16*896*mt}", ("lgwait", f"OR{mt}"), f"buffer_store_dwordx4 {v(areg+4,4)}, v{V_OG}, s[{R_O}:{R_O+3}], s{S_T} offen {fl}"]
A("s_waitcnt lgkmcnt(0)")
stamp(6)
if PRIO: A("s_setprio 0")
AL = opt("--al", -1, int)
if AL >= 0:
    A(".p2align 6, , ")
    for _ in range(AL): A("s_nop 0")
A("s_barrier")
for mt in range(4): emit(aread(f"A0_{mt}", mt, mt, 0))
if not EARLYW: A("s_barrier")
stamp(7)
for it in trread(0): emit(it)
BPOS = opt("--bpos", 3, int)
for k in range(14):
    if k % 2 == 0: stamp(1 + k // 2, True)
    fill = {g_: [] for g_ in range(8)}
    for mt in range(4):
        fill[mt].append(aread(f"A{k+1}_{mt}", 4 * ((k + 1) & 1) + mt, mt, k + 1) if k + 1 < 14 else aread(f"P4_{mt}", mt, 4, mt))
    fill[BPOS].append("s_barrier")
    if k + 1 < 14:
        for i_, it in enumerate(trread(k + 1)): fill[min(BPOS + 1 + i_ // TRP, 7)].append(it)
    if ALT:
        fill[0].append(f"s_setprio {2 if (k & 1) == 0 else 0}" if ALT == 2 else "s_setprio 2")
        if ALT == 1: fill[4].append("s_setprio 0")
    emit(("lgwait", f"B{k}")); emit(("lgwait", f"A{k}_3"))
    for mt in range(4):
        for t in range(2):
            d = ACC1 + 8 * mt + 4 * t
            A(f"v_mfma_f32_16x16x32_bf16 {v(d,4)}, {v(wreg(k,t),4)}, {v(AF+4*(4*(k&1)+mt),4)}, {'0' if k == 0 else v(d,4)}")
            for it in fill[2 * mt + t]: emit(it)
stamp(8, True)
stamp(8)
seq = [(mt, k) for mt in range(4, 8) for k in range(14)]
PFD = opt("--pfd", 4, int)
def areg(mt): return ACC1 + 8 * mt if mt < 6 else 208 + 8 * (mt - 6)
eq = []
def sched(g0, mt):
    e = epi(areg(mt), mt)
    for it in e: eq.append([g0, [it]])
    eq.append(["lag", LAG1, epi_b(areg(mt), mt)])
    c = epi_c(areg(mt), mt)
    eq.append([0, c[:1]]); eq.append(["lag", LAG2, c[1:]])
LAG1 = opt("--lag1", 5, int); LAG2 = opt("--lag2", 5, int); WE = opt("--we", 1, int)
if flag("--pipe"):
    for mt in range(4):
        for it in epi(areg(mt), mt): eq.append([3, [it]])
        if mt >= 1: eq.append([0, epi_b(areg(mt - 1), mt - 1)])
        if mt >= 2:
            c = epi_c(areg(mt - 2), mt - 2); eq.append([0, c[:1]]); eq.append([0, c[1:]])
    c = epi_c(areg(2), 2); eq.append([0, c[:1]]); eq.append([0, epi_b(areg(3), 3)]); eq.append(["lag", 3, c[1:]])
    c = epi_c(areg(3), 3); eq.append([0, c[:1]]); eq.append(["lag", 3, c[1:]])
else:
    for mt in range(4): sched(3, mt)
for mt in range(4, 7): sched(28 * (mt - 3) + 6, mt)
for d_ in range(4, PFD): emit(aread(f"P4_{d_}", d_, 4, d_))
g = 0; lastg = 0
for n, (mt, k) in enumerate(seq):
    if k == 0: stamp(5 + mt, True)
    TG_ = opt("--tog", 0, int)
    if TG_ and n % TG_ == 0:
        if n == 0:
            A("s_setprio 1")
        A(f"s_cmp_ge_u32 s{S_WV}, 4")
        A(f"s_cbranch_scc1 L_tg{n}")
        A(f"s_setprio {2 if (n // TG_) % 2 == 0 else 0}")
        A(f"L_tg{n}:")
    if n % WE == 0:
        m2, k2 = seq[min(n + WE - 1, len(seq) - 1)]
        emit(("lgwait", f"P{m2}_{k2}"))
    for t in range(2):
        d = areg(mt) + 4 * t
        A(f"v_mfma_f32_16x16x32_bf16 {v(d,4)}, {v(wreg(k,t),4)}, {v(AF+4*(n&7),4)}, {'0' if k == 0 else v(d,4)}")
        if t == 0 and n + PFD < len(seq): emit(aread(f"P{seq[n+PFD][0]}_{seq[n+PFD][1]}", (n + PFD) & 7, *seq[n + PFD]))
        if eq and ((eq[0][0] == "lag" and g >= lastg + eq[0][1]) or (eq[0][0] != "lag" and g >= eq[0][0])):
            for it in eq.pop(0)[-1]: emit(it)
            lastg = g
        g += 1
assert not eq, eq
stamp(13, True)
stamp(9)
A("s_nop 7")
for it in epi(areg(7), 7) + epi_b(areg(7), 7) + epi_c(areg(7), 7): emit(it)
stamp(10)
A("s_branch L_fin")

A("L_w7:")
q = hq
def issue(l):
    for it in l: emit(it)
A("s_waitcnt lgkmcnt(0)")
stamp(6)
if not EARLYW: A("s_barrier")
if MIDW: q.vm += ['W0'] * 14 + ['W1'] * 14
else: issue(dma(0)); issue(dma(1))
if not EARLYW: issue(dma(2))
for k in range(14):
    emit(("vmwait", f"W{k}"))
    if k == 0 or not flag("--nobar"): A("s_barrier")
    if (k >= 1 or EARLYW) and k + 2 < 14: issue(dma(k + 2))
stamp(8)
A("s_barrier")
A("L_fin:")
if flag("--dbgskew"):
    A("s_waitcnt vmcnt(0)")
    A("s_memrealtime s[100:101]") if False else None
    A("s_memrealtime s[58:59]")
    A("s_load_dwordx2 s[14:15], s[0:1], 40")
    A("s_getreg_b32 s60, hwreg(HW_REG_XCC_ID)")
    A("s_waitcnt lgkmcnt(0)")
    srd(A, R_WS, S_WS, 256)
    A("s_and_b32 s60, s60, 7")
    A("s_lshl_b32 s60, s60, 3")
    A("v_mov_b32 v12, s62")
    A("v_mov_b32 v13, s58")
    A("v_cmp_eq_u32 vcc, 0, v0")
    A("s_and_saveexec_b64 s[4:5], vcc")
    A(f"buffer_atomic_umax v12, off, s[{R_WS}:{R_WS+3}], s60")
    A(f"buffer_atomic_umax v13, off, s[{R_WS}:{R_WS+3}], s60 offset:4")
    A("s_waitcnt vmcnt(0)")
if STAMPS:
    A("s_waitcnt vmcnt(0)")
    stamp(11)
    A("s_waitcnt lgkmcnt(0)")
    if PROBE is not None:
        A(f"s_cmp_lg_u32 s{S_WV}, {PROBE[0]}")
        A("s_cbranch_scc1 L_nospin")
        if PROBE[1] == "f":
            A(f"s_mov_b32 s{S_T}, {int(PROBE[2:])}")
        else:
            pi, pj = int(PROBE[1], 16), int(PROBE[2], 16)
            A(f"s_sub_u32 s{S_T}, s{S_ST+2*pi}, s{S_ST+2*pj}")
            A(f"s_lshl_b32 s{S_T}, s{S_T}, 1")
            A(f"s_add_u32 s{S_T}, s{S_T}, 1500")
        A(f"s_add_u32 s{S_T}, s{S_T}, s{S_ST}")
        A("L_spin:")
        A(f"s_memrealtime s[{S_ST+30}:{S_ST+31}]")
        A("s_waitcnt lgkmcnt(0)")
        A(f"s_sub_u32 s{S_T2}, s{S_ST+30}, s{S_T}")
        A(f"s_cmp_lt_i32 s{S_T2}, 0")
        A("s_cbranch_scc1 L_spin")
        A("L_nospin:")
    A(f"s_lshl_b32 s{S_T}, s2, 11")
    A(f"s_lshl_b32 s{S_T2}, s{S_WV}, 7")
    A(f"s_add_u32 s{S_T}, s{S_T}, s{S_T2}")
    A("v_mov_b32 v14, 0")
    A("v_cmp_eq_u32 vcc, 0, v0")
    A("s_and_saveexec_b64 s[4:5], vcc")
    for i in range(NSTAMP):
        A(f"v_mov_b32 v12, s{S_ST+2*i}")
        A(f"v_mov_b32 v13, s{S_ST+2*i+1}")
        A(f"buffer_store_dwordx2 v[12:13], v14, s[{R_WS}:{R_WS+3}], s{S_T} offen offset:{8*i}")
        A("s_waitcnt vmcnt(0)")
A("L_end:")
A("s_endpgm")
out = wrap(A.text(), 256, 512, LDS_TOTAL, 256, 100 if STAMPS else 64, 256, notes="""
out = (LayerNorm(x)*g + b) @ w.  One workgroup (8 waves) per CU computes 128 rows x 224 columns.
 1. every wave normalises 2 x 8 rows (fp32 sums; mean and root rounded to bf16 like the reference) into LDS;
 2. wave 3 streams this half of w through a 3-slot LDS ring (LDS-DMA); the other seven waves own 32 columns each,
    pull their MFMA fragments with transposing LDS reads and keep them in registers (rows 0..63 are multiplied meanwhile);
 3. rows 64..127 are multiplied tile by tile while finished tiles leave through write-through stores.
Generated by an own script (straight-line code, counted waits).""")
open(sys.argv[1], "w").write(out)
```

```python
import sys, struct
from asmgen import *
def flag(n): return n in sys.argv
def opt(n, d, t=str): return t(sys.argv[sys.argv.index(n)+1]) if n in sys.argv else d
STAMPS = flag("--stamps"); PROBE = opt("--probe", None)
PF = not flag("--nopf"); TLB = flag("--tlb")
CYC = flag("--cyc"); FINE = flag("--fine")
CPF = opt("--cpf", 512, int)
STFL = opt("--st", "sc1", str); XFL = opt("--xfl", "", str)
if STFL == "plain": STFL = ""
TRP = opt('--trp', 2, int)
ALT = opt('--alt', 0, int)
PFP = opt("--pfp", 3, int)
XG = opt('--xg', 0, int); XS = opt('--xs', 1, int)
MIDW = not flag('--nomid')
ND = opt('--nd', 4, int)
XF = opt("--xfirst", 0, int)
def f2u(f): return struct.unpack("<I", struct.pack("<f", f))[0]
A = Asm()
P = 928; PS = 80
XB = 16384 * 896
RING = 128 * P
SLOT = 14336
SCR = RING + 2 * SLOT
LDS_TOTAL = 163840
OST = RING
assert RING + 3 * SLOT <= LDS_TOTAL
S_X, S_G, S_B, S_W, S_O, S_WS = 4, 6, 8, 10, 12, 14
R_X, R_W, R_O, R_G, R_B, R_WS = 16, 20, 24, 28, 32, 36
S_WV, S_XO, S_WO, S_OO, S_ONE, S_T, S_RB, S_T2, S_MSK, S_PF, S_X2 = 40, 41, 42, 43, 44, 45, 46, 47, 48, 49, 50
S_EPS = 44
S_ST = 66; NSTAMP = 16
def stamp(i, fine=False):
    if STAMPS and (fine == FINE or i == 0):
        A(f"{'s_memtime' if CYC else 's_memrealtime'} s[{S_ST+2*i}:{S_ST+2*i+1}]")
def srd2(d, b):
    A(f"s_mov_b32 s{d}, s{b}"); A(f"s_and_b32 s{d+1}, s{b+1}, 0xffff")
class Q:
    def __init__(s): s.vm = []; s.lg = []
q = Q()
def qwait(l, tag, name, cap):
    if tag not in l: return None
    idx = max(i for i, t in enumerate(l) if t == tag)
    n = len(l) - 1 - idx
    del l[:idx + 1]
    return f"s_waitcnt {name}({min(n,cap)})"
def emit(item):
    if isinstance(item, str): A(item); return
    if item[0] == "vm": q.vm.append(item[1]); A(item[2])
    elif item[0] == "lg": q.lg.append(item[1]); A(item[2])
    else:
        w = qwait(q.vm, item[1], "vmcnt", 63) if item[0] == "vmwait" else qwait(q.lg, item[1], "lgkmcnt", 15)
        if w: A(w)

V_XOFF, V_L16, V_LW, V_SR, V_T0, V_T1, V_AR, V_AR2, V_OW = 1, 2, 3, 4, 5, 6, 7, 8, 9
V_MSK, V_ONE, V_OR, V_OG = 250, 251, 252, 253
T = 10
X1, X2, G, Bv, F, GRAW = 16, 44, 72, 128, 184, 240
SW = opt('--sw', 3, int)
EARLYW = not flag('--latew')
A("s_cmp_ge_u32 s2, 256")
A("s_cbranch_scc1 L_end")
stamp(0)
if flag("--dbgskew"): A("s_memrealtime s[62:63]")
A("s_load_dwordx8 s[4:11], s[0:1], 0")
A("s_load_dwordx2 s[12:13], s[0:1], 32")
if STAMPS: A("s_load_dwordx2 s[14:15], s[0:1], 48")
if CPF:
    A("s_getpc_b64 s[54:55]")
    A("L_pc:")
    if flag("--cpfb"):
        A("s_lshr_b32 s3, s2, 3")
        A(f"s_mul_i32 s3, s3, {CPF}")
        A("v_lshl_add_u32 v2, v0, 2, s3")
        A(f"v_cmp_gt_u32 vcc, {CPF//4}, v0")
        A("s_and_saveexec_b64 s[56:57], vcc")
        A("v_cmp_gt_u32 vcc, L_end-L_pc, v2")
        A("s_and_b64 exec, exec, vcc")
        A("s_cbranch_execz L_nocpf")
        A("global_load_dword v255, v2, s[54:55]")
        A("L_nocpf:")
        A("s_mov_b64 exec, s[56:57]")
    else:
        A("s_and_b32 s3, s2, 0xf8")
        A("s_lshl_b32 s3, s3, 6")
        A("v_and_b32 v2, 0x1c0, v0")
        A("v_add_u32 v2, s3, v2")
        A("v_min_u32 v2, L_end-L_pc, v2")
        A("v_mov_b32 v3, s55")
        A("v_add_co_u32 v2, vcc, s54, v2")
        A("s_nop 1")
        A("v_addc_co_u32 v3, vcc, 0, v3, vcc")
        A("global_load_dword v255, v[2:3], off")
A("v_lshrrev_b32 v1, 6, v0")
A("v_and_b32 v0, 63, v0")
A(f"v_readfirstlane_b32 s{S_WV}, v1")
A(f"v_lshrrev_b32 v{T}, 3, v0")
A(f"v_and_b32 v{T+1}, 7, v0")
A(f"v_lshlrev_b32 v{T+1}, 4, v{T+1}")
A(f"v_mul_u32_u24 v{V_XOFF}, 896, v{T}")
A(f"v_add_u32 v{V_XOFF}, v{V_XOFF}, v{T+1}")
A(f"v_lshlrev_b32 v{V_L16}, 4, v0")
A(f"s_lshr_b32 s{S_T}, s2, 4")
A(f"s_lshl_b32 s{S_T}, s{S_T}, 3")
A(f"s_and_b32 s{S_T2}, s2, 7")
A(f"s_add_u32 s{S_T}, s{S_T}, s{S_T2}")
A(f"s_mul_i32 s{S_OO}, s{S_T}, {128*896}")
A(f"s_mul_i32 s{S_T}, s{S_WV}, {8*896}")
A(f"s_add_u32 s{S_XO}, s{S_OO}, s{S_T}")
A(f"s_add_u32 s{S_X2}, s{S_XO}, {64*896}")
for r, n in ((R_G, 896), (R_B, 896), (R_X, XB), (R_W, 448 * 896)):
    A(f"s_mov_b32 s{r+2}, {n}"); A(f"s_mov_b32 s{r+3}, 0x20000")
A(f"s_cmp_lg_u32 s{S_WV}, 0")
A("s_waitcnt lgkmcnt(0)")
A("s_cbranch_scc1 L_nogb")
srd2(R_G, S_G); srd2(R_B, S_B)
A(f"buffer_load_dwordx4 {v(GRAW,4)}, v{V_L16}, s[{R_G}:{R_G+3}], 0 offen")
A(f"buffer_load_dwordx4 {v(GRAW+4,4)}, v{V_L16}, s[{R_B}:{R_B+3}], 0 offen")
A("L_nogb:")
srd2(R_X, S_X)
for i in range(7):
    emit(("vm", f"x1_{i}", f"buffer_load_dwordx4 {v(X1+4*i,4)}, v{V_XOFF}, s[{R_X}:{R_X+3}], s{S_XO} offen offset:{128*i} {XFL}"))
def x2load(i): return ("vm", f"x2_{i}", f"buffer_load_dwordx4 {v(X2+4*i,4)}, v{V_XOFF}, s[{R_X}:{R_X+3}], s{S_X2} offen offset:{128*i} {XFL}")
stamp(1)
PRIO = opt("--prio", 1, int)
if PRIO:
    A("s_setprio 1")
    A(f"s_cmp_ge_u32 s{S_WV}, 4")
    A("s_cbranch_scc1 L_p0")
    A("s_setprio 2")
    A("L_p0:")
srd2(R_W, S_W)
srd(A, R_O, S_O, XB)
if STAMPS: srd(A, R_WS, S_WS, 1 << 22)
A(f"s_bfe_u32 s{S_WO}, s2, 0x10003")
A(f"s_mul_i32 s{S_WO}, s{S_WO}, 448")
A(f"s_add_u32 s{S_OO}, s{S_OO}, s{S_WO}")
A(f"s_and_b32 s{S_PF}, s2, 0xf8")
A(f"s_add_u32 s{S_PF}, s{S_PF}, s{S_WV}")
A(f"s_mul_i32 s{S_PF}, s{S_PF}, 1568")
A(f"v_mul_u32_u24 v{V_LW}, {P}, v{T}")
A(f"v_add_u32 v{V_LW}, v{V_LW}, v{T+1}")
A(f"s_mul_i32 s{S_T}, s{S_WV}, {8*P}")
A(f"v_add_u32 v{V_LW}, s{S_T}, v{V_LW}")
A(f"v_lshlrev_b32 v{V_SR}, 1, v{T+1}")
A(f"v_add_u32 v{V_SR}, {SCR}, v{V_SR}")
A(f"v_and_b32 v{T}, 15, v0")
A(f"v_lshrrev_b32 v{T+1}, 4, v0")
A(f"v_mul_u32_u24 v{V_AR}, {P}, v{T}")
A(f"v_lshl_add_u32 v{V_AR}, v{T+1}, 4, v{V_AR}")
A(f"v_add_u32 v{V_AR2}, {64*P}, v{V_AR}")
A(f"s_cmp_gt_u32 s{S_WV}, {SW}")
A(f"s_subb_u32 s{S_T}, s{S_WV}, 0")
A(f"s_lshl_b32 s{S_T}, s{S_T}, 6")
A(f"s_add_u32 s{S_T}, s{S_T}, {RING}")
A(f"s_sub_u32 s{S_T2}, s{S_T}, {RING}")
A(f"s_add_u32 s{S_OO}, s{S_OO}, s{S_T2}")
A(f"s_mul_i32 s{S_RB}, s{S_WV}, {4*16*PS}")
A(f"s_add_u32 s{S_RB}, s{S_RB}, {OST}")
A(f"v_mul_u32_u24 v{V_OW}, {PS}, v{T}")
A(f"v_lshl_add_u32 v{V_OW}, v{T+1}, 3, v{V_OW}")
A(f"v_add_u32 v{V_OW}, s{S_RB}, v{V_OW}")
A(f"v_lshrrev_b32 v{T+2}, 2, v0")
A(f"v_and_b32 v{T+3}, 3, v0")
A(f"v_mul_u32_u24 v{V_OR}, {PS}, v{T+2}")
A(f"v_lshl_add_u32 v{V_OR}, v{T+3}, 4, v{V_OR}")
A(f"v_add_u32 v{V_OR}, s{S_RB}, v{V_OR}")
A(f"v_mul_u32_u24 v{V_OG}, 896, v{T+2}")
A(f"v_lshl_add_u32 v{V_OG}, v{T+3}, 4, v{V_OG}")
A(f"v_lshrrev_b32 v{T+2}, 2, v0")
A(f"v_mul_u32_u24 v{V_T0}, 448, v{T+2}")
A(f"v_and_b32 v{T+2}, 3, v0")
A(f"v_lshl_add_u32 v{V_T0}, v{T+2}, 3, v{V_T0}")
A(f"v_add_u32 v{V_T0}, s{S_T}, v{V_T0}")
A(f"v_and_b32 v{T+1}, 1, v{T+1}")
A(f"v_lshlrev_b32 v{T+1}, 5, v{T+1}")
A(f"v_sub_u32 v{V_T1}, v{V_T0}, v{T+1}")
A(f"v_add_u32 v{V_T1}, 32, v{V_T1}")
A(f"v_add_u32 v{V_T0}, v{V_T0}, v{T+1}")
A(f"s_cmp_lg_u32 s{S_WV}, {SW}")
A("s_cbranch_scc1 L_nosw")
VWL = [V_T0, V_T1, V_AR, V_AR2, V_OW, V_OR, V_OG]
A(f"s_movk_i32 s{S_T}, {896-448}")
A(f"v_mul_u32_u24 v{T+2}, 2341, v0")
for i in range(7):
    if i: A(f"v_add_u32 v{T}, {64*i*2341}, v{T+2}")
    A(f"v_lshrrev_b32 v{T}, 16, v{T if i else T+2}")
    A(f"v_add_u32 v{T+1}, {1024*i}, v{V_L16}")
    A(f"v_mad_u32_u24 v{T+3}, v{T}, s{S_T}, v{T+1}")
    A(f"v_lshrrev_b32 v{T+1}, 2, v{T}")
    A(f"v_mul_u32_u24 v{T+1}, {4*896}, v{T+1}")
    A(f"v_and_b32 v{T}, 4, v{T}")
    A(f"v_lshlrev_b32 v{T}, 3, v{T}")
    A(f"v_xor_b32 v{T}, v{T}, v{T+3}")
    A(f"v_add_u32 v{VWL[i]}, v{T}, v{T+1}")
    if i & 3: A(f"v_subrev_u32 v{VWL[i]}, {1024*(i&3)}, v{VWL[i]}")
A("L_nosw:")
A(f"v_mov_b32 v{V_MSK}, 0xffff0000")
A(f"v_mov_b32 v{V_ONE}, 0x3f803f80")
A(f"s_mov_b32 s{S_EPS}, {f2u(1e-5):#x}")
A(f"s_cmp_lg_u32 s{S_WV}, 0")
A("s_cbranch_scc1 L_nogb2")
A(f"v_lshlrev_b32 v{T}, 5, v0")
A(f"v_add_u32 v{T}, {SCR}, v{T}")
A(f"s_waitcnt vmcnt(7)")
U = Bv + 40
for j in range(8):
    A(f"v_lshlrev_b32 v{U+2*j}, 16, v{GRAW+j}")
    A(f"v_and_b32 v{U+2*j+1}, v{V_MSK}, v{GRAW+j}")
A(f"ds_write_b128 v{T}, {v(U,4)}")
A(f"ds_write_b128 v{T}, {v(U+4,4)} offset:16")
A(f"ds_write_b128 v{T}, {v(U+8,4)} offset:2048")
A(f"ds_write_b128 v{T}, {v(U+12,4)} offset:2064")
A("s_waitcnt lgkmcnt(0)")
A("L_nogb2:")
for i in range(XF): emit(x2load(i))
RS = T + 4
def layernorm(X, tag, first, yoff, hook):
    SUM, SQ = T, T + 1
    GP = opt("--gpos", 0, int)
    for i in range(7):
        if first and GP and flag("--gsplit") and i in (0, GP):
            A(f"s_cmp_{'lt' if i == 0 else 'ge'}_u32 s{S_WV}, 4")
            A(f"s_cbranch_scc1 L_g{i}")
            A("s_barrier")
            A(f"L_g{i}:")
            if i == GP: stamp(2)
        elif first and i == GP:
            A("s_barrier")
            stamp(2)
            for c in range(XF, XF + XG): emit(x2load(c))
        if first and i >= GP:
            for c in range(7):
                if (GP + c * (7 - GP) // 7 if not flag("--gball") else GP) == i:
                    A(f"ds_read_b128 {v(G+8*c,4)}, v{V_SR} offset:{256*c}")
                    A(f"ds_read_b128 {v(G+8*c+4,4)}, v{V_SR} offset:{256*c+16}")
                    A(f"ds_read_b128 {v(Bv+8*c,4)}, v{V_SR} offset:{2048+256*c}")
                    A(f"ds_read_b128 {v(Bv+8*c+4,4)}, v{V_SR} offset:{2048+256*c+16}")
        emit(("vmwait", f"{tag}_{i}"))
        hook(i)
        for j in range(4):
            r = X + 4 * i + j
            if i == 0 and j < 2:
                A(f"v_dot2_f32_bf16 v{SUM + 2*(j&1)}, v{V_ONE}, v{r}, 0")
                A(f"v_dot2_f32_bf16 v{SQ + 2*(j&1)}, v{r}, v{r}, 0")
                continue
            A(f"v_dot2c_f32_bf16 v{SUM + 2*(j&1)}, v{V_ONE}, v{r}")
            A(f"v_dot2c_f32_bf16 v{SQ + 2*(j&1)}, v{r}, v{r}")
        if i < ND:
            for j in range(4):
                A(f"v_lshlrev_b32 v{F+8*i+2*j}, 16, v{X+4*i+j}")
                A(f"v_and_b32 v{F+8*i+2*j+1}, v{V_MSK}, v{X+4*i+j}")
    up = []
    for i in range(ND, 7):
        for j in range(4):
            up.append(f"v_lshlrev_b32 v{F+8*i+2*j}, 16, v{X+4*i+j}")
            up.append(f"v_and_b32 v{F+8*i+2*j+1}, v{V_MSK}, v{X+4*i+j}")
    MEAN = T + 2
    chain = [3, f"v_add_f32 v{SUM}, v{SUM}, v{SUM+2}", f"v_add_f32 v{SQ}, v{SQ}, v{SQ+2}"]
    for dpp in ("quad_perm:[1,0,3,2]", "quad_perm:[2,3,0,1]", "row_half_mirror"):
        chain += [1, f"v_add_f32_dpp v{SUM}, v{SUM}, v{SUM} {dpp} row_mask:0xf bank_mask:0xf",
                  f"v_add_f32_dpp v{SQ}, v{SQ}, v{SQ} {dpp} row_mask:0xf bank_mask:0xf"]
    chain += [f"v_mul_f32 v{MEAN}, {f2u(1/448):#x}, v{SUM}", 0]
    if flag("--exactstats"):
        chain += [f"v_fma_f32 v{SUM}, -v{MEAN}, v{MEAN}, s{S_EPS}", 0, f"v_fmac_f32 v{SUM}, {f2u(1/448):#x}, v{SQ}", 0,
                  f"v_max_f32 v{SQ}, s{S_EPS}, v{SUM}", 0, f"v_rsq_f32 v{RS}, v{SQ}", 1]
    else:
        chain += [f"v_mul_f32 v{SUM}, -v{MEAN}, v{MEAN}", 0, f"v_fmac_f32 v{SUM}, {f2u(1/448):#x}, v{SQ}", 0,
                  f"v_max_f32 v{SQ}, 0, v{SUM}", 0, f"v_cvt_pk_bf16_f32 v{SUM}, v{MEAN}, v{SQ}", 0,
                  f"v_and_b32 v{SQ}, v{V_MSK}, v{SUM}", f"v_lshlrev_b32 v{MEAN}, 16, v{SUM}", f"v_add_f32 v{SQ}, s{S_EPS}, v{SQ}", 0,
                  f"v_cvt_pk_bf16_f32 v{SQ}, v{SQ}, v{SQ}", 0, f"v_and_b32 v{SQ}, v{V_MSK}, v{SQ}", 0, f"v_sqrt_f32 v{SQ}, v{SQ}", 1, 0, 0,
                  f"v_cvt_pk_bf16_f32 v{SQ}, v{SQ}, v{SQ}", 0, f"v_and_b32 v{SQ}, v{V_MSK}, v{SQ}", 0, f"v_rcp_f32 v{RS}, v{SQ}", 1]
    must = sum(c for c in chain if isinstance(c, int))
    for c in chain:
        if isinstance(c, str): A(c)
        elif c:
            for _ in range(c): A(up.pop(0))
            must -= c
        elif len(up) > must: A(up.pop(0))
    for l_ in up: A(l_)
    A(f"v_mul_f32 v{RS+1}, -v{MEAN}, v{RS}")
    stamp(3 if first else 5)
    if first: A("s_waitcnt lgkmcnt(0)")
    if not first and MIDW:
        A(f"s_cmp_lg_u32 s{S_WV}, {SW}")
        A("s_cbranch_scc1 L_nomid")
        for it in dma(0) + dma(1): A(it if isinstance(it, str) else it[2])
        if flag('--swhi'): A("s_setprio 0")
        A("L_nomid:")
    def s1(i): return [f"v_pk_fma_f32 {v(F+8*i+2*j,2)}, {v(F+8*i+2*j,2)}, {v(RS,2)}, {v(RS,2)} op_sel:[0,0,1] op_sel_hi:[1,0,1]" for j in range(4)]
    def s2(i): return [f"v_pk_fma_f32 {v(F+8*i+2*j,2)}, {v(F+8*i+2*j,2)}, {v(G+8*i+2*j,2)}, {v(Bv+8*i+2*j,2)}" for j in range(4)]
    def s3(i): return [f"v_cvt_pk_bf16_f32 v{X+4*i+j}, v{F+8*i+2*j}, v{F+8*i+2*j+1}" for j in range(4)] + \
                      [f"ds_write_b128 v{V_LW}, {v(X+4*i,4)} offset:{yoff + 128*i}"]
    for step in range(9):
        if step < 7:
            for l_ in s1(step): A(l_)
        if 0 <= step - 1 < 7:
            for l_ in s2(step - 1): A(l_)
        if 0 <= step - 2 < 7:
            for l_ in s3(step - 2): A(l_)
def dma(k):
    out = []
    for hf in range(2):
        for i in range(7):
            if (i & 3) == 0:
                out.append(f"s_add_u32 m0, {RING + SLOT*(k%3) + 7168*hf + 1024*i}, 0")
                out.append(f"s_add_u32 s{S_T}, s{S_WO}, {(32*k + 4*hf)*896}")
            out.append(("vm", f"W{k}", f"buffer_load_dwordx4 v{VWL[i]}, s[{R_W}:{R_W+3}], s{S_T} offen offset:{1024*(i&3)} lds"))
    return out
def pfissue():
    emit(("vm", "pf", f"buffer_load_dwordx4 {v(240,4)}, v{V_L16}, s[{R_W}:{R_W+3}], s{S_PF} offen"))
    A("s_mov_b32 exec_hi, 3")
    emit(("vm", "pf", f"buffer_load_dwordx4 {v(244,4)}, v{V_L16}, s[{R_W}:{R_W+3}], s{S_PF} offen offset:1024"))
    A("s_mov_b32 exec_hi, -1")
    if TLB: emit(("vm", "pf", f"buffer_load_dword v248, off, s[{R_O}:{R_O+3}], s{S_OO}"))
def hook1(i):
    for c in range(XS):
        if XS * i + c + XF + XG < 7: emit(x2load(XS * i + c + XF + XG))
    if PF and PFP < 0 and i == 6: pfissue()
def hook2(i):
    if PF and i == PFP: pfissue()
layernorm(X1, "x1", True, 0, hook1)
stamp(4)
if PRIO:
    A(f"s_cmp_ge_u32 s{S_WV}, {3 if flag('--swhi') else 4}")
    A("s_cbranch_scc1 L_p1")
    A("s_setprio 0")
    A("L_p1:")
layernorm(X2, "x2", False, 64 * P, hook2)
A(f"s_cmp_eq_u32 s{S_WV}, {SW}")
A("s_cbranch_scc1 L_w7")

hq = Q(); hq.vm = list(q.vm); q = Q()
WR = 16; ACC1 = 128; ACC2 = 160; AF = 176
def wreg(k, t): return WR + 8 * k + 4 * t
def trread(k):
    return [("lg", f"B{k}", f"ds_read_b64_tr_b16 {v(wreg(k,t)+2*hf,2)}, v{V_T1 if t else V_T0} offset:{SLOT*(k%3) + 16*448*hf}")
            for t in range(2) for hf in range(2)]
def aread(tag, buf, mt, k):
    return ("lg", tag, f"ds_read_b128 {v(AF+4*buf,4)}, v{V_AR if mt < 4 else V_AR2} offset:{(mt&3)*16*P + 64*k}")
def epi(areg, mt):
    out = []
    for t in range(2):
        d = areg + 4 * t
        out.append(f"v_cvt_pk_bf16_f32 v{d}, v{d}, v{d+1}")
        out.append(f"v_cvt_pk_bf16_f32 v{d+1}, v{d+2}, v{d+3}")
        out.append(("lg", f"OW{mt}", f"ds_write_b64 v{V_OW}, {v(d,2)} offset:{(mt&3)*16*PS + 32*t}"))
    return out
def epi_b(areg, mt): return [("lgwait", f"OW{mt}"), ("lg", f"OR{mt}", f"ds_read_b128 {v(areg+4,4)}, v{V_OR} offset:{(mt&3)*16*PS}")]
def epi_c(areg, mt):
    fl = STFL if mt < opt("--plainfrom", 8, int) else opt("--lastfl", "", str)
    return [f"s_add_u32 s{S_T}, s{S_OO}, {16*896*mt}", ("lgwait", f"OR{mt}"), f"buffer_store_dwordx4 {v(areg+4,4)}, v{V_OG}, s[{R_O}:{R_O+3}], s{S_T} offen {fl}"]
A("s_waitcnt lgkmcnt(0)")
stamp(6)
if PRIO: A("s_setprio 0")
AL = opt("--al", -1, int)
if AL >= 0:
    A(".p2align 6, , ")
    for _ in range(AL): A("s_nop 0")
A("s_barrier")
for mt in range(4): emit(aread(f"A0_{mt}", mt, mt, 0))
if not EARLYW: A("s_barrier")
stamp(7)
for it in trread(0): emit(it)
BPOS = opt("--bpos", 3, int)
for k in range(14):
    if k % 2 == 0: stamp(1 + k // 2, True)
    fill = {g_: [] for g_ in range(8)}
    for mt in range(4):
        fill[mt].append(aread(f"A{k+1}_{mt}", 4 * ((k + 1) & 1) + mt, mt, k + 1) if k + 1 < 14 else aread(f"P4_{mt}", mt, 4, mt))
    fill[BPOS].append("s_barrier")
    if k + 1 < 14:
        for i_, it in enumerate(trread(k + 1)): fill[min(BPOS + 1 + i_ // TRP, 7)].append(it)
    if ALT:
        fill[0].append(f"s_setprio {2 if (k & 1) == 0 else 0}" if ALT == 2 else "s_setprio 2")
        if ALT == 1: fill[4].append("s_setprio 0")
    emit(("lgwait", f"B{k}")); emit(("lgwait", f"A{k}_3"))
    for mt in range(4):
        for t in range(2):
            d = ACC1 + 8 * mt + 4 * t
            A(f"v_mfma_f32_16x16x32_bf16 {v(d,4)}, {v(wreg(k,t),4)}, {v(AF+4*(4*(k&1)+mt),4)}, {'0' if k == 0 else v(d,4)}")
            for it in fill[2 * mt + t]: emit(it)
stamp(8, True)
stamp(8)
seq = [(mt, k) for mt in range(4, 8) for k in range(14)]
PFD = opt("--pfd", 4, int)
def areg(mt): return ACC1 + 8 * mt if mt < 6 else 208 + 8 * (mt - 6)
eq = []
def sched(g0, mt):
    e = epi(areg(mt), mt)
    for it in e: eq.append([g0, [it]])
    eq.append(["lag", LAG1, epi_b(areg(mt), mt)])
    c = epi_c(areg(mt), mt)
    eq.append([0, c[:1]]); eq.append(["lag", LAG2, c[1:]])
LAG1 = opt("--lag1", 5, int); LAG2 = opt("--lag2", 5, int); WE = opt("--we", 1, int)
if flag("--pipe"):
    for mt in range(4):
        for it in epi(areg(mt), mt): eq.append([3, [it]])
        if mt >= 1: eq.append([0, epi_b(areg(mt - 1), mt - 1)])
        if mt >= 2:
            c = epi_c(areg(mt - 2), mt - 2); eq.append([0, c[:1]]); eq.append([0, c[1:]])
    c = epi_c(areg(2), 2); eq.append([0, c[:1]]); eq.append([0, epi_b(areg(3), 3)]); eq.append(["lag", 3, c[1:]])
    c = epi_c(areg(3), 3); eq.append([0, c[:1]]); eq.append(["lag", 3, c[1:]])
else:
    for mt in range(4): sched(3, mt)
for mt in range(4, 7): sched(28 * (mt - 3) + 6, mt)
for d_ in range(4, PFD): emit(aread(f"P4_{d_}", d_, 4, d_))
g = 0; lastg = 0
for n, (mt, k) in enumerate(seq):
    if k == 0: stamp(5 + mt, True)
    TG_ = opt("--tog", 0, int)
    if TG_ and n % TG_ == 0:
        if n == 0:
            A("s_setprio 1")
        A(f"s_cmp_ge_u32 s{S_WV}, 4")
        A(f"s_cbranch_scc1 L_tg{n}")
        A(f"s_setprio {2 if (n // TG_) % 2 == 0 else 0}")
        A(f"L_tg{n}:")
    if n % WE == 0:
        m2, k2 = seq[min(n + WE - 1, len(seq) - 1)]
        emit(("lgwait", f"P{m2}_{k2}"))
    for t in range(2):
        d = areg(mt) + 4 * t
        A(f"v_mfma_f32_16x16x32_bf16 {v(d,4)}, {v(wreg(k,t),4)}, {v(AF+4*(n&7),4)}, {'0' if k == 0 else v(d,4)}")
        if t == 0 and n + PFD < len(seq): emit(aread(f"P{seq[n+PFD][0]}_{seq[n+PFD][1]}", (n + PFD) & 7, *seq[n + PFD]))
        if eq and ((eq[0][0] == "lag" and g >= lastg + eq[0][1]) or (eq[0][0] != "lag" and g >= eq[0][0])):
            for it in eq.pop(0)[-1]: emit(it)
            lastg = g
        g += 1
assert not eq, eq
stamp(13, True)
stamp(9)
A("s_nop 7")
for it in epi(areg(7), 7) + epi_b(areg(7), 7) + epi_c(areg(7), 7): emit(it)
stamp(10)
A("s_branch L_fin")

A("L_w7:")
q = hq
def issue(l):
    for it in l: emit(it)
A("s_waitcnt lgkmcnt(0)")
stamp(6)
if not EARLYW: A("s_barrier")
if MIDW: q.vm += ['W0'] * 14 + ['W1'] * 14
else: issue(dma(0)); issue(dma(1))
if not EARLYW: issue(dma(2))
for k in range(14):
    emit(("vmwait", f"W{k}"))
    if k == 0 or not flag("--nobar"): A("s_barrier")
    if (k >= 1 or EARLYW) and k + 2 < 14: issue(dma(k + 2))
stamp(8)
A("s_barrier")
A("L_fin:")
if flag("--dbgskew"):
    A("s_waitcnt vmcnt(0)")
    A("s_memrealtime s[100:101]") if False else None
    A("s_memrealtime s[58:59]")
    A("s_load_dwordx2 s[14:15], s[0:1], 40")
    A("s_getreg_b32 s60, hwreg(HW_REG_XCC_ID)")
    A("s_waitcnt lgkmcnt(0)")
    srd(A, R_WS, S_WS, 256)
    A("s_and_b32 s60, s60, 7")
    A("s_lshl_b32 s60, s60, 3")
    A("v_mov_b32 v12, s62")
    A("v_mov_b32 v13, s58")
    A("v_cmp_eq_u32 vcc, 0, v0")
    A("s_and_saveexec_b64 s[4:5], vcc")
    A(f"buffer_atomic_umax v12, off, s[{R_WS}:{R_WS+3}], s60")
    A(f"buffer_atomic_umax v13, off, s[{R_WS}:{R_WS+3}], s60 offset:4")
    A("s_waitcnt vmcnt(0)")
if STAMPS:
    A("s_waitcnt vmcnt(0)")
    stamp(11)
    A("s_waitcnt lgkmcnt(0)")
    if PROBE is not None:
        A(f"s_cmp_lg_u32 s{S_WV}, {PROBE[0]}")
        A("s_cbranch_scc1 L_nospin")
        if PROBE[1] == "f":
            A(f"s_mov_b32 s{S_T}, {int(PROBE[2:])}")
        else:
            pi, pj = int(PROBE[1], 16), int(PROBE[2], 16)
            A(f"s_sub_u32 s{S_T}, s{S_ST+2*pi}, s{S_ST+2*pj}")
            A(f"s_lshl_b32 s{S_T}, s{S_T}, 1")
            A(f"s_add_u32 s{S_T}, s{S_T}, 1500")
        A(f"s_add_u32 s{S_T}, s{S_T}, s{S_ST}")
        A("L_spin:")
        A(f"s_memrealtime s[{S_ST+30}:{S_ST+31}]")
        A("s_waitcnt lgkmcnt(0)")
        A(f"s_sub_u32 s{S_T2}, s{S_ST+30}, s{S_T}")
        A(f"s_cmp_lt_i32 s{S_T2}, 0")
        A("s_cbranch_scc1 L_spin")
        A("L_nospin:")
    A(f"s_lshl_b32 s{S_T}, s2, 11")
    A(f"s_lshl_b32 s{S_T2}, s{S_WV}, 7")
    A(f"s_add_u32 s{S_T}, s{S_T}, s{S_T2}")
    A("v_mov_b32 v14, 0")
    A("v_cmp_eq_u32 vcc, 0, v0")
    A("s_and_saveexec_b64 s[4:5], vcc")
    for i in range(NSTAMP):
        A(f"v_mov_b32 v12, s{S_ST+2*i}")
        A(f"v_mov_b32 v13, s{S_ST+2*i+1}")
        A(f"buffer_store_dwordx2 v[12:13], v14, s[{R_WS}:{R_WS+3}], s{S_T} offen offset:{8*i}")
        A("s_waitcnt vmcnt(0)")
A("L_end:")
A("s_endpgm")
out = wrap(A.text(), 256, 512, LDS_TOTAL, 256, 100 if STAMPS else 64, 256, notes="""
out = (LayerNorm(x)*g + b) @ w.  One workgroup (8 waves) per CU computes 128 rows x 224 columns.
 1. every wave normalises 2 x 8 rows (fp32 sums; mean and root rounded to bf16 like the reference) into LDS;
 2. wave 3 streams this half of w through a 3-slot LDS ring (LDS-DMA); the other seven waves own 32 columns each,
    pull their MFMA fragments with transposing LDS reads and keep them in registers (rows 0..63 are multiplied meanwhile);
 3. rows 64..127 are multiplied tile by tile while finished tiles leave through write-through stores.
Generated by an own script (straight-line code, counted waits).""")
open(sys.argv[1], "w").write(out)
```

```python
import sys, struct
from asmgen import *
def flag(n): return n in sys.argv
def opt(n, d, t=str): return t(sys.argv[sys.argv.index(n)+1]) if n in sys.argv else d
STAMPS = flag("--stamps"); PROBE = opt("--probe", None)
PF = not flag("--nopf"); TLB = flag("--tlb")
CYC = flag("--cyc"); FINE = flag("--fine")
CPF = opt("--cpf", 512, int)
STFL = opt("--st", "sc1", str); XFL = opt("--xfl", "", str)
if STFL == "plain": STFL = ""
TRP = opt('--trp', 2, int)
ALT = opt('--alt', 0, int)
PFP = opt("--pfp", 3, int)
XG = opt('--xg', 0, int); XS = opt('--xs', 1, int)
MIDW = not flag('--nomid')
ND = opt('--nd', 4, int)
XF = opt("--xfirst", 0, int)
def f2u(f): return struct.unpack("<I", struct.pack("<f", f))[0]
A = Asm()
P = 928; PS = 80
XB = 16384 * 896
RING = 128 * P
SLOT = 14336
SCR = RING + 2 * SLOT
LDS_TOTAL = 163840
OST = RING
assert RING + 3 * SLOT <= LDS_TOTAL
S_X, S_G, S_B, S_W, S_O, S_WS = 4, 6, 8, 10, 12, 14
R_X, R_W, R_O, R_G, R_B, R_WS = 16, 20, 24, 28, 32, 36
S_WV, S_XO, S_WO, S_OO, S_ONE, S_T, S_RB, S_T2, S_MSK, S_PF, S_X2 = 40, 41, 42, 43, 44, 45, 46, 47, 48, 49, 50
S_EPS = 44
S_ST = 66; NSTAMP = 16
def stamp(i, fine=False):
    if STAMPS and (fine == FINE or i == 0):
        A(f"{'s_memtime' if CYC else 's_memrealtime'} s[{S_ST+2*i}:{S_ST+2*i+1}]")
def srd2(d, b):
    A(f"s_mov_b32 s{d}, s{b}"); A(f"s_and_b32 s{d+1}, s{b+1}, 0xffff")
class Q:
    def __init__(s): s.vm = []; s.lg = []
q = Q()
def qwait(l, tag, name, cap):
    if tag not in l: return None
    idx = max(i for i, t in enumerate(l) if t == tag)
    n = len(l) - 1 - idx
    del l[:idx + 1]
    return f"s_waitcnt {name}({min(n,cap)})"
def emit(item):
    if isinstance(item, str): A(item); return
    if item[0] == "vm": q.vm.append(item[1]); A(item[2])
    elif item[0] == "lg": q.lg.append(item[1]); A(item[2])
    else:
        w = qwait(q.vm, item[1], "vmcnt", 63) if item[0] == "vmwait" else qwait(q.lg, item[1], "lgkmcnt", 15)
        if w: A(w)

V_XOFF, V_L16, V_LW, V_SR, V_T0, V_T1, V_AR, V_AR2, V_OW = 1, 2, 3, 4, 5, 6, 7, 8, 9
V_MSK, V_ONE, V_OR, V_OG = 250, 251, 252, 253
T = 10
X1, X2, G, Bv, F, GRAW = 16, 44, 72, 128, 184, 240
SW = opt('--sw', 3, int)
EARLYW = not flag('--latew')
A("s_cmp_ge_u32 s2, 256")
A("s_cbranch_scc1 L_end")
stamp(0)
if flag("--dbgskew"): A("s_memrealtime s[62:63]")
A("s_load_dwordx8 s[4:11], s[0:1], 0")
A("s_load_dwordx2 s[12:13], s[0:1], 32")
if STAMPS: A("s_load_dwordx2 s[14:15], s[0:1], 48")
if CPF:
    A("s_getpc_b64 s[54:55]")
    A("L_pc:")
    if flag("--cpfb"):
        A("s_lshr_b32 s3, s2, 3")
        A(f"s_mul_i32 s3, s3, {CPF}")
        A("v_lshl_add_u32 v2, v0, 2, s3")
        A(f"v_cmp_gt_u32 vcc, {CPF//4}, v0")
        A("s_and_saveexec_b64 s[56:57], vcc")
        A("v_cmp_gt_u32 vcc, L_end-L_pc, v2")
        A("s_and_b64 exec, exec, vcc")
        A("s_cbranch_execz L_nocpf")
        A("global_load_dword v255, v2, s[54:55]")
        A("L_nocpf:")
        A("s_mov_b64 exec, s[56:57]")
    else:
        A("s_and_b32 s3, s2, 0xf8")
        A("s_lshl_b32 s3, s3, 6")
        A("v_and_b32 v2, 0x1c0, v0")
        A("v_add_u32 v2, s3, v2")
        A("v_min_u32 v2, L_end-L_pc, v2")
        A("v_mov_b32 v3, s55")
        A("v_add_co_u32 v2, vcc, s54, v2")
        A("s_nop 1")
        A("v_addc_co_u32 v3, vcc, 0, v3, vcc")
        A("global_load_dword v255, v[2:3], off")
A("v_lshrrev_b32 v1, 6, v0")
A("v_and_b32 v0, 63, v0")
A(f"v_readfirstlane_b32 s{S_WV}, v1")
A(f"v_lshrrev_b32 v{T}, 3, v0")
A(f"v_and_b32 v{T+1}, 7, v0")
A(f"v_lshlrev_b32 v{T+1}, 4, v{T+1}")
A(f"v_mul_u32_u24 v{V_XOFF}, 896, v{T}")
A(f"v_add_u32 v{V_XOFF}, v{V_XOFF}, v{T+1}")
A(f"v_lshlrev_b32 v{V_L16}, 4, v0")
A(f"s_lshr_b32 s{S_T}, s2, 4")
A(f"s_lshl_b32 s{S_T}, s{S_T}, 3")
A(f"s_and_b32 s{S_T2}, s2, 7")
A(f"s_add_u32 s{S_T}, s{S_T}, s{S_T2}")
A(f"s_mul_i32 s{S_OO}, s{S_T}, {128*896}")
A(f"s_mul_i32 s{S_T}, s{S_WV}, {8*896}")
A(f"s_add_u32 s{S_XO}, s{S_OO}, s{S_T}")
for r, n in ((R_X, XB), (R_G, 896)):
    A(f"s_mov_b32 s{r+2}, {n}"); A(f"s_mov_b32 s{r+3}, 0x20000")
A(f"s_cmp_lg_u32 s{S_WV}, 0")
A("s_waitcnt lgkmcnt(0)")
A("s_cbranch_scc1 L_nogb")
srd2(R_G, S_G)
A(f"buffer_load_dwordx4 {v(GRAW,4)}, v{V_L16}, s[{R_G}:{R_G+3}], 0 offen")
srd(A, R_B, S_B, 896)
A(f"buffer_load_dwordx4 {v(GRAW+4,4)}, v{V_L16}, s[{R_B}:{R_B+3}], 0 offen")
A("L_nogb:")
srd2(R_X, S_X)
for i in range(7):
    emit(("vm", f"x1_{i}", f"buffer_load_dwordx4 {v(X1+4*i,4)}, v{V_XOFF}, s[{R_X}:{R_X+3}], s{S_XO} offen offset:{128*i} {XFL}"))
def x2load(i): return ("vm", f"x2_{i}", f"buffer_load_dwordx4 {v(X2+4*i,4)}, v{V_XOFF}, s[{R_X}:{R_X+3}], s{S_X2} offen offset:{128*i} {XFL}")
stamp(1)
PRIO = opt("--prio", 1, int)
if PRIO:
    A("s_setprio 1")
    A(f"s_cmp_ge_u32 s{S_WV}, 4")
    A("s_cbranch_scc1 L_p0")
    A("s_setprio 2")
    A("L_p0:")
A(f"s_add_u32 s{S_X2}, s{S_XO}, {64*896}")
srd(A, R_W, S_W, 448 * 896)
srd(A, R_O, S_O, XB)
if STAMPS: srd(A, R_WS, S_WS, 1 << 22)
A(f"s_bfe_u32 s{S_WO}, s2, 0x10003")
A(f"s_mul_i32 s{S_WO}, s{S_WO}, 448")
A(f"s_add_u32 s{S_OO}, s{S_OO}, s{S_WO}")
A(f"s_and_b32 s{S_PF}, s2, 0xf8")
A(f"s_add_u32 s{S_PF}, s{S_PF}, s{S_WV}")
A(f"s_mul_i32 s{S_PF}, s{S_PF}, 1568")
A(f"v_mul_u32_u24 v{V_LW}, {P}, v{T}")
A(f"v_add_u32 v{V_LW}, v{V_LW}, v{T+1}")
A(f"s_mul_i32 s{S_T}, s{S_WV}, {8*P}")
A(f"v_add_u32 v{V_LW}, s{S_T}, v{V_LW}")
A(f"v_lshlrev_b32 v{V_SR}, 1, v{T+1}")
A(f"v_add_u32 v{V_SR}, {SCR}, v{V_SR}")
A(f"v_and_b32 v{T}, 15, v0")
A(f"v_lshrrev_b32 v{T+1}, 4, v0")
A(f"v_mul_u32_u24 v{V_AR}, {P}, v{T}")
A(f"v_lshl_add_u32 v{V_AR}, v{T+1}, 4, v{V_AR}")
A(f"v_add_u32 v{V_AR2}, {64*P}, v{V_AR}")
A(f"s_cmp_gt_u32 s{S_WV}, {SW}")
A(f"s_subb_u32 s{S_T}, s{S_WV}, 0")
A(f"s_lshl_b32 s{S_T}, s{S_T}, 6")
A(f"s_add_u32 s{S_T}, s{S_T}, {RING}")
A(f"s_sub_u32 s{S_T2}, s{S_T}, {RING}")
A(f"s_add_u32 s{S_OO}, s{S_OO}, s{S_T2}")
A(f"s_mul_i32 s{S_RB}, s{S_WV}, {4*16*PS}")
A(f"s_add_u32 s{S_RB}, s{S_RB}, {OST}")
A(f"v_mul_u32_u24 v{V_OW}, {PS}, v{T}")
A(f"v_lshl_add_u32 v{V_OW}, v{T+1}, 3, v{V_OW}")
A(f"v_add_u32 v{V_OW}, s{S_RB}, v{V_OW}")
A(f"v_lshrrev_b32 v{T+2}, 2, v0")
A(f"v_and_b32 v{T+3}, 3, v0")
A(f"v_mul_u32_u24 v{V_OR}, {PS}, v{T+2}")
A(f"v_lshl_add_u32 v{V_OR}, v{T+3}, 4, v{V_OR}")
A(f"v_add_u32 v{V_OR}, s{S_RB}, v{V_OR}")
A(f"v_mul_u32_u24 v{V_OG}, 896, v{T+2}")
A(f"v_lshl_add_u32 v{V_OG}, v{T+3}, 4, v{V_OG}")
A(f"v_lshrrev_b32 v{T+2}, 2, v0")
A(f"v_mul_u32_u24 v{V_T0}, 448, v{T+2}")
A(f"v_and_b32 v{T+2}, 3, v0")
A(f"v_lshl_add_u32 v{V_T0}, v{T+2}, 3, v{V_T0}")
A(f"v_add_u32 v{V_T0}, s{S_T}, v{V_T0}")
A(f"v_and_b32 v{T+1}, 1, v{T+1}")
A(f"v_lshlrev_b32 v{T+1}, 5, v{T+1}")
A(f"v_sub_u32 v{V_T1}, v{V_T0}, v{T+1}")
A(f"v_add_u32 v{V_T1}, 32, v{V_T1}")
A(f"v_add_u32 v{V_T0}, v{V_T0}, v{T+1}")
A(f"s_cmp_lg_u32 s{S_WV}, {SW}")
A("s_cbranch_scc1 L_nosw")
VWL = [V_T0, V_T1, V_AR, V_AR2, V_OW, V_OR, V_OG]
A(f"s_movk_i32 s{S_T}, {896-448}")
A(f"v_mul_u32_u24 v{T+2}, 2341, v0")
for i in range(7):
    if i: A(f"v_add_u32 v{T}, {64*i*2341}, v{T+2}")
    A(f"v_lshrrev_b32 v{T}, 16, v{T if i else T+2}")
    A(f"v_add_u32 v{T+1}, {1024*i}, v{V_L16}")
    A(f"v_mad_u32_u24 v{T+3}, v{T}, s{S_T}, v{T+1}")
    A(f"v_lshrrev_b32 v{T+1}, 2, v{T}")
    A(f"v_mul_u32_u24 v{T+1}, {4*896}, v{T+1}")
    A(f"v_and_b32 v{T}, 4, v{T}")
    A(f"v_lshlrev_b32 v{T}, 3, v{T}")
    A(f"v_xor_b32 v{T}, v{T}, v{T+3}")
    A(f"v_add_u32 v{VWL[i]}, v{T}, v{T+1}")
    if i & 3: A(f"v_subrev_u32 v{VWL[i]}, {1024*(i&3)}, v{VWL[i]}")
A("L_nosw:")
A(f"v_mov_b32 v{V_MSK}, 0xffff0000")
A(f"v_mov_b32 v{V_ONE}, 0x3f803f80")
A(f"s_mov_b32 s{S_EPS}, {f2u(1e-5):#x}")
A(f"s_cmp_lg_u32 s{S_WV}, 0")
A("s_cbranch_scc1 L_nogb2")
A(f"v_lshlrev_b32 v{T}, 5, v0")
A(f"v_add_u32 v{T}, {SCR}, v{T}")
A(f"s_waitcnt vmcnt(7)")
U = Bv + 40
for j in range(8):
    A(f"v_lshlrev_b32 v{U+2*j}, 16, v{GRAW+j}")
    A(f"v_and_b32 v{U+2*j+1}, v{V_MSK}, v{GRAW+j}")
A(f"ds_write_b128 v{T}, {v(U,4)}")
A(f"ds_write_b128 v{T}, {v(U+4,4)} offset:16")
A(f"ds_write_b128 v{T}, {v(U+8,4)} offset:2048")
A(f"ds_write_b128 v{T}, {v(U+12,4)} offset:2064")
A("s_waitcnt lgkmcnt(0)")
A("L_nogb2:")
for i in range(XF): emit(x2load(i))
RS = T + 4
def layernorm(X, tag, first, yoff, hook):
    SUM, SQ = T, T + 1
    GP = opt("--gpos", 0, int)
    for i in range(7):
        if first and GP and flag("--gsplit") and i in (0, GP):
            A(f"s_cmp_{'lt' if i == 0 else 'ge'}_u32 s{S_WV}, 4")
            A(f"s_cbranch_scc1 L_g{i}")
            A("s_barrier")
            A(f"L_g{i}:")
            if i == GP: stamp(2)
        elif first and i == GP:
            A("s_barrier")
            stamp(2)
            for c in range(XF, XF + XG): emit(x2load(c))
        if first and i >= GP:
            for c in range(7):
                if (GP + c * (7 - GP) // 7 if not flag("--gball") else GP) == i:
                    A(f"ds_read_b128 {v(G+8*c,4)}, v{V_SR} offset:{256*c}")
                    A(f"ds_read_b128 {v(G+8*c+4,4)}, v{V_SR} offset:{256*c+16}")
                    A(f"ds_read_b128 {v(Bv+8*c,4)}, v{V_SR} offset:{2048+256*c}")
                    A(f"ds_read_b128 {v(Bv+8*c+4,4)}, v{V_SR} offset:{2048+256*c+16}")
        emit(("vmwait", f"{tag}_{i}"))
        hook(i)
        for j in range(4):
            r = X + 4 * i + j
            if i == 0 and j < 2:
                A(f"v_dot2_f32_bf16 v{SUM + 2*(j&1)}, v{V_ONE}, v{r}, 0")
                A(f"v_dot2_f32_bf16 v{SQ + 2*(j&1)}, v{r}, v{r}, 0")
                continue
            A(f"v_dot2c_f32_bf16 v{SUM + 2*(j&1)}, v{V_ONE}, v{r}")
            A(f"v_dot2c_f32_bf16 v{SQ + 2*(j&1)}, v{r}, v{r}")
        if i < ND:
            for j in range(4):
                A(f"v_lshlrev_b32 v{F+8*i+2*j}, 16, v{X+4*i+j}")
                A(f"v_and_b32 v{F+8*i+2*j+1}, v{V_MSK}, v{X+4*i+j}")
    up = []
    for i in range(ND, 7):
        for j in range(4):
            up.append(f"v_lshlrev_b32 v{F+8*i+2*j}, 16, v{X+4*i+j}")
            up.append(f"v_and_b32 v{F+8*i+2*j+1}, v{V_MSK}, v{X+4*i+j}")
    MEAN = T + 2
    chain = [3, f"v_add_f32 v{SUM}, v{SUM}, v{SUM+2}", f"v_add_f32 v{SQ}, v{SQ}, v{SQ+2}"]
    for dpp in ("quad_perm:[1,0,3,2]", "quad_perm:[2,3,0,1]", "row_half_mirror"):
        chain += [1, f"v_add_f32_dpp v{SUM}, v{SUM}, v{SUM} {dpp} row_mask:0xf bank_mask:0xf",
                  f"v_add_f32_dpp v{SQ}, v{SQ}, v{SQ} {dpp} row_mask:0xf bank_mask:0xf"]
    chain += [f"v_mul_f32 v{MEAN}, {f2u(1/448):#x}, v{SUM}", 0]
    if flag("--exactstats"):
        chain += [f"v_fma_f32 v{SUM}, -v{MEAN}, v{MEAN}, s{S_EPS}", 0, f"v_fmac_f32 v{SUM}, {f2u(1/448):#x}, v{SQ}", 0,
                  f"v_max_f32 v{SQ}, s{S_EPS}, v{SUM}", 0, f"v_rsq_f32 v{RS}, v{SQ}", 1]
    else:
        chain += [f"v_mul_f32 v{SUM}, -v{MEAN}, v{MEAN}", 0, f"v_fmac_f32 v{SUM}, {f2u(1/448):#x}, v{SQ}", 0,
                  f"v_max_f32 v{SQ}, 0, v{SUM}", 0, f"v_cvt_pk_bf16_f32 v{SUM}, v{MEAN}, v{SQ}", 0,
                  f"v_and_b32 v{SQ}, v{V_MSK}, v{SUM}", f"v_lshlrev_b32 v{MEAN}, 16, v{SUM}", f"v_add_f32 v{SQ}, s{S_EPS}, v{SQ}", 0,
                  f"v_cvt_pk_bf16_f32 v{SQ}, v{SQ}, v{SQ}", 0, f"v_and_b32 v{SQ}, v{V_MSK}, v{SQ}", 0, f"v_sqrt_f32 v{SQ}, v{SQ}", 1, 0, 0,
                  f"v_cvt_pk_bf16_f32 v{SQ}, v{SQ}, v{SQ}", 0, f"v_and_b32 v{SQ}, v{V_MSK}, v{SQ}", 0, f"v_rcp_f32 v{RS}, v{SQ}", 1]
    must = sum(c for c in chain if isinstance(c, int))
    for c in chain:
        if isinstance(c, str): A(c)
        elif c:
            for _ in range(c): A(up.pop(0))
            must -= c
        elif len(up) > must: A(up.pop(0))
    for l_ in up: A(l_)
    A(f"v_mul_f32 v{RS+1}, -v{MEAN}, v{RS}")
    stamp(3 if first else 5)
    if first: A("s_waitcnt lgkmcnt(0)")
    if not first and MIDW:
        A(f"s_cmp_lg_u32 s{S_WV}, {SW}")
        A("s_cbranch_scc1 L_nomid")
        for it in dma(0) + dma(1): A(it if isinstance(it, str) else it[2])
        if flag('--swhi'): A("s_setprio 0")
        A("L_nomid:")
    def s1(i): return [f"v_pk_fma_f32 {v(F+8*i+2*j,2)}, {v(F+8*i+2*j,2)}, {v(RS,2)}, {v(RS,2)} op_sel:[0,0,1] op_sel_hi:[1,0,1]" for j in range(4)]
    def s2(i): return [f"v_pk_fma_f32 {v(F+8*i+2*j,2)}, {v(F+8*i+2*j,2)}, {v(G+8*i+2*j,2)}, {v(Bv+8*i+2*j,2)}" for j in range(4)]
    def s3(i): return [f"v_cvt_pk_bf16_f32 v{X+4*i+j}, v{F+8*i+2*j}, v{F+8*i+2*j+1}" for j in range(4)] + \
                      [f"ds_write_b128 v{V_LW}, {v(X+4*i,4)} offset:{yoff + 128*i}"]
    for step in range(9):
        if step < 7:
            for l_ in s1(step): A(l_)
        if 0 <= step - 1 < 7:
            for l_ in s2(step - 1): A(l_)
        if 0 <= step - 2 < 7:
            for l_ in s3(step - 2): A(l_)
def dma(k):
    out = []
    for hf in range(2):
        for i in range(7):
            if (i & 3) == 0:
                out.append(f"s_add_u32 m0, {RING + SLOT*(k%3) + 7168*hf + 1024*i}, 0")
                out.append(f"s_add_u32 s{S_T}, s{S_WO}, {(32*k + 4*hf)*896}")
            out.append(("vm", f"W{k}", f"buffer_load_dwordx4 v{VWL[i]}, s[{R_W}:{R_W+3}], s{S_T} offen offset:{1024*(i&3)} lds"))
    return out
def pfissue():
    emit(("vm", "pf", f"buffer_load_dwordx4 {v(240,4)}, v{V_L16}, s[{R_W}:{R_W+3}], s{S_PF} offen"))
    A("s_mov_b32 exec_hi, 3")
    emit(("vm", "pf", f"buffer_load_dwordx4 {v(244,4)}, v{V_L16}, s[{R_W}:{R_W+3}], s{S_PF} offen offset:1024"))
    A("s_mov_b32 exec_hi, -1")
    if TLB: emit(("vm", "pf", f"buffer_load_dword v248, off, s[{R_O}:{R_O+3}], s{S_OO}"))
def hook1(i):
    for c in range(XS):
        if XS * i + c + XF + XG < 7: emit(x2load(XS * i + c + XF + XG))
    if PF and PFP < 0 and i == 6: pfissue()
def hook2(i):
    if PF and i == PFP: pfissue()
layernorm(X1, "x1", True, 0, hook1)
stamp(4)
if PRIO:
    A(f"s_cmp_ge_u32 s{S_WV}, {3 if flag('--swhi') else 4}")
    A("s_cbranch_scc1 L_p1")
    A("s_setprio 0")
    A("L_p1:")
layernorm(X2, "x2", False, 64 * P, hook2)
A(f"s_cmp_eq_u32 s{S_WV}, {SW}")
A("s_cbranch_scc1 L_w7")

hq = Q(); hq.vm = list(q.vm); q = Q()
WR = 16; ACC1 = 128; ACC2 = 160; AF = 176
def wreg(k, t): return WR + 8 * k + 4 * t
def trread(k):
    return [("lg", f"B{k}", f"ds_read_b64_tr_b16 {v(wreg(k,t)+2*hf,2)}, v{V_T1 if t else V_T0} offset:{SLOT*(k%3) + 16*448*hf}")
            for t in range(2) for hf in range(2)]
def aread(tag, buf, mt, k):
    return ("lg", tag, f"ds_read_b128 {v(AF+4*buf,4)}, v{V_AR if mt < 4 else V_AR2} offset:{(mt&3)*16*P + 64*k}")
def epi(areg, mt):
    out = []
    for t in range(2):
        d = areg + 4 * t
        out.append(f"v_cvt_pk_bf16_f32 v{d}, v{d}, v{d+1}")
        out.append(f"v_cvt_pk_bf16_f32 v{d+1}, v{d+2}, v{d+3}")
        out.append(("lg", f"OW{mt}", f"ds_write_b64 v{V_OW}, {v(d,2)} offset:{(mt&3)*16*PS + 32*t}"))
    return out
def epi_b(areg, mt): return [("lgwait", f"OW{mt}"), ("lg", f"OR{mt}", f"ds_read_b128 {v(areg+4,4)}, v{V_OR} offset:{(mt&3)*16*PS}")]
def epi_c(areg, mt):
    fl = STFL if mt < opt("--plainfrom", 8, int) else opt("--lastfl", "", str)
    return [f"s_add_u32 s{S_T}, s{S_OO}, {16*896*mt}", ("lgwait", f"OR{mt}"), f"buffer_store_dwordx4 {v(areg+4,4)}, v{V_OG}, s[{R_O}:{R_O+3}], s{S_T} offen {fl}"]
A("s_waitcnt lgkmcnt(0)")
stamp(6)
if PRIO: A("s_setprio 0")
AL = opt("--al", -1, int)
if AL >= 0:
    A(".p2align 6, , ")
    for _ in range(AL): A("s_nop 0")
A("s_barrier")
for mt in range(4): emit(aread(f"A0_{mt}", mt, mt, 0))
if not EARLYW: A("s_barrier")
stamp(7)
for it in trread(0): emit(it)
BPOS = opt("--bpos", 3, int)
for k in range(14):
    if k % 2 == 0: stamp(1 + k // 2, True)
    fill = {g_: [] for g_ in range(8)}
    for mt in range(4):
        fill[mt].append(aread(f"A{k+1}_{mt}", 4 * ((k + 1) & 1) + mt, mt, k + 1) if k + 1 < 14 else aread(f"P4_{mt}", mt, 4, mt))
    fill[BPOS].append("s_barrier")
    if k + 1 < 14:
        for i_, it in enumerate(trread(k + 1)): fill[min(BPOS + 1 + i_ // TRP, 7)].append(it)
    if ALT:
        fill[0].append(f"s_setprio {2 if (k & 1) == 0 else 0}" if ALT == 2 else "s_setprio 2")
        if ALT == 1: fill[4].append("s_setprio 0")
    emit(("lgwait", f"B{k}")); emit(("lgwait", f"A{k}_3"))
    for mt in range(4):
        for t in range(2):
            d = ACC1 + 8 * mt + 4 * t
            A(f"v_mfma_f32_16x16x32_bf16 {v(d,4)}, {v(wreg(k,t),4)}, {v(AF+4*(4*(k&1)+mt),4)}, {'0' if k == 0 else v(d,4)}")
            for it in fill[2 * mt + t]: emit(it)
stamp(8, True)
stamp(8)
seq = [(mt, k) for mt in range(4, 8) for k in range(14)]
PFD = opt("--pfd", 4, int)
def areg(mt): return ACC1 + 8 * mt if mt < 6 else 208 + 8 * (mt - 6)
eq = []
def sched(g0, mt):
    e = epi(areg(mt), mt)
    for it in e: eq.append([g0, [it]])
    eq.append(["lag", LAG1, epi_b(areg(mt), mt)])
    c = epi_c(areg(mt), mt)
    eq.append([0, c[:1]]); eq.append(["lag", LAG2, c[1:]])
LAG1 = opt("--lag1", 5, int); LAG2 = opt("--lag2", 5, int); WE = opt("--we", 1, int)
if flag("--pipe"):
    for mt in range(4):
        for it in epi(areg(mt), mt): eq.append([3, [it]])
        if mt >= 1: eq.append([0, epi_b(areg(mt - 1), mt - 1)])
        if mt >= 2:
            c = epi_c(areg(mt - 2), mt - 2); eq.append([0, c[:1]]); eq.append([0, c[1:]])
    c = epi_c(areg(2), 2); eq.append([0, c[:1]]); eq.append([0, epi_b(areg(3), 3)]); eq.append(["lag", 3, c[1:]])
    c = epi_c(areg(3), 3); eq.append([0, c[:1]]); eq.append(["lag", 3, c[1:]])
else:
    for mt in range(4): sched(3, mt)
for mt in range(4, 7): sched(28 * (mt - 3) + 6, mt)
for d_ in range(4, PFD): emit(aread(f"P4_{d_}", d_, 4, d_))
g = 0; lastg = 0
for n, (mt, k) in enumerate(seq):
    if k == 0: stamp(5 + mt, True)
    TG_ = opt("--tog", 0, int)
    if TG_ and n % TG_ == 0:
        if n == 0:
            A("s_setprio 1")
        A(f"s_cmp_ge_u32 s{S_WV}, 4")
        A(f"s_cbranch_scc1 L_tg{n}")
        A(f"s_setprio {2 if (n // TG_) % 2 == 0 else 0}")
        A(f"L_tg{n}:")
    if n % WE == 0:
        m2, k2 = seq[min(n + WE - 1, len(seq) - 1)]
        emit(("lgwait", f"P{m2}_{k2}"))
    for t in range(2):
        d = areg(mt) + 4 * t
        A(f"v_mfma_f32_16x16x32_bf16 {v(d,4)}, {v(wreg(k,t),4)}, {v(AF+4*(n&7),4)}, {'0' if k == 0 else v(d,4)}")
        if t == 0 and n + PFD < len(seq): emit(aread(f"P{seq[n+PFD][0]}_{seq[n+PFD][1]}", (n + PFD) & 7, *seq[n + PFD]))
        if eq and ((eq[0][0] == "lag" and g >= lastg + eq[0][1]) or (eq[0][0] != "lag" and g >= eq[0][0])):
            for it in eq.pop(0)[-1]: emit(it)
            lastg = g
        g += 1
assert not eq, eq
stamp(13, True)
stamp(9)
A("s_nop 7")
for it in epi(areg(7), 7) + epi_b(areg(7), 7) + epi_c(areg(7), 7): emit(it)
stamp(10)
A("s_branch L_fin")

A("L_w7:")
q = hq
def issue(l):
    for it in l: emit(it)
A("s_waitcnt lgkmcnt(0)")
stamp(6)
if not EARLYW: A("s_barrier")
if MIDW: q.vm += ['W0'] * 14 + ['W1'] * 14
else: issue(dma(0)); issue(dma(1))
if not EARLYW: issue(dma(2))
for k in range(14):
    emit(("vmwait", f"W{k}"))
    if k == 0 or not flag("--nobar"): A("s_barrier")
    if (k >= 1 or EARLYW) and k + 2 < 14: issue(dma(k + 2))
stamp(8)
A("s_barrier")
A("L_fin:")
if flag("--dbgskew"):
    A("s_waitcnt vmcnt(0)")
    A("s_memrealtime s[100:101]") if False else None
    A("s_memrealtime s[58:59]")
    A("s_load_dwordx2 s[14:15], s[0:1], 40")
    A("s_getreg_b32 s60, hwreg(HW_REG_XCC_ID)")
    A("s_waitcnt lgkmcnt(0)")
    srd(A, R_WS, S_WS, 256)
    A("s_and_b32 s60, s60, 7")
    A("s_lshl_b32 s60, s60, 3")
    A("v_mov_b32 v12, s62")
    A("v_mov_b32 v13, s58")
    A("v_cmp_eq_u32 vcc, 0, v0")
    A("s_and_saveexec_b64 s[4:5], vcc")
    A(f"buffer_atomic_umax v12, off, s[{R_WS}:{R_WS+3}], s60")
    A(f"buffer_atomic_umax v13, off, s[{R_WS}:{R_WS+3}], s60 offset:4")
    A("s_waitcnt vmcnt(0)")
if STAMPS:
    A("s_waitcnt vmcnt(0)")
    stamp(11)
    A("s_waitcnt lgkmcnt(0)")
    if PROBE is not None:
        A(f"s_cmp_lg_u32 s{S_WV}, {PROBE[0]}")
        A("s_cbranch_scc1 L_nospin")
        if PROBE[1] == "f":
            A(f"s_mov_b32 s{S_T}, {int(PROBE[2:])}")
        else:
            pi, pj = int(PROBE[1], 16), int(PROBE[2], 16)
            A(f"s_sub_u32 s{S_T}, s{S_ST+2*pi}, s{S_ST+2*pj}")
            A(f"s_lshl_b32 s{S_T}, s{S_T}, 1")
            A(f"s_add_u32 s{S_T}, s{S_T}, 1500")
        A(f"s_add_u32 s{S_T}, s{S_T}, s{S_ST}")
        A("L_spin:")
        A(f"s_memrealtime s[{S_ST+30}:{S_ST+31}]")
        A("s_waitcnt lgkmcnt(0)")
        A(f"s_sub_u32 s{S_T2}, s{S_ST+30}, s{S_T}")
        A(f"s_cmp_lt_i32 s{S_T2}, 0")
        A("s_cbranch_scc1 L_spin")
        A("L_nospin:")
    A(f"s_lshl_b32 s{S_T}, s2, 11")
    A(f"s_lshl_b32 s{S_T2}, s{S_WV}, 7")
    A(f"s_add_u32 s{S_T}, s{S_T}, s{S_T2}")
    A("v_mov_b32 v14, 0")
    A("v_cmp_eq_u32 vcc, 0, v0")
    A("s_and_saveexec_b64 s[4:5], vcc")
    for i in range(NSTAMP):
        A(f"v_mov_b32 v12, s{S_ST+2*i}")
        A(f"v_mov_b32 v13, s{S_ST+2*i+1}")
        A(f"buffer_store_dwordx2 v[12:13], v14, s[{R_WS}:{R_WS+3}], s{S_T} offen offset:{8*i}")
        A("s_waitcnt vmcnt(0)")
A("L_end:")
A("s_endpgm")
out = wrap(A.text(), 256, 512, LDS_TOTAL, 256, 100 if STAMPS else 64, 256, notes="""
out = (LayerNorm(x)*g + b) @ w.  One workgroup (8 waves) per CU computes 128 rows x 224 columns.
 1. every wave normalises 2 x 8 rows (fp32 sums; mean and root rounded to bf16 like the reference) into LDS;
 2. wave 3 streams this half of w through a 3-slot LDS ring (LDS-DMA); the other seven waves own 32 columns each,
    pull their MFMA fragments with transposing LDS reads and keep them in registers (rows 0..63 are multiplied meanwhile);
 3. rows 64..127 are multiplied tile by tile while finished tiles leave through write-through stores.
Generated by an own script (straight-line code, counted waits).""")
open(sys.argv[1], "w").write(out)
```

```python
import sys, struct
from asmgen import *
def flag(n): return n in sys.argv
def opt(n, d, t=str): return t(sys.argv[sys.argv.index(n)+1]) if n in sys.argv else d
STAMPS = flag("--stamps"); PROBE = opt("--probe", None)
PF = not flag("--nopf"); TLB = flag("--tlb")
CYC = flag("--cyc"); FINE = flag("--fine")
CPF = opt("--cpf", 512, int)
STFL = opt("--st", "sc1", str); XFL = opt("--xfl", "", str)
if STFL == "plain": STFL = ""
TRP = opt('--trp', 2, int)
ALT = opt('--alt', 0, int)
PFP = opt("--pfp", 3, int)
XG = opt('--xg', 0, int); XS = opt('--xs', 1, int)
MIDW = not flag('--nomid')
ND = opt('--nd', 4, int)
PFL = opt('--pfl', ''); DFL = opt('--dfl', ''); GFL = opt('--gfl', '')
XF = opt("--xfirst", 0, int)
def f2u(f): return struct.unpack("<I", struct.pack("<f", f))[0]
A = Asm()
P = 928; PS = 80
XB = 16384 * 896
RING = 128 * P
SLOT = 14336
SCR = RING + 2 * SLOT
LDS_TOTAL = 163840
OST = RING
assert RING + 3 * SLOT <= LDS_TOTAL
S_X, S_G, S_B, S_W, S_O, S_WS = 4, 6, 8, 10, 12, 14
R_X, R_W, R_O, R_G, R_B, R_WS = 16, 20, 24, 28, 32, 36
S_WV, S_XO, S_WO, S_OO, S_ONE, S_T, S_RB, S_T2, S_MSK, S_PF, S_X2 = 40, 41, 42, 43, 44, 45, 46, 47, 48, 49, 50
S_EPS = 44
S_ST = 66; NSTAMP = 16
def stamp(i, fine=False):
    if STAMPS and (fine == FINE or i == 0):
        A(f"{'s_memtime' if CYC else 's_memrealtime'} s[{S_ST+2*i}:{S_ST+2*i+1}]")
def srd2(d, b):
    A(f"s_mov_b32 s{d}, s{b}"); A(f"s_and_b32 s{d+1}, s{b+1}, 0xffff")
class Q:
    def __init__(s): s.vm = []; s.lg = []
q = Q()
def qwait(l, tag, name, cap):
    if tag not in l: return None
    idx = max(i for i, t in enumerate(l) if t == tag)
    n = len(l) - 1 - idx
    del l[:idx + 1]
    return f"s_waitcnt {name}({min(n,cap)})"
def emit(item):
    if isinstance(item, str): A(item); return
    if item[0] == "vm": q.vm.append(item[1]); A(item[2])
    elif item[0] == "lg": q.lg.append(item[1]); A(item[2])
    else:
        w = qwait(q.vm, item[1], "vmcnt", 63) if item[0] == "vmwait" else qwait(q.lg, item[1], "lgkmcnt", 15)
        if w: A(w)

V_XOFF, V_L16, V_LW, V_SR, V_T0, V_T1, V_AR, V_AR2, V_OW = 1, 2, 3, 4, 5, 6, 7, 8, 9
V_MSK, V_ONE, V_OR, V_OG = 250, 251, 252, 253
T = 10
X1, X2, G, Bv, F, GRAW = 16, 44, 72, 128, 184, 240
SW = opt('--sw', 3, int)
EARLYW = not flag('--latew')
A("s_cmp_ge_u32 s2, 256")
A("s_cbranch_scc1 L_end")
stamp(0)
if flag("--dbgskew"): A("s_memrealtime s[62:63]")
A("s_load_dwordx8 s[4:11], s[0:1], 0")
A("s_load_dwordx2 s[12:13], s[0:1], 32")
if STAMPS: A("s_load_dwordx2 s[14:15], s[0:1], 48")
if CPF:
    A("s_getpc_b64 s[54:55]")
    A("L_pc:")
    if flag("--cpfb"):
        A("s_lshr_b32 s3, s2, 3")
        A(f"s_mul_i32 s3, s3, {CPF}")
        A("v_lshl_add_u32 v2, v0, 2, s3")
        A(f"v_cmp_gt_u32 vcc, {CPF//4}, v0")
        A("s_and_saveexec_b64 s[56:57], vcc")
        A("v_cmp_gt_u32 vcc, L_end-L_pc, v2")
        A("s_and_b64 exec, exec, vcc")
        A("s_cbranch_execz L_nocpf")
        A("global_load_dword v255, v2, s[54:55]")
        A("L_nocpf:")
        A("s_mov_b64 exec, s[56:57]")
    else:
        A("s_and_b32 s3, s2, 0xf8")
        A("s_lshl_b32 s3, s3, 6")
        A("v_and_b32 v2, 0x1c0, v0")
        A("v_add_u32 v2, s3, v2")
        A("v_min_u32 v2, L_end-L_pc, v2")
        A("v_mov_b32 v3, s55")
        A("v_add_co_u32 v2, vcc, s54, v2")
        A("s_nop 1")
        A("v_addc_co_u32 v3, vcc, 0, v3, vcc")
        A(f"global_load_dword v255, v[2:3], off {GFL}")
A("v_lshrrev_b32 v1, 6, v0")
A("v_and_b32 v0, 63, v0")
A(f"v_readfirstlane_b32 s{S_WV}, v1")
A(f"v_lshrrev_b32 v{T}, 3, v0")
A(f"v_and_b32 v{T+1}, 7, v0")
A(f"v_lshlrev_b32 v{T+1}, 4, v{T+1}")
A(f"v_mul_u32_u24 v{V_XOFF}, 896, v{T}")
A(f"v_add_u32 v{V_XOFF}, v{V_XOFF}, v{T+1}")
A(f"v_lshlrev_b32 v{V_L16}, 4, v0")
A(f"s_lshr_b32 s{S_T}, s2, 4")
A(f"s_lshl_b32 s{S_T}, s{S_T}, 3")
A(f"s_and_b32 s{S_T2}, s2, 7")
A(f"s_add_u32 s{S_T}, s{S_T}, s{S_T2}")
A(f"s_mul_i32 s{S_OO}, s{S_T}, {128*896}")
A(f"s_mul_i32 s{S_T}, s{S_WV}, {8*896}")
A(f"s_add_u32 s{S_XO}, s{S_OO}, s{S_T}")
for r, n in ((R_X, XB), (R_G, 896)):
    A(f"s_mov_b32 s{r+2}, {n}"); A(f"s_mov_b32 s{r+3}, 0x20000")
A(f"s_cmp_lg_u32 s{S_WV}, 0")
A("s_waitcnt lgkmcnt(0)")
A("s_cbranch_scc1 L_nogb")
srd2(R_G, S_G)
A(f"buffer_load_dwordx4 {v(GRAW,4)}, v{V_L16}, s[{R_G}:{R_G+3}], 0 offen {GFL}")
srd(A, R_B, S_B, 896)
A(f"buffer_load_dwordx4 {v(GRAW+4,4)}, v{V_L16}, s[{R_B}:{R_B+3}], 0 offen {GFL}")
A("L_nogb:")
srd2(R_X, S_X)
for i in range(7):
    emit(("vm", f"x1_{i}", f"buffer_load_dwordx4 {v(X1+4*i,4)}, v{V_XOFF}, s[{R_X}:{R_X+3}], s{S_XO} offen offset:{128*i} {XFL}"))
def x2load(i): return ("vm", f"x2_{i}", f"buffer_load_dwordx4 {v(X2+4*i,4)}, v{V_XOFF}, s[{R_X}:{R_X+3}], s{S_X2} offen offset:{128*i} {XFL}")
stamp(1)
PRIO = opt("--prio", 1, int)
if PRIO:
    A("s_setprio 1")
    A(f"s_cmp_ge_u32 s{S_WV}, 4")
    A("s_cbranch_scc1 L_p0")
    A("s_setprio 2")
    A("L_p0:")
A(f"s_add_u32 s{S_X2}, s{S_XO}, {64*896}")
srd(A, R_W, S_W, 448 * 896)
srd(A, R_O, S_O, XB)
if STAMPS: srd(A, R_WS, S_WS, 1 << 22)
A(f"s_bfe_u32 s{S_WO}, s2, 0x10003")
A(f"s_mul_i32 s{S_WO}, s{S_WO}, 448")
A(f"s_add_u32 s{S_OO}, s{S_OO}, s{S_WO}")
A(f"s_and_b32 s{S_PF}, s2, 0xf8")
A(f"s_add_u32 s{S_PF}, s{S_PF}, s{S_WV}")
A(f"s_mul_i32 s{S_PF}, s{S_PF}, 1568")
A(f"v_mul_u32_u24 v{V_LW}, {P}, v{T}")
A(f"v_add_u32 v{V_LW}, v{V_LW}, v{T+1}")
A(f"s_mul_i32 s{S_T}, s{S_WV}, {8*P}")
A(f"v_add_u32 v{V_LW}, s{S_T}, v{V_LW}")
A(f"v_lshlrev_b32 v{V_SR}, 1, v{T+1}")
A(f"v_add_u32 v{V_SR}, {SCR}, v{V_SR}")
A(f"v_and_b32 v{T}, 15, v0")
A(f"v_lshrrev_b32 v{T+1}, 4, v0")
A(f"v_mul_u32_u24 v{V_AR}, {P}, v{T}")
A(f"v_lshl_add_u32 v{V_AR}, v{T+1}, 4, v{V_AR}")
A(f"v_add_u32 v{V_AR2}, {64*P}, v{V_AR}")
A(f"s_cmp_gt_u32 s{S_WV}, {SW}")
A(f"s_subb_u32 s{S_T}, s{S_WV}, 0")
A(f"s_lshl_b32 s{S_T}, s{S_T}, 6")
A(f"s_add_u32 s{S_T}, s{S_T}, {RING}")
A(f"s_sub_u32 s{S_T2}, s{S_T}, {RING}")
A(f"s_add_u32 s{S_OO}, s{S_OO}, s{S_T2}")
A(f"s_mul_i32 s{S_RB}, s{S_WV}, {4*16*PS}")
A(f"s_add_u32 s{S_RB}, s{S_RB}, {OST}")
A(f"v_mul_u32_u24 v{V_OW}, {PS}, v{T}")
A(f"v_lshl_add_u32 v{V_OW}, v{T+1}, 3, v{V_OW}")
A(f"v_add_u32 v{V_OW}, s{S_RB}, v{V_OW}")
A(f"v_lshrrev_b32 v{T+2}, 2, v0")
A(f"v_and_b32 v{T+3}, 3, v0")
A(f"v_mul_u32_u24 v{V_OR}, {PS}, v{T+2}")
A(f"v_lshl_add_u32 v{V_OR}, v{T+3}, 4, v{V_OR}")
A(f"v_add_u32 v{V_OR}, s{S_RB}, v{V_OR}")
A(f"v_mul_u32_u24 v{V_OG}, 896, v{T+2}")
A(f"v_lshl_add_u32 v{V_OG}, v{T+3}, 4, v{V_OG}")
A(f"v_lshrrev_b32 v{T+2}, 2, v0")
A(f"v_mul_u32_u24 v{V_T0}, 448, v{T+2}")
A(f"v_and_b32 v{T+2}, 3, v0")
A(f"v_lshl_add_u32 v{V_T0}, v{T+2}, 3, v{V_T0}")
A(f"v_add_u32 v{V_T0}, s{S_T}, v{V_T0}")
A(f"v_and_b32 v{T+1}, 1, v{T+1}")
A(f"v_lshlrev_b32 v{T+1}, 5, v{T+1}")
A(f"v_sub_u32 v{V_T1}, v{V_T0}, v{T+1}")
A(f"v_add_u32 v{V_T1}, 32, v{V_T1}")
A(f"v_add_u32 v{V_T0}, v{V_T0}, v{T+1}")
A(f"s_cmp_lg_u32 s{S_WV}, {SW}")
A("s_cbranch_scc1 L_nosw")
VWL = [V_T0, V_T1, V_AR, V_AR2, V_OW, V_OR, V_OG]
A(f"s_movk_i32 s{S_T}, {896-448}")
A(f"v_mul_u32_u24 v{T+2}, 2341, v0")
for i in range(7):
    if i: A(f"v_add_u32 v{T}, {64*i*2341}, v{T+2}")
    A(f"v_lshrrev_b32 v{T}, 16, v{T if i else T+2}")
    A(f"v_add_u32 v{T+1}, {1024*i}, v{V_L16}")
    A(f"v_mad_u32_u24 v{T+3}, v{T}, s{S_T}, v{T+1}")
    A(f"v_lshrrev_b32 v{T+1}, 2, v{T}")
    A(f"v_mul_u32_u24 v{T+1}, {4*896}, v{T+1}")
    A(f"v_and_b32 v{T}, 4, v{T}")
    A(f"v_lshlrev_b32 v{T}, 3, v{T}")
    A(f"v_xor_b32 v{T}, v{T}, v{T+3}")
    A(f"v_add_u32 v{VWL[i]}, v{T}, v{T+1}")
    if i & 3: A(f"v_subrev_u32 v{VWL[i]}, {1024*(i&3)}, v{VWL[i]}")
A("L_nosw:")
A(f"v_mov_b32 v{V_MSK}, 0xffff0000")
A(f"v_mov_b32 v{V_ONE}, 0x3f803f80")
A(f"s_mov_b32 s{S_EPS}, {f2u(1e-5):#x}")
A(f"s_cmp_lg_u32 s{S_WV}, 0")
A("s_cbranch_scc1 L_nogb2")
A(f"v_lshlrev_b32 v{T}, 5, v0")
A(f"v_add_u32 v{T}, {SCR}, v{T}")
A(f"s_waitcnt vmcnt(7)")
U = Bv + 40
for j in range(8):
    A(f"v_lshlrev_b32 v{U+2*j}, 16, v{GRAW+j}")
    A(f"v_and_b32 v{U+2*j+1}, v{V_MSK}, v{GRAW+j}")
A(f"ds_write_b128 v{T}, {v(U,4)}")
A(f"ds_write_b128 v{T}, {v(U+4,4)} offset:16")
A(f"ds_write_b128 v{T}, {v(U+8,4)} offset:2048")
A(f"ds_write_b128 v{T}, {v(U+12,4)} offset:2064")
A("s_waitcnt lgkmcnt(0)")
A("L_nogb2:")
for i in range(XF): emit(x2load(i))
RS = T + 4
def layernorm(X, tag, first, yoff, hook):
    SUM, SQ = T, T + 1
    GP = opt("--gpos", 0, int)
    for i in range(7):
        if first and GP and flag("--gsplit") and i in (0, GP):
            A(f"s_cmp_{'lt' if i == 0 else 'ge'}_u32 s{S_WV}, 4")
            A(f"s_cbranch_scc1 L_g{i}")
            A("s_barrier")
            A(f"L_g{i}:")
            if i == GP: stamp(2)
        elif first and i == GP:
            A("s_barrier")
            stamp(2)
            for c in range(XF, XF + XG): emit(x2load(c))
        if first and i >= GP:
            for c in range(7):
                if (GP + c * (7 - GP) // 7 if not flag("--gball") else GP) == i:
                    A(f"ds_read_b128 {v(G+8*c,4)}, v{V_SR} offset:{256*c}")
                    A(f"ds_read_b128 {v(G+8*c+4,4)}, v{V_SR} offset:{256*c+16}")
                    A(f"ds_read_b128 {v(Bv+8*c,4)}, v{V_SR} offset:{2048+256*c}")
                    A(f"ds_read_b128 {v(Bv+8*c+4,4)}, v{V_SR} offset:{2048+256*c+16}")
        emit(("vmwait", f"{tag}_{i}"))
        hook(i)
        for j in range(4):
            r = X + 4 * i + j
            if i == 0 and j < 2:
                A(f"v_dot2_f32_bf16 v{SUM + 2*(j&1)}, v{V_ONE}, v{r}, 0")
                A(f"v_dot2_f32_bf16 v{SQ + 2*(j&1)}, v{r}, v{r}, 0")
                continue
            A(f"v_dot2c_f32_bf16 v{SUM + 2*(j&1)}, v{V_ONE}, v{r}")
            A(f"v_dot2c_f32_bf16 v{SQ + 2*(j&1)}, v{r}, v{r}")
        if i < ND:
            for j in range(4):
                A(f"v_lshlrev_b32 v{F+8*i+2*j}, 16, v{X+4*i+j}")
                A(f"v_and_b32 v{F+8*i+2*j+1}, v{V_MSK}, v{X+4*i+j}")
    up = []
    for i in range(ND, 7):
        for j in range(4):
            up.append(f"v_lshlrev_b32 v{F+8*i+2*j}, 16, v{X+4*i+j}")
            up.append(f"v_and_b32 v{F+8*i+2*j+1}, v{V_MSK}, v{X+4*i+j}")
    MEAN = T + 2
    chain = [3, f"v_add_f32 v{SUM}, v{SUM}, v{SUM+2}", f"v_add_f32 v{SQ}, v{SQ}, v{SQ+2}"]
    for dpp in ("quad_perm:[1,0,3,2]", "quad_perm:[2,3,0,1]", "row_half_mirror"):
        chain += [1, f"v_add_f32_dpp v{SUM}, v{SUM}, v{SUM} {dpp} row_mask:0xf bank_mask:0xf",
                  f"v_add_f32_dpp v{SQ}, v{SQ}, v{SQ} {dpp} row_mask:0xf bank_mask:0xf"]
    chain += [f"v_mul_f32 v{MEAN}, {f2u(1/448):#x}, v{SUM}", 0]
    if flag("--exactstats"):
        chain += [f"v_fma_f32 v{SUM}, -v{MEAN}, v{MEAN}, s{S_EPS}", 0, f"v_fmac_f32 v{SUM}, {f2u(1/448):#x}, v{SQ}", 0,
                  f"v_max_f32 v{SQ}, s{S_EPS}, v{SUM}", 0, f"v_rsq_f32 v{RS}, v{SQ}", 1]
    else:
        chain += [f"v_mul_f32 v{SUM}, -v{MEAN}, v{MEAN}", 0, f"v_fmac_f32 v{SUM}, {f2u(1/448):#x}, v{SQ}", 0,
                  f"v_max_f32 v{SQ}, 0, v{SUM}", 0, f"v_cvt_pk_bf16_f32 v{SUM}, v{MEAN}, v{SQ}", 0,
                  f"v_and_b32 v{SQ}, v{V_MSK}, v{SUM}", f"v_lshlrev_b32 v{MEAN}, 16, v{SUM}", f"v_add_f32 v{SQ}, s{S_EPS}, v{SQ}", 0,
                  f"v_cvt_pk_bf16_f32 v{SQ}, v{SQ}, v{SQ}", 0, f"v_and_b32 v{SQ}, v{V_MSK}, v{SQ}", 0, f"v_sqrt_f32 v{SQ}, v{SQ}", 1, 0, 0,
                  f"v_cvt_pk_bf16_f32 v{SQ}, v{SQ}, v{SQ}", 0, f"v_and_b32 v{SQ}, v{V_MSK}, v{SQ}", 0, f"v_rcp_f32 v{RS}, v{SQ}", 1]
    must = sum(c for c in chain if isinstance(c, int))
    for c in chain:
        if isinstance(c, str): A(c)
        elif c:
            for _ in range(c): A(up.pop(0))
            must -= c
        elif len(up) > must: A(up.pop(0))
    for l_ in up: A(l_)
    A(f"v_mul_f32 v{RS+1}, -v{MEAN}, v{RS}")
    stamp(3 if first else 5)
    if first: A("s_waitcnt lgkmcnt(0)")
    if not first and MIDW:
        A(f"s_cmp_lg_u32 s{S_WV}, {SW}")
        A("s_cbranch_scc1 L_nomid")
        for it in dma(0) + dma(1): A(it if isinstance(it, str) else it[2])
        if flag('--swhi'): A("s_setprio 0")
        A("L_nomid:")
    def s1(i): return [f"v_pk_fma_f32 {v(F+8*i+2*j,2)}, {v(F+8*i+2*j,2)}, {v(RS,2)}, {v(RS,2)} op_sel:[0,0,1] op_sel_hi:[1,0,1]" for j in range(4)]
    def s2(i): return [f"v_pk_fma_f32 {v(F+8*i+2*j,2)}, {v(F+8*i+2*j,2)}, {v(G+8*i+2*j,2)}, {v(Bv+8*i+2*j,2)}" for j in range(4)]
    def s3(i): return [f"v_cvt_pk_bf16_f32 v{X+4*i+j}, v{F+8*i+2*j}, v{F+8*i+2*j+1}" for j in range(4)] + \
                      [f"ds_write_b128 v{V_LW}, {v(X+4*i,4)} offset:{yoff + 128*i}"]
    for step in range(9):
        if step < 7:
            for l_ in s1(step): A(l_)
        if 0 <= step - 1 < 7:
            for l_ in s2(step - 1): A(l_)
        if 0 <= step - 2 < 7:
            for l_ in s3(step - 2): A(l_)
def dma(k):
    out = []
    for hf in range(2):
        for i in range(7):
            if (i & 3) == 0:
                out.append(f"s_add_u32 m0, {RING + SLOT*(k%3) + 7168*hf + 1024*i}, 0")
                out.append(f"s_add_u32 s{S_T}, s{S_WO}, {(32*k + 4*hf)*896}")
            out.append(("vm", f"W{k}", f"buffer_load_dwordx4 v{VWL[i]}, s[{R_W}:{R_W+3}], s{S_T} offen offset:{1024*(i&3)} {DFL} lds"))
    return out
def pfissue():
    emit(("vm", "pf", f"buffer_load_dwordx4 {v(240,4)}, v{V_L16}, s[{R_W}:{R_W+3}], s{S_PF} offen {PFL}"))
    A("s_mov_b32 exec_hi, 3")
    emit(("vm", "pf", f"buffer_load_dwordx4 {v(244,4)}, v{V_L16}, s[{R_W}:{R_W+3}], s{S_PF} offen offset:1024 {PFL}"))
    A("s_mov_b32 exec_hi, -1")
    if TLB: emit(("vm", "pf", f"buffer_load_dword v248, off, s[{R_O}:{R_O+3}], s{S_OO}"))
def hook1(i):
    for c in range(XS):
        if XS * i + c + XF + XG < 7: emit(x2load(XS * i + c + XF + XG))
    if PF and PFP < 0 and i == 6: pfissue()
def hook2(i):
    if PF and i == PFP: pfissue()
layernorm(X1, "x1", True, 0, hook1)
stamp(4)
if PRIO:
    A(f"s_cmp_ge_u32 s{S_WV}, {3 if flag('--swhi') else 4}")
    A("s_cbranch_scc1 L_p1")
    A("s_setprio 0")
    A("L_p1:")
layernorm(X2, "x2", False, 64 * P, hook2)
A(f"s_cmp_eq_u32 s{S_WV}, {SW}")
A("s_cbranch_scc1 L_w7")

hq = Q(); hq.vm = list(q.vm); q = Q()
WR = 16; ACC1 = 128; ACC2 = 160; AF = 176
def wreg(k, t): return WR + 8 * k + 4 * t
def trread(k):
    return [("lg", f"B{k}", f"ds_read_b64_tr_b16 {v(wreg(k,t)+2*hf,2)}, v{V_T1 if t else V_T0} offset:{SLOT*(k%3) + 16*448*hf}")
            for t in range(2) for hf in range(2)]
def aread(tag, buf, mt, k):
    return ("lg", tag, f"ds_read_b128 {v(AF+4*buf,4)}, v{V_AR if mt < 4 else V_AR2} offset:{(mt&3)*16*P + 64*k}")
def epi(areg, mt):
    out = []
    for t in range(2):
        d = areg + 4 * t
        out.append(f"v_cvt_pk_bf16_f32 v{d}, v{d}, v{d+1}")
        out.append(f"v_cvt_pk_bf16_f32 v{d+1}, v{d+2}, v{d+3}")
        out.append(("lg", f"OW{mt}", f"ds_write_b64 v{V_OW}, {v(d,2)} offset:{(mt&3)*16*PS + 32*t}"))
    return out
def epi_b(areg, mt): return [("lgwait", f"OW{mt}"), ("lg", f"OR{mt}", f"ds_read_b128 {v(areg+4,4)}, v{V_OR} offset:{(mt&3)*16*PS}")]
def epi_c(areg, mt):
    fl = STFL if mt < opt("--plainfrom", 8, int) else opt("--lastfl", "", str)
    return [f"s_add_u32 s{S_T}, s{S_OO}, {16*896*mt}", ("lgwait", f"OR{mt}"), f"buffer_store_dwordx4 {v(areg+4,4)}, v{V_OG}, s[{R_O}:{R_O+3}], s{S_T} offen {fl}"]
A("s_waitcnt lgkmcnt(0)")
stamp(6)
if PRIO: A("s_setprio 0")
AL = opt("--al", -1, int)
if AL >= 0:
    A(".p2align 6, , ")
    for _ in range(AL): A("s_nop 0")
A("s_barrier")
for mt in range(4): emit(aread(f"A0_{mt}", mt, mt, 0))
if not EARLYW: A("s_barrier")
stamp(7)
for it in trread(0): emit(it)
BPOS = opt("--bpos", 3, int)
for k in range(14):
    if k % 2 == 0: stamp(1 + k // 2, True)
    fill = {g_: [] for g_ in range(8)}
    for mt in range(4):
        fill[mt].append(aread(f"A{k+1}_{mt}", 4 * ((k + 1) & 1) + mt, mt, k + 1) if k + 1 < 14 else aread(f"P4_{mt}", mt, 4, mt))
    fill[BPOS].append("s_barrier")
    if k + 1 < 14:
        for i_, it in enumerate(trread(k + 1)): fill[min(BPOS + 1 + i_ // TRP, 7)].append(it)
    if ALT:
        fill[0].append(f"s_setprio {2 if (k & 1) == 0 else 0}" if ALT == 2 else "s_setprio 2")
        if ALT == 1: fill[4].append("s_setprio 0")
    emit(("lgwait", f"B{k}")); emit(("lgwait", f"A{k}_3"))
    for mt in range(4):
        for t in range(2):
            d = ACC1 + 8 * mt + 4 * t
            A(f"v_mfma_f32_16x16x32_bf16 {v(d,4)}, {v(wreg(k,t),4)}, {v(AF+4*(4*(k&1)+mt),4)}, {'0' if k == 0 else v(d,4)}")
            for it in fill[2 * mt + t]: emit(it)
stamp(8, True)
stamp(8)
seq = [(mt, k) for mt in range(4, 8) for k in range(14)]
PFD = opt("--pfd", 4, int)
def areg(mt): return ACC1 + 8 * mt if mt < 6 else 208 + 8 * (mt - 6)
eq = []
def sched(g0, mt):
    e = epi(areg(mt), mt)
    for it in e: eq.append([g0, [it]])
    eq.append(["lag", LAG1, epi_b(areg(mt), mt)])
    c = epi_c(areg(mt), mt)
    eq.append([0, c[:1]]); eq.append(["lag", LAG2, c[1:]])
LAG1 = opt("--lag1", 5, int); LAG2 = opt("--lag2", 5, int); WE = opt("--we", 1, int)
if flag("--pipe"):
    for mt in range(4):
        for it in epi(areg(mt), mt): eq.append([3, [it]])
        if mt >= 1: eq.append([0, epi_b(areg(mt - 1), mt - 1)])
        if mt >= 2:
            c = epi_c(areg(mt - 2), mt - 2); eq.append([0, c[:1]]); eq.append([0, c[1:]])
    c = epi_c(areg(2), 2); eq.append([0, c[:1]]); eq.append([0, epi_b(areg(3), 3)]); eq.append(["lag", 3, c[1:]])
    c = epi_c(areg(3), 3); eq.append([0, c[:1]]); eq.append(["lag", 3, c[1:]])
else:
    for mt in range(4): sched(3, mt)
for mt in range(4, 7): sched(28 * (mt - 3) + 6, mt)
for d_ in range(4, PFD): emit(aread(f"P4_{d_}", d_, 4, d_))
g = 0; lastg = 0
for n, (mt, k) in enumerate(seq):
    if k == 0: stamp(5 + mt, True)
    TG_ = opt("--tog", 0, int)
    if TG_ and n % TG_ == 0:
        if n == 0:
            A("s_setprio 1")
        A(f"s_cmp_ge_u32 s{S_WV}, 4")
        A(f"s_cbranch_scc1 L_tg{n}")
        A(f"s_setprio {2 if (n // TG_) % 2 == 0 else 0}")
        A(f"L_tg{n}:")
    if n % WE == 0:
        m2, k2 = seq[min(n + WE - 1, len(seq) - 1)]
        emit(("lgwait", f"P{m2}_{k2}"))
    for t in range(2):
        d = areg(mt) + 4 * t
        A(f"v_mfma_f32_16x16x32_bf16 {v(d,4)}, {v(wreg(k,t),4)}, {v(AF+4*(n&7),4)}, {'0' if k == 0 else v(d,4)}")
        if t == 0 and n + PFD < len(seq): emit(aread(f"P{seq[n+PFD][0]}_{seq[n+PFD][1]}", (n + PFD) & 7, *seq[n + PFD]))
        if eq and ((eq[0][0] == "lag" and g >= lastg + eq[0][1]) or (eq[0][0] != "lag" and g >= eq[0][0])):
            for it in eq.pop(0)[-1]: emit(it)
            lastg = g
        g += 1
assert not eq, eq
stamp(13, True)
stamp(9)
A("s_nop 7")
for it in epi(areg(7), 7) + epi_b(areg(7), 7) + epi_c(areg(7), 7): emit(it)
stamp(10)
A("s_branch L_fin")

A("L_w7:")
q = hq
def issue(l):
    for it in l: emit(it)
A("s_waitcnt lgkmcnt(0)")
stamp(6)
if not EARLYW: A("s_barrier")
if MIDW: q.vm += ['W0'] * 14 + ['W1'] * 14
else: issue(dma(0)); issue(dma(1))
if not EARLYW: issue(dma(2))
for k in range(14):
    emit(("vmwait", f"W{k}"))
    if k == 0 or not flag("--nobar"): A("s_barrier")
    if (k >= 1 or EARLYW) and k + 2 < 14: issue(dma(k + 2))
stamp(8)
A("s_barrier")
A("L_fin:")
if flag("--dbgskew"):
    A("s_waitcnt vmcnt(0)")
    A("s_memrealtime s[100:101]") if False else None
    A("s_memrealtime s[58:59]")
    A("s_load_dwordx2 s[14:15], s[0:1], 40")
    A("s_getreg_b32 s60, hwreg(HW_REG_XCC_ID)")
    A("s_waitcnt lgkmcnt(0)")
    srd(A, R_WS, S_WS, 256)
    A("s_and_b32 s60, s60, 7")
    A("s_lshl_b32 s60, s60, 3")
    A("v_mov_b32 v12, s62")
    A("v_mov_b32 v13, s58")
    A("v_cmp_eq_u32 vcc, 0, v0")
    A("s_and_saveexec_b64 s[4:5], vcc")
    A(f"buffer_atomic_umax v12, off, s[{R_WS}:{R_WS+3}], s60")
    A(f"buffer_atomic_umax v13, off, s[{R_WS}:{R_WS+3}], s60 offset:4")
    A("s_waitcnt vmcnt(0)")
if STAMPS:
    A("s_waitcnt vmcnt(0)")
    stamp(11)
    A("s_waitcnt lgkmcnt(0)")
    if PROBE is not None:
        A(f"s_cmp_lg_u32 s{S_WV}, {PROBE[0]}")
        A("s_cbranch_scc1 L_nospin")
        if PROBE[1] == "f":
            A(f"s_mov_b32 s{S_T}, {int(PROBE[2:])}")
        else:
            pi, pj = int(PROBE[1], 16), int(PROBE[2], 16)
            A(f"s_sub_u32 s{S_T}, s{S_ST+2*pi}, s{S_ST+2*pj}")
            A(f"s_lshl_b32 s{S_T}, s{S_T}, 1")
            A(f"s_add_u32 s{S_T}, s{S_T}, 1500")
        A(f"s_add_u32 s{S_T}, s{S_T}, s{S_ST}")
        A("L_spin:")
        A(f"s_memrealtime s[{S_ST+30}:{S_ST+31}]")
        A("s_waitcnt lgkmcnt(0)")
        A(f"s_sub_u32 s{S_T2}, s{S_ST+30}, s{S_T}")
        A(f"s_cmp_lt_i32 s{S_T2}, 0")
        A("s_cbranch_scc1 L_spin")
        A("L_nospin:")
    A(f"s_lshl_b32 s{S_T}, s2, 11")
    A(f"s_lshl_b32 s{S_T2}, s{S_WV}, 7")
    A(f"s_add_u32 s{S_T}, s{S_T}, s{S_T2}")
    A("v_mov_b32 v14, 0")
    A("v_cmp_eq_u32 vcc, 0, v0")
    A("s_and_saveexec_b64 s[4:5], vcc")
    for i in range(NSTAMP):
        A(f"v_mov_b32 v12, s{S_ST+2*i}")
        A(f"v_mov_b32 v13, s{S_ST+2*i+1}")
        A(f"buffer_store_dwordx2 v[12:13], v14, s[{R_WS}:{R_WS+3}], s{S_T} offen offset:{8*i}")
        A("s_waitcnt vmcnt(0)")
A("L_end:")
A("s_endpgm")
out = wrap(A.text(), 256, 512, LDS_TOTAL, 256, 100 if STAMPS else 64, 256, notes="""
out = (LayerNorm(x)*g + b) @ w.  One workgroup (8 waves) per CU computes 128 rows x 224 columns.
 1. every wave normalises 2 x 8 rows (fp32 sums; mean and root rounded to bf16 like the reference) into LDS;
 2. wave 3 streams this half of w through a 3-slot LDS ring (LDS-DMA); the other seven waves own 32 columns each,
    pull their MFMA fragments with transposing LDS reads and keep them in registers (rows 0..63 are multiplied meanwhile);
 3. rows 64..127 are multiplied tile by tile while finished tiles leave through write-through stores.
Generated by an own script (straight-line code, counted waits).""")
open(sys.argv[1], "w").write(out)
```
